```python
import torch

def _softmax(x, axis=-1):
    return torch.softmax(x, dim=axis)
def _gelu(x):
    return torch.nn.functional.gelu(x, approximate="tanh")
def _silu(x):
    return torch.nn.functional.silu(x)
def _sigmoid(x):
    return torch.sigmoid(x)
def _layernorm(x, axis=-1, eps=1e-5):
    m = x.mean(dim=axis, keepdim=True)
    v = x.var(dim=axis, keepdim=True, unbiased=False)
    return (x - m) / torch.sqrt(v + eps)
def _scatter_add(tgt, idx, src, axis=0):
    return tgt.clone().index_add_(axis, idx, src)
def _segment_sum(src, seg, n):
    out = torch.zeros((n,) + src.shape[1:], dtype=src.dtype)
    return out.index_add_(0, seg, src)
def _pad(x, pw):
    flat = tuple(v for pair in reversed(pw) for v in pair)
    return torch.nn.functional.pad(x, flat)

kernel_name = 'gated_mix__mha_block_cached__dense_activation_squared_relu__decode'

def setup_inputs():

    _w = (lambda a: (lambda t: t.to(torch.bfloat16) if t.is_floating_point() else t)(torch.as_tensor(a)))
    def _A_setup():
        B, Sq, D = 2, 1, 448
        H, Sk, Dh = 16, 4096, 256
        return {
            "x": _w((lambda *s: torch.randn(*s, dtype=torch.bfloat16) * 0.05)(B, Sq, D)),
            "k_cache": _w((lambda *s: torch.randn(*s, dtype=torch.bfloat16) * 6.4)(B, H, Sk, Dh)),
            "v_cache": _w((lambda *s: torch.randn(*s, dtype=torch.bfloat16) * 3.2)(B, H, Sk, Dh)),
            "wq": _w((lambda *s: torch.randn(*s, dtype=torch.bfloat16) * 6.4)(D, H * Dh) * (D ** -0.5)),
            "wo": _w((lambda *s: torch.randn(*s, dtype=torch.bfloat16) * 3.2)(H * Dh, D) * ((H * Dh) ** -0.5)),
        }
    _A_in = _A_setup()

    def _B_setup():
        B, S, D, F = 2, 1, 448, 1792
        return {
            "x": _w((lambda *s: torch.randn(*s, dtype=torch.bfloat16) * 0.05)(B, S, D)),
            "w1": _w((lambda *s: torch.randn(*s, dtype=torch.bfloat16) * 0.2)(D, F)),
            "b1": _w((lambda *s: torch.randn(*s, dtype=torch.bfloat16) * 0.2)(F)),
            "w2": _w((lambda *s: torch.randn(*s, dtype=torch.bfloat16) * 0.2)(F, D)),
            "b2": _w((lambda *s: torch.randn(*s, dtype=torch.bfloat16) * 0.4)(D)),
        }
    _B_in = _B_setup()

    return {
        "A_x": _A_in["x"],
        "A_k_cache": _A_in["k_cache"],
        "A_v_cache": _A_in["v_cache"],
        "A_wq": _A_in["wq"],
        "A_wo": _A_in["wo"],
        "B_x": _B_in["x"],
        "B_w1": _B_in["w1"],
        "B_b1": _B_in["b1"],
        "B_w2": _B_in["w2"],
        "B_b2": _B_in["b2"],
        "gate_w": _w((lambda *s: torch.randn(*s, dtype=torch.bfloat16) * 0.1)(448) * 16.0),
    }

def reference(A_x, A_k_cache, A_v_cache, A_wq, A_wo, B_x, B_w1, B_b1, B_w2, B_b2, gate_w):
    def _A_ref(x, k_cache, v_cache, wq, wo):
        B, Sq, D = x.shape
        H, Dh = 16, 256
        q = (lambda x, *d: x.permute(*d))((x @ wq).reshape(B, Sq, H, Dh), 0, 2, 1, 3)
        scores = torch.einsum("bhqd,bhkd->bhqk", q, k_cache) * (Dh ** -0.5)
        p = _softmax(scores, axis=-1)
        o = torch.einsum("bhqk,bhkd->bhqd", p, v_cache)
        return (lambda x, *d: x.permute(*d))(o, 0, 2, 1, 3).reshape(B, Sq, H * Dh) @ wo

    def _B_ref(x, w1, b1, w2, b2):
        h = torch.einsum("bsd,df->bsf", x, w1) + b1
        zero = torch.zeros_like(h)
        r = torch.where(h > zero, h, zero)
        h = r * r
        out = torch.einsum("bsf,fd->bsd", h, w2) + b2
        return out

    x = A_x
    g = _sigmoid((x * gate_w).sum(-1, keepdims=True))
    a = _A_ref(x, A_k_cache, A_v_cache, A_wq, A_wo)
    b = _B_ref(x, B_w1, B_b1, B_w2, B_b2)
    return g * a + (1 - g) * b
```

```python
import re

TRANS = ("v_exp_f32", "v_log_f32", "v_rcp_f32", "v_rsq_f32", "v_sqrt_f32", "v_sin_f32", "v_cos_f32", "v_rcp_iflag_f32")

def parse_regs(tok):
    tok = tok.strip()
    tok = re.sub(r'^-', '', tok)
    m = re.match(r'^abs\((.*)\)$', tok)
    if m: tok = m.group(1)
    tok = tok.strip('|')
    m = re.match(r'^([vsa])(\d+)$', tok)
    if m: return {(m.group(1), int(m.group(2)))}
    m = re.match(r'^([vsa])\[(\d+):(\d+)\]$', tok)
    if m: return {(m.group(1), i) for i in range(int(m.group(2)), int(m.group(3)) + 1)}
    if tok == 'vcc': return {('s', 'vcc')}
    if tok in ('vcc_lo', 'vcc_hi'): return {('s', 'vcc')}
    if tok == 'exec': return {('s', 'exec')}
    if tok == 'm0': return {('s', 'm0')}
    return set()

class Ins:
    __slots__ = ('text', 'op', 'cls', 'dst', 'src', 'srcC', 'srcAB', 'dpp', 'states', 'data')

def split_ops(rest):
    out, depth, cur = [], 0, ''
    for ch in rest:
        if ch in '[(': depth += 1
        if ch in '])': depth -= 1
        if ch == ',' and depth == 0:
            out.append(cur.strip()); cur = ''
        else:
            cur += ch
    if cur.strip(): out.append(cur.strip())
    return out

def analyze(text):
    I = Ins(); I.text = text
    t = text.split(';')[0].strip()
    parts = t.split(None, 1)
    op = parts[0]; rest = parts[1] if len(parts) > 1 else ''
    I.op = op; I.dst = set(); I.src = set(); I.srcC = set(); I.srcAB = set(); I.dpp = False; I.states = 1; I.data = set()
    ops = split_ops(rest)
    mods = ''
    if ops:
        lp = ops[-1].split(None, 1)
        if len(lp) > 1 and not lp[0].endswith('('):
            ops[-1] = lp[0]; mods = lp[1]
    base = re.sub(r'_(e32|e64|dpp|sdwa)$', '', op)
    if op == 's_nop':
        I.cls = 'nop'; I.states = int(ops[0], 0) + 1; return I
    if op.startswith('v_mfma'):
        I.cls = 'mfma'; I.dst = parse_regs(ops[0]); I.srcAB = parse_regs(ops[1]) | parse_regs(ops[2]); I.srcC = parse_regs(ops[3])
        I.src = I.srcAB | I.srcC; return I
    if op.startswith('v_'):
        I.cls = 'trans' if base in TRANS else 'valu'
        I.dpp = op.endswith('_dpp') or 'row_' in mods or 'quad_perm' in mods or 'row_' in rest or 'quad_perm' in rest
        if base.startswith('v_permlane') and 'swap' in base:
            I.cls = 'perm'; I.dst = parse_regs(ops[0]) | parse_regs(ops[1]); I.src = set(I.dst); return I
        if base.startswith('v_cmp'):
            I.dst = parse_regs(ops[0]); I.src = set().union(*[parse_regs(o) for o in ops[1:]]); return I
        if base in ('v_readfirstlane_b32', 'v_readlane_b32'):
            I.cls = 'rdlane'; I.dst = parse_regs(ops[0]); I.src = set().union(*[parse_regs(o) for o in ops[1:]]); return I
        if base in ('v_add_co_u32', 'v_sub_co_u32', 'v_addc_co_u32', 'v_subb_co_u32'):
            I.dst = parse_regs(ops[0]) | parse_regs(ops[1]); I.src = set().union(*[parse_regs(o) for o in ops[2:]]); return I
        I.dst = parse_regs(ops[0]); I.src = set().union(*[parse_regs(o) for o in ops[1:]]) if len(ops) > 1 else set()
        if base in ('v_fmac_f32', 'v_writelane_b32') or I.dpp: I.src |= I.dst
        return I
    if op.startswith('buffer_') or op.startswith('global_'):
        I.cls = 'vmem'
        allr = [parse_regs(o) for o in ops]
        if 'load' in op and ' lds' not in (' ' + mods) and 'load_lds' not in op:
            I.dst = allr[0]; I.src = set().union(*allr[1:])
        else:
            I.src = set().union(*allr)
            if 'store' in op or 'atomic' in op:
                I.data = allr[0] if op.startswith('buffer_') else allr[1]
            if ' lds' in (' ' + mods) or 'load_lds' in op: I.src |= {('s', 'm0')}
        return I
    if op.startswith('ds_'):
        I.cls = 'ds'
        allr = [parse_regs(o) for o in ops]
        if op.startswith('ds_read') or op.startswith('ds_bpermute') or op.startswith('ds_permute') or op.startswith('ds_swizzle') or '_rtn' in op:
            I.dst = allr[0]; I.src = set().union(*allr[1:]) if len(allr) > 1 else set()
        else:
            I.src = set().union(*allr)
        return I
    if op.startswith('s_'):
        I.cls = 'salu'
        allr = [parse_regs(o) for o in ops]
        if op.startswith('s_cmp') or op.startswith('s_cbranch') or op in ('s_branch', 's_waitcnt', 's_barrier', 's_endpgm', 's_setprio', 's_sleep', 's_setpc_b64'):
            I.src = set().union(*allr) if allr else set()
        elif allr:
            I.dst = allr[0]; I.src = set().union(*allr[1:]) if len(allr) > 1 else set()
            if 'saveexec' in op: I.dst |= {('s', 'exec')}
        return I
    raise ValueError("unknown instruction: " + text)

VALUISH = ('valu', 'trans', 'perm', 'rdlane')

def need(p, c):
    n = 0
    vd = {r for r in p.dst if r[0] in 'va'}
    sd = {r for r in p.dst if r[0] == 's'}
    if p.cls in VALUISH:
        if c.cls == 'mfma' and vd & c.src: n = max(n, 2)
        if c.dpp and vd & c.src: n = max(n, 2)
        if c.cls == 'perm' and vd & c.src: n = max(n, 2)
        if c.cls == 'rdlane' and vd & c.src: n = max(n, 1)
        if p.cls == 'trans' and vd & c.src: n = max(n, 1)
        if sd:
            if c.cls == 'vmem' and sd & c.src: n = max(n, 5)
            if c.cls in VALUISH and sd & c.src: n = max(n, 4 if c.cls == 'rdlane' else 2)
            if c.cls == 'valu' and c.op.startswith('v_cndmask') and ('s', 'vcc') in sd and 'vcc' in c.text: n = max(n, 2)
            if c.cls == 'salu' and sd & c.src: n = max(n, 1)
            if c.cls == 'salu' and 'vcc' in c.op and ('s', 'vcc') in sd: n = max(n, 1)
    if p.cls == 'mfma':
        assert '16x16x32' in p.op
        if c.cls == 'mfma':
            if vd & c.srcAB: n = max(n, 8)
            if vd & c.srcC and c.srcC != vd: n = max(n, 6)
            if vd & c.dst and not (c.srcC == vd): n = max(n, 8)
        elif c.cls in VALUISH or c.cls in ('vmem', 'ds'):
            if vd & (c.src | c.dst): n = max(n, 8)
        if c.cls in VALUISH and p.srcC & c.dst: n = max(n, 3)
    if p.cls == 'vmem' and p.data and len(p.data) >= 3:
        if p.data & c.dst: n = max(n, 2)
    if p.cls == 'ds' and c.cls in VALUISH and p.op in ('ds_write_b128', 'ds_write_b96') and p.src & c.dst: n = max(n, 2)
    if p.cls == 'salu' and ('s', 'm0') in p.dst and ('s', 'm0') in c.src and c.cls in ('vmem', 'ds'): n = max(n, 1)
    return n

class Asm:
    def __init__(self):
        self.lines = []
        self.hist = []
        self.nops = 0
    def raw(self, s):
        self.lines.append(s)
    def comment(self, s):
        self.lines.append('    ; ' + s)
    def label(self, name, flush=True):
        self.lines.append(name + ':')
    def forget(self):
        self.hist = []
    def __call__(self, text):
        for ln in text.strip().split('\n'):
            ln = ln.strip()
            if not ln or ln.startswith(';'):
                if ln: self.lines.append('    ' + ln)
                continue
            self.ins(ln)
    def ins(self, text):
        I = analyze(text)
        dist = 0; req = 0
        for p in reversed(self.hist):
            n = need(p, I)
            if n > dist: req = max(req, n - dist)
            dist += p.states
            if dist > 24: break
        while req > 0:
            k = min(req, 16)
            nop = analyze('s_nop %d' % (k - 1))
            self.lines.append('    s_nop %d' % (k - 1)); self.hist.append(nop); self.nops += k
            req -= k
        self.lines.append('    ' + text)
        self.hist.append(I)
        if len(self.hist) > 64: self.hist = self.hist[-40:]
    def text(self):
        return '\n'.join(self.lines) + '\n'
```

```python
import sys, struct
from asmlib import Asm

NAME = "gated_mix__mha_block_cached__dense_activation_squared_relu__decode"
def f32(x): return "0x%08x" % struct.unpack('<I', struct.pack('<f', x))[0]

def gen(kv="nt", wq="nt", w2="nt", stamps=False, NPRE=2, NMID=2, swz=1, amp=-1, xs=0, wmap=4, pipe=1, fpar=0, red=2, ypad=0, yskew=256, KS=0):
    stamps = stamps or amp >= 0
    a = Asm()
    KV = (" " + kv) if kv else ""
    WQP = (" " + wq) if wq else ""
    WP = (" " + w2) if w2 else ""
    YS = 128 if ypad else 64
    YSH = 7 if ypad else 6
    YST = 128 * YS + yskew
    EP_OFF = 0; ST_OFF = 4096; OB_OFF = 8192; SQ_OFF = OB_OFF + 262144; SH_OFF = SQ_OFF + 262144
    YB_OFF = SH_OFF + 262144; TS_OFF = 1835008; WS_USED = 2097152
    assert YB_OFF + 56 * YST <= TS_OFF
    L_Q = 0; L_ML = 512; L_R2 = 640; L_GG = 768; L_F = 1024; L_OW = 5120; OWS = 1024; LDS = L_OW + 16 * OWS
    sCk0, sCk1, sH, sB, sS, sJJ, sBH, sW = 3, 4, 5, 6, 7, 8, 9, 10
    sT0, sT1, sT2, sT3 = 11, 12, 13, 14
    sK, sV, sWS, sWA, sWB = 44, 48, 52, 56, 64
    sSel = [40, 41, 60, 61]; sE = 62; sFF = 63
    sKV = 68
    sKT = 72; sVG = 76; sC = 78; sHI = 79; sM = 80
    sP0, sP1, sP2 = 82, 83, 84
    sRole = 85; sRed = 86; sCnt = 87
    sTS = 88; sTSo = 90; s3584 = 91; sTag = 92
    vMask = 96; vS = 100; vQ = 108; vO = 108; vA = 116; vKo = 124; vVo = 125; vL = 126; vT = 127
    LIM = 20000
    def R(b, n=4): return "v[%d:%d]" % (b, b + n - 1)
    def S(b, n=4): return "s[%d:%d]" % (b, b + n - 1)
    STR = [26, 27, 93, 94, 95, 96, 97, 98, 99, 100, 101, 15]
    def stamp(idx):
        if not stamps: return
        a("s_memrealtime s[%d:%d]" % (sTS, sTS + 1))
        a("s_waitcnt lgkmcnt(0)")
        a("s_mov_b32 s%d, s%d" % (STR[idx], sTS))
    def endpgm():
        if stamps: a("s_branch L_stampout")
        else: a("s_endpgm")
    DPPF = "row_mask:0xf bank_mask:0xf"
    ROW16 = ['ror:8', 'ror:4', 'ror:2', 'ror:1']
    Q8 = ("quad_perm:[1,0,3,2]", "quad_perm:[2,3,0,1]", "row_half_mirror")
    def kload(f):
        u, i = f >> 2, f & 3
        a(f"buffer_load_dwordx4 {R(4*f)}, v{vKo}, {S(sK)}, s{sKT+u} offen offset:{128*i}{KV}")
    def vload(idx):
        G, t, hf = idx >> 3, (idx >> 1) & 3, idx & 1
        base = 64 if G == 0 else 0
        a(f"buffer_load_dwordx4 {R(base+4*(2*t+hf))}, v{vVo}, {S(sV)}, s{sVG+G} offen offset:{512*t+256*hf}{KV}")
    def allred4(base, tmp, steps, op="add"):
        for st in steps:
            if st.startswith('ror'):
                for r in range(4): a(f"v_{op}_f32_dpp v{base+r}, v{base+r}, v{base+r} row_{st} {DPPF}")
            else:
                sw = "v_permlane16_swap_b32" if st == 'p16' else "v_permlane32_swap_b32"
                for r in range(4): a(f"v_mov_b32 v{tmp+r}, v{base+r}")
                for r in range(4): a(f"{sw} v{base+r}, v{tmp+r}")
                for r in range(4): a(f"v_{op}_f32 v{base+r}, v{base+r}, v{tmp+r}")
    def rnd2(x, y, tmp):
        a(f"v_cvt_pk_bf16_f32 v{tmp}, v{x}, v{y}")
        a(f"v_lshlrev_b32 v{x}, 16, v{tmp}")
        a(f"v_and_b32 v{y}, s{sHI}, v{tmp}")
    def tag_put(base, vtag):
        for r in range(4): a(f"v_perm_b32 v{base+r}, v{base+r}, v{vtag}, s{sSel[r]}")
    def tag_chk(base, t0, t1):
        a(f"v_perm_b32 v{t0}, v{base+1}, v{base}, s{sCk0}")
        a(f"v_perm_b32 v{t1}, v{base+3}, v{base+2}, s{sCk1}")
        a(f"v_or_b32 v{t0}, v{t0}, v{t1}")
        a(f"v_cmp_ne_u32 vcc, s{sTag}, v{t0}")
    def poll_many(lbl, loads, t0, t1):
        a(f"s_mov_b32 s{sCnt}, 0")
        a.label(lbl); a.forget()
        a("s_waitcnt vmcnt(0)")
        a(f"s_mov_b32 s{sE}, 0")
        for i, (base, fn) in enumerate(loads):
            tag_chk(base, t0, t1)
            a(f"s_cbranch_vccz {lbl}_s{i}")
            a("s_mov_b64 exec, vcc")
            fn()
            a("s_mov_b64 exec, -1")
            a(f"s_mov_b32 s{sE}, 1")
            a.label(f"{lbl}_s{i}")
        a(f"""
        s_cmp_eq_u32 s{sE}, 0
        s_cbranch_scc1 {lbl}_ok
        s_add_u32 s{sCnt}, s{sCnt}, 1
        s_cmp_gt_u32 s{sCnt}, {LIM}
        s_cbranch_scc0 {lbl}
        s_waitcnt vmcnt(0)
        """)
        a.label(lbl + "_ok"); a.forget()
    def setup2():
        a(f"""
        s_add_u32 s{sV}, s20, s{sKV}
        s_addc_u32 s{sV+1}, s21, 0
        s_mov_b32 s{sWS}, s42
        s_mov_b32 s{sWS+1}, s43
        s_load_dword s{sTag}, s[42:43], {EP_OFF}
        """)
        if stamps:
            for r in STR[:11]: a("s_mov_b32 s%d, 0" % r)
        tmp = vS
        a(f"""
        v_and_b32 v{tmp}, 1, v{vL}
        v_lshlrev_b32 v{tmp}, 4, v{tmp}
        v_mov_b32 v{tmp+1}, 0xffff
        v_lshlrev_b32 v{tmp+1}, v{tmp}, v{tmp+1}
        v_bfe_u32 v{tmp+2}, v{vL}, 1, 2
        """)
        for r in range(4):
            a(f"v_cmp_eq_u32 vcc, {r}, v{tmp+2}")
            a(f"s_mov_b32 s{sSel[r]}, {0x07060500 + r}")
            a(f"v_cndmask_b32 v{vMask+r}, 0, v{tmp+1}, vcc")
        a(f"""
        s_waitcnt lgkmcnt(0)
        s_and_b32 s{sCk0}, s{sTag}, 0x7f7f7f7f
        s_add_u32 s{sCk0}, s{sCk0}, 0x01010101
        s_and_b32 s{sTag}, s{sTag}, 0x80808080
        s_xor_b32 s{sTag}, s{sTag}, s{sCk0}
        s_mov_b32 s{sCk0}, 0x0c0c0400
        s_mov_b32 s{sCk1}, 0x04000c0c
        """)

    a.raw("; @launch grid=(256,1,1) block=(1024,1,1) lds=%d" % LDS)
    a.raw('.amdgcn_target "amdgcn-amd-amdhsa--gfx950"')
    a.raw(".text")
    a.raw(".globl %s_kernel" % NAME)
    a.raw(".p2align 8")
    a.raw(".type %s_kernel,@function" % NAME)
    a.raw("%s_kernel:" % NAME)
    a("s_cmp_ge_u32 s2, 256")
    a("s_cbranch_scc1 L_end")
    stamp(11)
    a("s_load_dwordx16 s[16:31], s[0:1], 0")
    a("s_load_dwordx8 s[32:39], s[0:1], 64")
    a("s_load_dwordx2 s[42:43], s[0:1], 104")
    n, g = 120, 121
    sX, sJ = sCk0, sCk1
    a(f"""
    v_lshrrev_b32 v{vT}, 6, v0
    v_and_b32 v{vL}, 63, v0
    s_and_b32 s{sX}, s2, 7
    v_readfirstlane_b32 s{sW}, v{vT}
    s_lshr_b32 s{sJ}, s2, 3
    """)
    if wmap == 1: a(f"""
    s_lshr_b32 s{sT0}, s{sJ}, 4
    s_lshl_b32 s{sH}, s{sX}, 1
    s_add_u32 s{sH}, s{sH}, s{sT0}
    s_lshr_b32 s{sB}, s{sJ}, 3
    s_and_b32 s{sB}, s{sB}, 1
    s_and_b32 s{sS}, s{sJ}, 7
    """)
    elif wmap == 0: a(f"""
    s_and_b32 s{sH}, s{sJ}, 15
    s_lshr_b32 s{sB}, s{sJ}, 4
    s_xor_b32 s{sS}, s{sX}, {fpar}
    """)
    elif wmap == 4: a(f"""
    s_and_b32 s{sT0}, s{sJ}, 3
    s_lshr_b32 s{sH}, s{sX}, 1
    s_lshl_b32 s{sH}, s{sH}, 2
    s_add_u32 s{sH}, s{sH}, s{sT0}
    s_lshr_b32 s{sB}, s{sJ}, 4
    s_lshr_b32 s{sS}, s{sJ}, 1
    s_and_b32 s{sS}, s{sS}, 6
    s_and_b32 s{sT0}, s{sX}, 1
    s_xor_b32 s{sT0}, s{sT0}, {fpar}
    s_or_b32 s{sS}, s{sS}, s{sT0}
    """)
    a(f"""
    s_lshl_b32 s{sJJ}, s{sB}, 3
    s_add_u32 s{sJJ}, s{sJJ}, s{sS}
    s_lshl_b32 s{sBH}, s{sB}, 4
    s_add_u32 s{sBH}, s{sBH}, s{sH}
    s_and_b32 s{sT0}, s{sS}, 1
    s_lshl_b32 s{sT0}, s{sT0}, 4
    s_or_b32 s{sT0}, s{sT0}, s{sH}
    s_cmp_lt_u32 s{sT0}, 14
    s_cselect_b32 s{sFF}, 1, 0
    v_and_b32 v{n}, 15, v{vL}
    v_lshrrev_b32 v{g}, 4, v{vL}
    v_and_b32 v{vT}, 7, v{vL}
    v_lshlrev_b32 v{vKo}, 9, v{vT}
    v_lshl_add_u32 v{vKo}, v{g}, 4, v{vKo}
    v_and_b32 v{vT}, 8, v{vL}
    v_lshl_add_u32 v{vKo}, v{vT}, 3, v{vKo}
    s_lshl_b32 s{sT2}, s{sW}, 14
    s_and_b32 s{sT3}, s{sW}, {3 if swz else 0}
    s_lshl_b32 s{sT1}, s{sT3}, 12
    s_or_b32 s{sKT}, s{sT2}, s{sT1}
    s_xor_b32 s{sKT+1}, s{sKT}, 4096
    s_xor_b32 s{sKT+2}, s{sKT}, 8192
    s_xor_b32 s{sKT+3}, s{sKT}, 12288
    s_lshl_b32 s{sKV}, s{sBH}, 21
    s_lshl_b32 s{sT1}, s{sS}, 18
    s_add_u32 s{sKV}, s{sKV}, s{sT1}
    s_mov_b32 s{sK+2}, 262144
    s_mov_b32 s{sK+3}, 0x00020000
    s_mov_b32 s{sV+2}, 262144
    s_mov_b32 s{sV+3}, 0x00020000
    s_mov_b32 s{sWS+2}, {WS_USED}
    s_mov_b32 s{sWS+3}, 0x00020000
    s_mov_b32 s{sWA+3}, 0x00020000
    s_mov_b32 s{sHI}, 0xffff0000
    s_cmp_le_u32 s{sW}, s{sFF}
    s_cbranch_scc1 L_stage1
    s_waitcnt lgkmcnt(0)
    s_add_u32 s{sK}, s18, s{sKV}
    s_addc_u32 s{sK+1}, s19, 0
    """)
    for f in range(16): kload(f)
    setup2()
    a.label("L_kdone"); a.forget()
    a(f"""
    v_lshlrev_b32 v{vVo}, 11, v{g}
    v_lshl_add_u32 v{vVo}, v{n}, 4, v{vVo}
    s_and_b32 s{sT1}, s{sKT}, 4096
    v_xor_b32 v{vVo}, s{sT1}, v{vVo}
    s_andn2_b32 s{sVG}, s{sKT}, 4096
    s_xor_b32 s{sVG+1}, s{sVG}, 8192
    """)
    for idx in range(NPRE): vload(idx)
    a(f"""
    s_mov_b32 s{sC}, {f32(1.4426950408889634/16)}
    s_movk_i32 s{s3584}, 3584
    s_lshr_b32 s{sRole}, s{sW}, 2
    s_lshl_b32 s{sT0}, s{sH}, 3
    s_add_u32 s{sT0}, s{sT0}, s{sS}
    s_mul_i32 s{sT0}, s{sT0}, {16*896}
    s_mul_i32 s{sT1}, s{sT0}, s{sFF}
    s_lshl_b32 s{sT0}, s{sT0}, 1
    s_cmp_eq_u32 s{sRole}, 1
    s_cselect_b32 s{sT0}, s{sT0}, s{sT1}
    s_cselect_b32 s{sT2}, s24, s32
    s_cselect_b32 s{sT3}, s25, s33
    s_add_u32 s{sWB}, s{sT2}, s{sT0}
    s_addc_u32 s{sWB+1}, s{sT3}, 0
    s_mov_b32 s{sWB+2}, 28672
    s_mov_b32 s{sWB+3}, 0x00020000
    s_lshl_b32 s{sT0}, s{sFF}, 1
    s_cmp_eq_u32 s{sRole}, 2
    s_cselect_b32 s{sRole}, s{sT0}, s{sRole}
    v_and_b32 v{vT}, 8, v{vL}
    v_lshlrev_b32 v{vT}, 3, v{vT}
    v_lshl_add_u32 v{vT}, v{g}, 4, v{vT}
    v_mul_u32_u24 v{vKo}, 7168, v{g}
    v_lshl_add_u32 v{vKo}, v{n}, 4, v{vKo}
    s_and_b32 s{sT0}, s{sW}, 3
    s_lshl_b32 s{sT1}, s{sT0}, 8
    v_add_u32 v{vKo}, s{sT1}, v{vKo}
    s_cmp_eq_u32 s{sT0}, 3
    s_cselect_b32 s{sT0}, 8, 0
    v_and_b32 v{vS}, s{sT0}, v{vL}
    v_lshl_or_b32 v{vKo}, v{vS}, 27, v{vKo}
    """)
    if stamps:
        a(f"""
        s_lshl_b32 s{sTSo}, s2, 4
        s_add_u32 s{sTSo}, s{sTSo}, s{sW}
        s_lshl_b32 s{sTSo}, s{sTSo}, 6
        s_add_u32 s{sTSo}, s{sTSo}, {TS_OFF}
        """)
    stamp(0)
    a("s_waitcnt lgkmcnt(0)")
    a("s_barrier")
    assert NPRE <= 4
    qb = [80, 84, 88, 92]
    for i in range(4): a(f"ds_read_b128 {R(qb[i])}, v{vT} offset:{L_Q+128*i}")
    a(f"s_sub_u32 s{sT0}, s{sRole}, 1")
    a(f"s_waitcnt vmcnt({NPRE})")
    stamp(1)
    acc = [vS, vS + 4, vQ, vQ + 4]
    for i in range(4):
        a(f"s_waitcnt lgkmcnt({3-i})")
        for u in range(4):
            c = "0" if i == 0 else R(acc[u])
            a(f"v_mfma_f32_16x16x32_bf16 {R(acc[u])}, {R(4*(4*u+i))}, {R(qb[i])}, {c}")
    a(f"""
    s_cmp_gt_u32 s{sT0}, 1
    s_cbranch_scc1 L_now
    """)
    for t in range(8):
        so_ = "0" if t < 4 else f"s{s3584}"
        a(f"buffer_load_dwordx4 {R(32+4*t)}, v{vKo}, {S(sWB)}, {so_} offen offset:{896*(t%4)}{WP}")
    a.label("L_now")
    NB2 = NPRE + NMID
    for idx in range(NPRE, NB2): vload(idx)
    a(f"""
    s_cmp_eq_u32 s{sW}, 3
    s_cbranch_scc1 L_ldgate
    """)
    a.label("L_sm")
    a("s_nop 1")
    for r in range(4): a(f"v_permlane32_swap_b32 v{acc[0]+r}, v{acc[1]+r}")
    for r in range(4): a(f"v_permlane32_swap_b32 v{acc[2]+r}, v{acc[3]+r}")
    for r in range(4): a(f"v_add_f32_dpp v{vS+r}, v{acc[1]+r}, v{acc[0]+r} row_ror:8 {DPPF}")
    for r in range(4): a(f"v_add_f32_dpp v{vS+4+r}, v{acc[3]+r}, v{acc[2]+r} row_ror:8 {DPPF}")
    for k in range(0, 8, 2): a(f"v_cvt_pk_bf16_f32 v{vA+k//2}, v{vS+k}, v{vS+k+1}")
    for k in range(4): a(f"v_mov_b32_dpp v{vA+k}, v{vA+k} row_ror:8 row_mask:0xf bank_mask:0xc")
    for k in range(0, 8, 2):
        a(f"v_lshlrev_b32 v{vS+k}, 16, v{vA+k//2}")
        a(f"v_and_b32 v{vS+k+1}, s{sHI}, v{vA+k//2}")
    m, t1, l, mc = vA, vA + 1, vA + 2, vA + 3
    a(f"""
    v_max3_f32 v{m}, v{vS}, v{vS+1}, v{vS+2}
    v_max3_f32 v{t1}, v{vS+3}, v{vS+4}, v{vS+5}
    v_max3_f32 v{m}, v{m}, v{vS+6}, v{vS+7}
    v_max_f32 v{m}, v{m}, v{t1}
    v_mov_b32 v{t1}, v{m}
    v_permlane16_swap_b32 v{m}, v{t1}
    v_max_f32 v{m}, v{m}, v{t1}
    v_mov_b32 v{t1}, v{m}
    v_permlane32_swap_b32 v{m}, v{t1}
    v_max_f32 v{m}, v{m}, v{t1}
    v_mul_f32 v{mc}, s{sC}, v{m}
    """)
    for k in range(8): a(f"v_fma_f32 v{vS+k}, v{vS+k}, s{sC}, -v{mc}")
    for k in range(8): a(f"v_exp_f32 v{vS+k}, v{vS+k}")
    a(f"""
    v_add_f32 v{l}, v{vS}, v{vS+1}
    v_add_f32 v{t1}, v{vS+2}, v{vS+3}
    v_add_f32 v{l}, v{l}, v{vS+4}
    v_add_f32 v{t1}, v{t1}, v{vS+5}
    v_add_f32 v{l}, v{l}, v{vS+6}
    v_add_f32 v{t1}, v{t1}, v{vS+7}
    v_add_f32 v{l}, v{l}, v{t1}
    v_mov_b32 v{t1}, v{l}
    v_permlane16_swap_b32 v{l}, v{t1}
    v_add_f32 v{l}, v{l}, v{t1}
    v_mov_b32 v{t1}, v{l}
    v_permlane32_swap_b32 v{l}, v{t1}
    v_add_f32 v{t1}, v{l}, v{t1}
    s_lshl_b32 s{sT0}, s{sW}, 3
    v_mov_b32 v{vT}, s{sT0}
    ds_write_b64 v{vT}, {R(m,2)} offset:{L_ML}
    v_and_b32 v{vT}, 15, v{vL}
    v_lshlrev_b32 v{vT}, 3, v{vT}
    s_waitcnt lgkmcnt(0)
    s_barrier
    ds_read_b64 {R(vO+4,2)}, v{vT} offset:{L_ML}
    """)
    for idx in range(NB2, 16): vload(idx)
    a("s_waitcnt lgkmcnt(0)")
    stamp(2)
    mi, li, M, L = vO + 4, vO + 5, vO, vO + 2
    a(f"v_mov_b32 v{M}, v{mi}")
    for k in (8, 4, 2, 1): a(f"v_max_f32_dpp v{M}, v{M}, v{M} row_ror:{k} {DPPF}")
    a(f"""
    v_sub_f32 v{m}, v{m}, v{M}
    v_mul_f32 v{m}, s{sC}, v{m}
    v_exp_f32 v{m}, v{m}
    s_cmp_eq_u32 s{sW}, 2
    s_cbranch_scc1 L_stat
    """)
    a.label("L_nostat")
    a(f"""
    v_and_b32 v{t1}, 8, v{vL}
    v_cmp_ne_u32 vcc, 0, v{t1}
    v_mov_b32 v{t1}, s{sHI}
    v_cndmask_b32 v{t1}, 0, v{t1}, vcc
    """)
    for k in range(8): a(f"v_mul_f32 v{vS+k}, v{vS+k}, v{m}")
    for k in range(8):
        tt = vA + 4 + (k & 3)
        a(f"v_cvt_pk_bf16_f32 v{tt}, v{vS+k}, v{vS+k}")
        a(f"v_and_b32 v{tt}, v{t1}, v{tt}")
        a(f"v_sub_f32 v{vS+k}, v{vS+k}, v{tt}")
        a(f"v_cvt_pk_bf16_f32 v{vS+k}, v{vS+k}, v{vS+k}")
    for t in range(4):
        ab = vA + 4 * (t & 1)
        for r in range(4): a(f"v_and_b32 v{ab+r}, v{vS+t}, v{vMask+r}")
        a(f"s_waitcnt vmcnt({14-2*t})")
        for hf in range(2):
            c = "0" if t == 0 else R(vO + 4 * hf)
            a(f"v_mfma_f32_16x16x32_bf16 {R(vO+4*hf)}, {R(ab)}, {R(64+4*(2*t+hf))}, {c}")
    stamp(3)
    for t in range(4):
        for r in range(4): a(f"v_and_b32 v{64+4*t+r}, v{vS+4+t}, v{vMask+r}")
    g, n = vA, vA + 1
    vTag = vKo; vSel = vVo
    a(f"""
    v_lshrrev_b32 v{g}, 4, v{vL}
    v_and_b32 v{n}, 15, v{vL}
    s_lshl_b32 s{sT0}, s{sW}, 10
    v_lshrrev_b32 v83, 5, v{vL}
    v_lshlrev_b32 v83, 9, v83
    v_lshl_add_u32 v83, v{n}, 5, v83
    v_and_b32 v{vT}, 16, v{vL}
    v_add3_u32 v83, v83, v{vT}, s{sT0}
    v_and_b32 v82, 31, v{vL}
    v_lshlrev_b32 v82, 2, v82
    v_lshrrev_b32 v81, 5, v{vL}
    v_lshl_add_u32 v81, v81, 13, v82
    s_and_b32 s{sT1}, s{sW}, 7
    s_lshl_b32 s{sT0}, s{sT1}, 7
    v_add_u32 v81, s{sT0}, v81
    v_and_b32 v{vSel}, 3, v{vL}
    v_add_u32 v{vSel}, 0x07060500, v{vSel}
    v_mov_b32 v80, 0
    v_mov_b32 v{vTag}, s{sTag}
    s_lshl_b32 s{sP0}, s{sBH}, 3
    s_add_u32 s{sP0}, s{sP0}, s{sT1}
    s_lshl_b32 s{sP0}, s{sP0}, 3
    s_add_u32 s{sP0}, s{sP0}, s{sS}
    s_lshl_b32 s{sP0}, s{sP0}, 7
    s_add_u32 s{sP0}, s{sP0}, {OB_OFF}
    s_movk_i32 s{sRed}, 99
    s_cmp_eq_u32 s{sRole}, 1
    s_cbranch_scc1 L_mid1
    s_cmp_eq_u32 s{sRole}, 2
    s_cbranch_scc1 L_mid2
    s_cmp_eq_u32 s{sW}, 0
    s_cbranch_scc1 L_mid3
    s_cmp_eq_u32 s{sW}, 3
    s_cbranch_scc1 L_gate
    """)
    a.label("L_pv2"); a.forget()
    for t in range(4):
        a(f"s_waitcnt vmcnt({6-2*t})")
        for hf in range(2):
            a(f"v_mfma_f32_16x16x32_bf16 {R(vO+4*hf)}, {R(64+4*t)}, {R(4*(2*t+hf))}, {R(vO+4*hf)}")
    a(f"s_cmp_lt_u32 s{sW}, 8")
    for r in range(4): a(f"v_permlane32_swap_b32 v{vO+r}, v{vO+4+r}")
    for r in range(4): a(f"v_add_f32 v{vO+r}, v{vO+r}, v{vO+4+r}")
    a(f"""
    ds_write_b128 v83, {R(vO)} offset:{L_OW}
    s_cbranch_scc1 L_low
    s_waitcnt lgkmcnt(0)
    s_barrier
    """)
    for i in range(4): a(f"ds_read2st64_b32 {R(2*i,2)}, v81 offset0:{L_OW//256+8*i} offset1:{L_OW//256+8*i+4}")
    a(f"""
    s_waitcnt lgkmcnt(2)
    v_add_f32 v0, v0, v1
    v_add_f32 v2, v2, v3
    s_waitcnt lgkmcnt(0)
    v_add_f32 v4, v4, v5
    v_add_f32 v6, v6, v7
    v_add_f32 v0, v0, v2
    v_add_f32 v4, v4, v6
    v_add_f32 v0, v0, v4
    v_mov_b32 v1, v0
    v_permlane32_swap_b32 v0, v1
    v_add_f32 v0, v0, v1
    v_perm_b32 v0, v0, v{vTag}, v{vSel}
    s_mov_b32 exec_hi, 0
    buffer_store_dword v0, v82, {S(sWS)}, s{sP0} offen sc1
    """)
    stamp(4)
    endpgm()
    a.label("L_low"); a.forget()
    a(f"""
    s_cmp_eq_u32 s{sRole}, 1
    s_cbranch_scc1 L_gemv1
    s_waitcnt lgkmcnt(0)
    s_barrier
    """)
    if xs: endpgm()
    a(f"""
    s_cmp_lt_u32 s{sRed}, 28
    s_cbranch_scc1 L_reduce
    s_cmp_eq_u32 s{sRed}, 28
    s_cbranch_scc1 L_epoch
    """)
    endpgm()

    a.label("L_gemv1"); a.forget()
    cf = 123
    def oload(): a(f"buffer_load_dwordx4 {R(0)}, v122, {S(sWS)}, s{sP1} offen sc1")
    a(f"s_mov_b32 s{sCnt}, 0")
    a.label("L_stchk")
    a(f"""
    v_cmp_ne_u32 vcc, s{sTag}, v85
    v_cmp_ne_u32 {S(sM,2)}, s{sTag}, v87
    s_or_b64 vcc, vcc, {S(sM,2)}
    s_cbranch_vccz L_stok
    s_add_u32 s{sCnt}, s{sCnt}, 1
    s_cmp_gt_u32 s{sCnt}, {LIM}
    s_cbranch_scc1 L_stok
    buffer_load_dwordx4 {R(84)}, v89, {S(sWS)}, s{sT3} offen sc1
    s_waitcnt vmcnt(0)
    s_branch L_stchk
    """)
    a.label("L_stok"); a.forget()
    M = vA
    a(f"v_mov_b32 v{M}, v84")
    for d in Q8: a(f"v_max_f32_dpp v{M}, v{M}, v{M} {d} {DPPF}")
    a(f"""
    v_sub_f32 v{cf}, v84, v{M}
    v_mul_f32 v{cf}, s{sC}, v{cf}
    v_exp_f32 v{cf}, v{cf}
    v_mul_f32 v{M}, v{cf}, v86
    """)
    for d in Q8: a(f"v_add_f32_dpp v{M}, v{M}, v{M} {d} {DPPF}")
    a(f"""
    v_rcp_f32 v{M}, v{M}
    v_mul_f32 v{cf}, v{cf}, v{M}
    s_mov_b32 s{sCnt}, 0
    s_cmp_eq_u32 s{sFF}, 0
    s_waitcnt lgkmcnt(0)
    s_barrier
    """)
    if xs: endpgm()
    oload()
    a(f"""
    ds_read_b64 {R(90,2)}, v80 offset:{L_GG}
    s_cbranch_scc1 L_nof
    ds_read_b128 {R(92)}, v120 offset:{L_F}
    """)
    a.label("L_nof")
    a("s_waitcnt lgkmcnt(0)")
    for r in range(4): a(f"v_mul_f32 v{92+r}, v{92+r}, v91")
    a("s_waitcnt vmcnt(0)")
    a.label("L_ochk"); a.forget()
    tag_chk(0, 4, 5)
    a(f"""
    s_cbranch_vccz L_ook
    s_mov_b64 exec, vcc
    """)
    oload()
    a(f"""
    s_mov_b64 exec, -1
    s_add_u32 s{sCnt}, s{sCnt}, 1
    s_waitcnt vmcnt({pipe})
    s_cmp_gt_u32 s{sCnt}, {LIM * 4}
    s_cbranch_scc0 L_ochk
    """)
    a.label("L_ook"); a.forget()
    stamp(5)
    for r in range(4): a(f"v_mul_f32 v{24+r}, v{r}, v{cf}")
    for d in Q8:
        for r in range(4): a(f"v_add_f32_dpp v{24+r}, v{24+r}, v{24+r} {d} {DPPF}")
    for r in range(4): a(f"v_cvt_pk_bf16_f32 v{24+r}, v{24+r}, v{24+r}")
    for r in range(4): a(f"v_mov_b32_dpp v{28+r}, v{24+r} row_ror:8 {DPPF}")
    for t in range(8):
        ab = 8 + 4 * (t % 4)
        for r in range(4): a(f"v_and_b32 v{ab+r}, v{24+t}, v{vMask+r}")
        c = "0" if t == 0 else R(vO)
        a(f"v_mfma_f32_16x16x32_bf16 {R(vO)}, {R(ab)}, {R(32+4*t)}, {c}")
    a("s_mov_b32 exec_hi, 0")
    for r in range(4): a(f"v_fma_f32 v{vO+r}, v{vO+r}, v90, v{92+r}")
    tag_put(vO, vTag)
    a(f"buffer_store_dwordx4 {R(vO)}, v88, {S(sWS)}, s{sP2} offen sc1")
    stamp(6)
    endpgm()

    a.label("L_reduce"); a.forget()
    YL = 16 * YS
    def yload(i, base=None):
        per = 4096 // YL
        so_ = [sP1, sT1, sT2, sT3][i // per]
        a(f"buffer_load_dwordx4 {R(4*i if base is None else base+4*i)}, v84, {S(sWS)}, s{so_} offen offset:{YL*(i%per)} sc1")
    a(f"ds_read_b32 v91, v80 offset:{L_GG+4}")
    for i in range(8): yload(i)
    a(f"""
    s_mov_b32 s{sCnt}, 0
    s_mov_b32 s{sE}, 0
    s_waitcnt lgkmcnt(0)
    v_lshlrev_b32 v92, 16, v88
    v_and_b32 v93, s{sHI}, v88
    v_lshlrev_b32 v94, 16, v89
    v_and_b32 v95, s{sHI}, v89
    """)
    for r in range(4): a(f"v_mul_f32 v{92+r}, v{92+r}, v91")
    for r in range(4): a(f"v_mov_b32 v{36+r}, 0")
    a("s_waitcnt vmcnt(0)")
    a.label("L_ypoll"); a.forget()
    for i in range(8):
        a(f"s_bitcmp1_b32 s{sE}, {i}")
        a(f"s_cbranch_scc1 L_ys{i}")
        tag_chk(4*i, 32, 33)
        a(f"s_cbranch_vccz L_yd{i}")
        a("s_mov_b64 exec, vcc")
        yload(i)
        a("s_mov_b64 exec, -1")
        a(f"s_branch L_ys{i}")
        a.label(f"L_yd{i}")
        for r in range(4): a(f"v_add_f32 v{36+r}, v{36+r}, v{4*i+r}")
        a(f"s_bitset1_b32 s{sE}, {i}")
        a.label(f"L_ys{i}")
    a(f"""
    s_cmpk_eq_u32 s{sE}, 0xff
    s_cbranch_scc1 L_ypoll_ok
    s_add_u32 s{sCnt}, s{sCnt}, 1
    s_waitcnt vmcnt({pipe})
    s_cmp_gt_u32 s{sCnt}, {LIM * 4}
    s_cbranch_scc0 L_ypoll
    """)
    a.label("L_ypoll_ok"); a.forget()
    stamp(7)
    a("s_nop 0")
    allred4(36, 0, ROW16)
    for r in range(4): a(f"v_add_f32 v{36+r}, v{36+r}, v{92+r}")
    a(f"""
    v_cvt_pk_bf16_f32 v36, v36, v37
    v_cvt_pk_bf16_f32 v37, v38, v39
    s_mov_b64 exec, {S(sM,2)}
    global_store_dwordx2 v90, {R(36,2)}, s[38:39]
    """)
    stamp(8)
    endpgm()
    a.label("L_epoch"); a.forget()
    a(f"""
    s_mov_b32 s{sCnt}, 0
    v_lshlrev_b32 v84, 4, v{vL}
    s_movk_i32 s{sT3}, {ST_OFF}
    """)
    a.label("L_fchk")
    for i in range(4):
        a(f"buffer_load_dwordx4 {R(32+4*i)}, v84, {S(sWS)}, s{sT3} offen offset:{1024*i} sc1")
    a("s_waitcnt vmcnt(0)")
    for i in range(4): a(f"v_xor_b32 v{33+4*i}, s{sTag}, v{33+4*i}")
    a(f"""
    v_or3_b32 v33, v33, v37, v41
    v_or_b32 v33, v33, v45
    v_cmp_ne_u32 vcc, 0, v33
    s_cbranch_vccz L_fok
    s_add_u32 s{sCnt}, s{sCnt}, 1
    s_cmp_gt_u32 s{sCnt}, {LIM}
    s_cbranch_scc0 L_fchk
    """)
    a.label("L_fok"); a.forget()
    a(f"""
    s_mov_b64 exec, 1
    buffer_store_dword v{vTag}, off, {S(sWS)}, 0 offset:{EP_OFF} sc1
    """)
    endpgm()

    a.label("L_stat"); a.forget()
    mi, li, M, L = vO + 4, vO + 5, vO, vO + 2
    a(f"""
    v_sub_f32 v{mi}, v{mi}, v{M}
    v_mul_f32 v{mi}, s{sC}, v{mi}
    v_exp_f32 v{mi}, v{mi}
    v_mul_f32 v{L}, v{li}, v{mi}
    """)
    for k in (8, 4, 2, 1): a(f"v_add_f32_dpp v{L}, v{L}, v{L} row_ror:{k} {DPPF}")
    a(f"""
    v_mov_b32 v{M+1}, s{sTag}
    v_mov_b32 v{L+1}, s{sTag}
    s_lshl_b32 s{sT0}, s{sBH}, 3
    s_add_u32 s{sT0}, s{sT0}, s{sS}
    s_lshl_b32 s{sT0}, s{sT0}, 4
    s_add_u32 s{sT0}, s{sT0}, {ST_OFF}
    s_mov_b64 exec, 1
    buffer_store_dwordx4 {R(M)}, off, {S(sWS)}, s{sT0} sc1
    s_mov_b64 exec, -1
    s_branch L_nostat
    """)
    a.label("L_mid1"); a.forget()
    a(f"""
    v_and_b32 v{vT}, 7, v{vL}
    v_lshlrev_b32 v89, 4, v{vT}
    s_lshl_b32 s{sT3}, s{sBH}, 7
    s_add_u32 s{sT3}, s{sT3}, {ST_OFF}
    v_lshlrev_b32 v122, 7, v{vT}
    v_lshl_add_u32 v122, v{g}, 5, v122
    v_bfe_u32 v{vT}, v{vL}, 3, 1
    v_lshl_add_u32 v122, v{vT}, 4, v122
    s_lshl_b32 s{sP1}, s{sBH}, 3
    s_add_u32 s{sP1}, s{sP1}, s{sS}
    s_lshl_b32 s{sP1}, s{sP1}, 10
    s_add_u32 s{sP1}, s{sP1}, {OB_OFF}
    buffer_load_dwordx4 {R(84)}, v89, {S(sWS)}, s{sT3} offen sc1
    s_and_b32 s{sT0}, s{sW}, 3
    s_cmp_lg_u32 s{sT0}, 0
    s_cbranch_scc1 L_mid1b
    buffer_load_dwordx4 {R(vS)}, v122, {S(sWS)}, s{sP1} offen sc1
    """)
    a.label("L_mid1b")
    a(f"""
    s_lshl_b32 s{sT1}, s{sT0}, 10
    v_lshlrev_b32 v120, 4, v{vL}
    v_add_u32 v120, s{sT1}, v120
    v_lshrrev_b32 v88, 1, v{n}
    v_mul_u32_u24 v88, {YST}, v88
    v_and_b32 v{vT}, 1, v{n}
    v_lshl_add_u32 v88, v{vT}, 5, v88
    v_and_b32 v{vT}, 16, v{vL}
    v_add_u32 v88, v88, v{vT}
    s_mul_i32 s{sP2}, s{sB}, 28
    s_lshl_b32 s{sT1}, s{sT0}, 3
    s_add_u32 s{sP2}, s{sP2}, s{sT1}
    s_mul_i32 s{sP2}, s{sP2}, {YST}
    s_lshl_b32 s{sT1}, s{sH}, 3
    s_add_u32 s{sT1}, s{sT1}, s{sS}
    s_lshl_b32 s{sT1}, s{sT1}, {YSH}
    s_add_u32 s{sP2}, s{sP2}, s{sT1}
    s_add_u32 s{sP2}, s{sP2}, {YB_OFF}
    s_cmp_eq_u32 s{sT0}, 3
    s_cselect_b32 s{sT0}, 8, 0
    v_and_b32 v{vT}, s{sT0}, v{vL}
    v_lshl_or_b32 v88, v{vT}, 27, v88
    v_mov_b32 v92, 0
    v_mov_b32 v93, 0
    v_mov_b32 v94, 0
    v_mov_b32 v95, 0
    s_branch L_pv2
    """)
    a.label("L_mid2"); a.forget()
    a(f"""
    v_lshlrev_b32 v{vT}, 5, v{g}
    ds_read_b128 {R(84)}, v{vT} offset:{L_R2}
    ds_read_b128 {R(88)}, v{vT} offset:{L_R2+16}
    s_waitcnt lgkmcnt(0)
    """)
    for t in range(8): a(f"v_cvt_pk_bf16_f32 v{84+t}, v{84+t}, v{84+t}")
    for t in range(8):
        ab = vA + 4 * (t & 1)
        for r in range(4): a(f"v_and_b32 v{ab+r}, v{84+t}, v{vMask+r}")
        c = "0" if t == 0 else R(92)
        a(f"v_mfma_f32_16x16x32_bf16 {R(92)}, {R(ab)}, {R(32+4*t)}, {c}")
    a(f"""
    s_and_b32 s{sT0}, s{sW}, 3
    s_lshl_b32 s{sT1}, s{sT0}, 10
    v_lshlrev_b32 v{vT}, 4, v{vL}
    v_add_u32 v{vT}, s{sT1}, v{vT}
    ds_write_b128 v{vT}, {R(92)} offset:{L_F}
    s_branch L_pv2
    """)
    a.label("L_mid3"); a.forget()
    if red == 2: a(f"""
    s_cmp_gt_u32 s{sH}, 3
    s_cbranch_scc1 L_pv2
    s_lshl_b32 s{sRed}, s{sH}, 3
    s_add_u32 s{sRed}, s{sRed}, s{sS}
    """)
    if red == 1: a(f"""
    s_cmp_gt_u32 s{sS}, 1
    s_cbranch_scc1 L_pv2
    s_lshl_b32 s{sRed}, s{sH}, 1
    s_add_u32 s{sRed}, s{sRed}, s{sS}
    """)
    if red == 3: a(f"""
    s_bitcmp0_b32 s{sS}, 0
    s_cbranch_scc1 L_pv2
    s_cmp_gt_u32 s{sH}, 7
    s_cbranch_scc1 L_pv2
    s_lshl_b32 s{sRed}, s{sH}, 2
    s_lshr_b32 s{sT0}, s{sS}, 1
    s_add_u32 s{sRed}, s{sRed}, s{sT0}
    """)
    a(f"""
    s_cmp_lt_u32 s{sRed}, 28
    s_cbranch_scc1 L_mid3b
    s_add_u32 s{sRed}, s{sRed}, s{sB}
    s_branch L_pv2
    """)
    a.label("L_mid3b")
    a(f"""
    v_lshlrev_b32 v84, {YSH}, v{n}
    v_lshl_add_u32 v84, v{g}, 4, v84
    s_mov_b32 s{sM}, 0x00010001
    s_mov_b32 s{sM+1}, 0x00010001
    v_lshlrev_b32 v{vT}, 3, v{g}
    s_lshl_b32 s{sT0}, s{sRed}, 5
    v_add_u32 v{vT}, s{sT0}, v{vT}
    s_mul_i32 s{sT0}, s{sB}, 896
    v_add_u32 v90, s{sT0}, v{vT}
    s_mul_i32 s{sP1}, s{sB}, 28
    s_add_u32 s{sP1}, s{sP1}, s{sRed}
    s_mul_i32 s{sP1}, s{sP1}, {YST}
    s_add_u32 s{sP1}, s{sP1}, {YB_OFF}
    s_add_u32 s{sT1}, s{sP1}, 4096
    s_add_u32 s{sT2}, s{sP1}, 8192
    s_add_u32 s{sT3}, s{sP1}, 12288
    global_load_dwordx2 {R(88,2)}, v{vT}, s[34:35]
    """)
    for i in range(8): yload(i, 32)
    a("s_branch L_pv2")
    a.label("L_gate"); a.forget()
    xa, ga = 32, 36
    a("v_mov_b32 v44, 0")
    for r in range(4):
        a(f"""
        v_lshlrev_b32 v40, 16, v{xa+r}
        v_and_b32 v41, s{sHI}, v{xa+r}
        v_lshlrev_b32 v42, 16, v{ga+r}
        v_and_b32 v43, s{sHI}, v{ga+r}
        v_mul_f32 v40, v40, v42
        v_mul_f32 v41, v41, v43
        v_cvt_pk_bf16_f32 v40, v40, v41
        v_lshlrev_b32 v41, 16, v40
        v_and_b32 v40, s{sHI}, v40
        v_add_f32 v44, v44, v41
        v_add_f32 v44, v44, v40
        """)
    for k in (8, 4, 2, 1): a(f"v_add_f32_dpp v44, v44, v44 row_ror:{k} {DPPF}")
    a(f"""
    v_mov_b32 v45, v44
    v_permlane16_swap_b32 v44, v45
    v_add_f32 v44, v44, v45
    v_mov_b32 v45, v44
    v_permlane32_swap_b32 v44, v45
    v_add_f32 v44, v44, v45
    v_cvt_pk_bf16_f32 v44, v44, v44
    v_and_b32 v44, s{sHI}, v44
    v_mul_f32 v44, {f32(-1.4426950408889634)}, v44
    v_exp_f32 v44, v44
    v_add_f32 v44, 1.0, v44
    v_rcp_f32 v44, v44
    v_cvt_pk_bf16_f32 v44, v44, v44
    v_and_b32 v44, s{sHI}, v44
    v_sub_f32 v45, 1.0, v44
    v_cvt_pk_bf16_f32 v45, v45, v45
    v_and_b32 v45, s{sHI}, v45
    ds_write_b64 v80, {R(44,2)} offset:{L_GG}
    s_branch L_pv2
    """)
    a.label("L_ldgate"); a.forget()
    for r in range(8): a(f"v_mov_b32 v{32+r}, 0")
    a(f"""
    v_lshlrev_b32 v{vA+1}, 4, v{vL}
    s_mul_i32 s{sT0}, s{sB}, 896
    v_add_u32 v{vA}, s{sT0}, v{vA+1}
    s_mov_b32 exec_hi, 0x00ffffff
    global_load_dwordx4 {R(32)}, v{vA}, s[16:17]
    global_load_dwordx4 {R(36)}, v{vA+1}, s[36:37]
    s_mov_b64 exec, -1
    s_branch L_sm
    """)

    n, g = 120, 121
    a.label("L_stage1"); a.forget()
    SO = [None, 60, 61, 62, 64, 65, 66, 67, 69, 70, 71, 76, 77, 78]
    sStr = sP1
    a(f"""
    s_movk_i32 s{sStr}, 3584
    s_mov_b32 s{sP0}, {SH_OFF}
    s_cmp_eq_u32 s{sW}, 0
    s_cselect_b32 s{sStr}, 8192, s{sStr}
    s_cselect_b32 s{sP2}, 9, 8
    s_cselect_b32 s{sP0}, {SQ_OFF}, s{sP0}
    s_mul_i32 s{sCnt}, s{sStr}, 448
    s_lshr_b32 s{sT1}, s{sJJ}, 1
    s_mul_i32 s{sT2}, s{sT1}, 56
    s_mul_i32 s{sT2}, s{sT2}, s{sStr}
    s_lshl_b32 s{sT3}, s{sH}, s{sP2}
    s_add_u32 s{sT2}, s{sT2}, s{sT3}
    s_and_b32 s{sT3}, s{sJJ}, 1
    s_lshl_b32 s{sT0}, s{sT3}, 8
    s_add_u32 s{sT2}, s{sT2}, s{sT0}
    s_sub_u32 s{sWA+2}, s{sCnt}, s{sT2}
    s_mul_i32 s{sT0}, s{sStr}, 14
    v_mul_u32_u24 v{vT}, s{sT0}, v{g}
    v_lshl_add_u32 v{vT}, v{n}, 4, v{vT}
    s_mov_b32 s{SO[1]}, s{sStr}
    """)
    for t in range(2, 14): a(f"s_add_u32 s{SO[t]}, s{SO[t-1]}, s{sStr}")
    a(f"""
    v_lshrrev_b32 v{vS}, 3, v{n}
    v_mul_u32_u24 v{vS}, 896, v{vS}
    v_mad_u32_u24 v{vS}, v{g}, 28, v{vS}
    s_mul_i32 s{sT0}, s{sT1}, 112
    v_add_u32 v{vS}, s{sT0}, v{vS}
    s_cmp_eq_u32 s{sW}, 0
    s_waitcnt lgkmcnt(0)
    s_cselect_b32 s{sWA}, s22, s28
    s_cselect_b32 s{sWA+1}, s23, s29
    s_add_u32 s{sWA}, s{sWA}, s{sT2}
    s_addc_u32 s{sWA+1}, s{sWA+1}, 0
    """)
    for t in range(14):
        a(f"buffer_load_dwordx4 {R(4*t)}, v{vT}, {S(sWA)}, {('s%d' % SO[t]) if t else '0'} offen{WQP}")
    a(f"""
    global_load_dwordx4 {R(56)}, v{vS}, s[16:17]
    global_load_dwordx3 {R(60,3)}, v{vS}, s[16:17] offset:16
    s_add_u32 s{sK}, s18, s{sKV}
    s_addc_u32 s{sK+1}, s19, 0
    """)
    setup2()
    a(f"""
    v_lshrrev_b32 v{vT}, 1, v{g}
    v_lshlrev_b32 v{vT}, 13, v{vT}
    v_lshl_add_u32 v{vT}, v{n}, 5, v{vT}
    v_and_b32 v{vS}, 16, v{vL}
    v_add_u32 v{vT}, v{vT}, v{vS}
    s_lshl_b32 s{sT0}, s{sH}, 14
    s_add_u32 s{sP0}, s{sP0}, s{sT0}
    s_lshl_b32 s{sT0}, s{sB}, 13
    s_add_u32 s{sP1}, s{sP0}, s{sT0}
    s_lshl_b32 s{sT2}, s{sT1}, 10
    s_add_u32 s{sP0}, s{sP0}, s{sT2}
    s_lshl_b32 s{sT2}, s{sT3}, 9
    s_add_u32 s{sP0}, s{sP0}, s{sT2}
    s_mov_b32 s{sT2}, 0x01000100
    s_mov_b32 s{sT3}, 0x03020302
    v_mov_b32 v{vQ}, s{sTag}
    v_lshlrev_b32 v{vQ+1}, 4, v{vL}
    s_add_u32 s{sP2}, s{sP1}, 4096
    s_waitcnt vmcnt(0)
    """)
    stamp(5)
    for t in range(14):
        ab = 112 if t & 1 else vA
        a(f"v_perm_b32 v{vS+4}, v{56+t//2}, v{56+t//2}, s{sT3 if t & 1 else sT2}")
        for r in range(4): a(f"v_and_b32 v{ab+r}, v{vS+4}, v{vMask+r}")
        c = "0" if t == 0 else R(vS)
        a(f"v_mfma_f32_16x16x32_bf16 {R(vS)}, {R(ab)}, {R(4*t)}, {c}")
    a(f"s_cmp_eq_u32 s{sW}, 1")
    tag_put(vS, vQ)
    a(f"buffer_store_dwordx4 {R(vS)}, v{vT}, {S(sWS)}, s{sP0} offen sc1")
    stamp(6)
    a("s_cbranch_scc1 L_hgather")
    def qload(i): a(f"buffer_load_dwordx4 {R(64+4*i)}, v{vQ+1}, {S(sWS)}, s{sP1 if i < 4 else sP2} offen offset:{1024*(i%4)} sc1")
    for f in range(KS): kload(f)
    for i in range(8): qload(i)
    poll_many("L_qp", [(64+4*i, (lambda i=i: qload(i))) for i in range(8)], vQ + 4, vQ + 5)
    for f in range(KS, 16): kload(f)
    for i in range(1, 8):
        for r in range(4): a(f"v_add_f32 v{64+r}, v{64+r}, v{64+4*i+r}")
    a(f"""
    v_cvt_pk_bf16_f32 v{vQ}, v64, v65
    v_cvt_pk_bf16_f32 v{vQ+1}, v66, v67
    v_lshlrev_b32 v{vT}, 3, v{vL}
    ds_write_b64 v{vT}, {R(vQ,2)} offset:{L_Q}
    """)
    stamp(10)
    a("s_branch L_kdone")
    a.label("L_hgather"); a.forget()
    for f in range(16): kload(f)
    h = vS
    a(f"""
    v_and_b32 v{vA}, 7, v{vL}
    v_lshrrev_b32 v{vQ}, 3, v{vL}
    v_lshlrev_b32 v{vQ}, 10, v{vQ}
    v_lshl_add_u32 v{vQ}, v{vA}, 4, v{vQ}
    s_lshl_b32 s{sT0}, s{sS}, 6
    s_add_u32 s{sP1}, s{sP1}, s{sT0}
    s_lshl_b32 s{sT1}, s{sH}, 8
    s_lshl_b32 s{sT0}, s{sS}, 5
    s_add_u32 s{sT1}, s{sT1}, s{sT0}
    v_lshlrev_b32 v{vT}, 3, v{vA}
    v_add_u32 v{vT}, s{sT1}, v{vT}
    global_load_dwordx2 {R(118,2)}, v{vT}, s[30:31]
    """)
    def hload(): a(f"buffer_load_dwordx4 {R(h)}, v{vQ}, {S(sWS)}, s{sP1} offen sc1")
    hload()
    poll_many("L_hp", [(h, hload)], vQ + 4, vQ + 5)
    allred4(h, h + 4, ['ror:8', 'p16', 'p32'])
    rnd2(h, h + 1, vQ + 4); rnd2(h + 2, h + 3, vQ + 5)
    a(f"""
    v_lshlrev_b32 v{h+4}, 16, v118
    v_and_b32 v{h+5}, s{sHI}, v118
    v_lshlrev_b32 v{h+6}, 16, v119
    v_and_b32 v{h+7}, s{sHI}, v119
    """)
    for r in range(4): a(f"v_add_f32 v{h+r}, v{h+r}, v{h+4+r}")
    rnd2(h, h + 1, vQ + 4); rnd2(h + 2, h + 3, vQ + 5)
    for r in range(4): a(f"v_max_f32 v{h+r}, 0, v{h+r}")
    for r in range(4): a(f"v_mul_f32 v{h+r}, v{h+r}, v{h+r}")
    a(f"""
    v_lshlrev_b32 v{vT}, 4, v{vA}
    ds_write_b128 v{vT}, {R(h)} offset:{L_R2}
    s_nop 1
    s_branch L_kdone
    """)
    if stamps:
        a.label("L_stampout"); a.forget()
        if amp >= 0:
            if amp == 99: a("s_movk_i32 s11, 10000")
            else:
                a("s_cmp_eq_u32 s%d, 0" % STR[amp])
                a("s_cbranch_scc1 L_end")
                a("s_sub_u32 s11, s%d, s15" % STR[amp])
                a("s_min_u32 s11, s11, 20000")
                a("s_lshl_b32 s11, s11, 3")
            a.label("L_amp")
            a("s_sleep 8")
            a("s_memrealtime s[%d:%d]" % (sTS, sTS + 1))
            a("s_waitcnt lgkmcnt(0)")
            a("s_sub_u32 s12, s%d, s15" % sTS)
            a("s_cmp_lt_u32 s12, s11")
            a("s_cbranch_scc1 L_amp")
        else:
            a("s_mov_b64 exec, -1")
            a("s_waitcnt vmcnt(0)")
            for i, r in enumerate(STR): a("v_writelane_b32 v0, s%d, %d" % (r, i))
            a(f"v_lshlrev_b32 v1, 2, v{vL}")
            a("s_mov_b64 exec, 0xfff")
            a("buffer_store_dword v0, v1, %s, s%d offen" % (S(sWS), sTSo))
    a.label("L_end")
    a("s_endpgm")
    a.raw('.section .rodata,"a"')
    a.raw(".p2align 6")
    a.raw(".amdhsa_kernel %s_kernel" % NAME)
    a.raw("  .amdhsa_next_free_vgpr 128")
    a.raw("  .amdhsa_next_free_sgpr 102")
    a.raw("  .amdhsa_accum_offset 128")
    a.raw("  .amdhsa_group_segment_fixed_size 0")
    a.raw("  .amdhsa_kernarg_size 112")
    a.raw("  .amdhsa_user_sgpr_count 2")
    a.raw("  .amdhsa_user_sgpr_kernarg_segment_ptr 1")
    a.raw("  .amdhsa_system_sgpr_workgroup_id_x 1")
    a.raw("  .amdhsa_float_denorm_mode_32 3")
    a.raw(".end_amdhsa_kernel")
    return a.text()

if __name__ == "__main__":
    import argparse, inspect
    ap = argparse.ArgumentParser()
    ap.add_argument("-o", default="cdna_kernels/%s.s" % NAME)
    sig = inspect.signature(gen)
    for k, p in sig.parameters.items():
        if isinstance(p.default, bool): ap.add_argument("--" + k, action="store_true")
        elif isinstance(p.default, int): ap.add_argument("--" + k, type=int, default=p.default)
        else: ap.add_argument("--" + k, default=p.default)
    x = vars(ap.parse_args()); o = x.pop("o")
    x = {k: ("" if v == "none" else v) for k, v in x.items()}
    open(o, "w").write(gen(**x))
```

```python
import sys, struct
from asmlib import Asm

NAME = "gated_mix__mha_block_cached__dense_activation_squared_relu__decode"
def f32(x): return "0x%08x" % struct.unpack('<I', struct.pack('<f', x))[0]

def gen(kv="nt", wq="nt", w2="nt", stamps=False, NPRE=2, NMID=2, swz=1, amp=-1, xs=0, wmap=4, pipe=0, fpar=0, red=2, ypad=0, yskew=256, KS=16, early=0, pf=0, cpf=0):
    stamps = stamps or amp >= 0
    a = Asm()
    KV = (" " + kv) if kv else ""
    WQP = (" " + wq) if wq else ""
    WP = (" " + w2) if w2 else ""
    YS = 128 if ypad else 64
    YSH = 7 if ypad else 6
    YST = 128 * YS + yskew
    EP_OFF = 0; ST_OFF = 4096; OB_OFF = 8192; SQ_OFF = OB_OFF + 262144; SH_OFF = SQ_OFF + 262144
    YB_OFF = SH_OFF + 262144; TS_OFF = 1835008; WS_USED = 2097152
    assert YB_OFF + 56 * YST <= TS_OFF
    L_Q = 0; L_ML = 512; L_R2 = 640; L_GG = 768; L_F = 1024; L_OW = 5120; OWS = 1024; LDS = L_OW + 16 * OWS
    sCk0, sCk1, sH, sB, sS, sJJ, sBH, sW = 3, 4, 5, 6, 7, 8, 9, 10
    sT0, sT1, sT2, sT3 = 11, 12, 13, 14
    sK, sV, sWS, sWA, sWB = 44, 48, 52, 56, 64
    sSel = [40, 41, 60, 61]; sE = 62; sFF = 63
    sKV = 68
    sKT = 72; sVG = 76; sC = 78; sHI = 79; sM = 80
    sP0, sP1, sP2 = 82, 83, 84
    sRole = 85; sRed = 86; sCnt = 87
    sTS = 88; sTSo = 90; s3584 = 91; sTag = 92
    vMask = 96; vS = 100; vQ = 108; vO = 108; vA = 116; vKo = 124; vVo = 125; vL = 126; vT = 127
    LIM = 1 << 23
    def R(b, n=4): return "v[%d:%d]" % (b, b + n - 1)
    def S(b, n=4): return "s[%d:%d]" % (b, b + n - 1)
    STR = [26, 27, 93, 94, 95, 96, 97, 98, 99, 100, 101, 15]
    def stamp(idx):
        if not stamps: return
        a("s_memrealtime s[%d:%d]" % (sTS, sTS + 1))
        a("s_waitcnt lgkmcnt(0)")
        a("s_mov_b32 s%d, s%d" % (STR[idx], sTS))
    def endpgm():
        if stamps: a("s_branch L_stampout")
        else: a("s_endpgm")
    DPPF = "row_mask:0xf bank_mask:0xf"
    ROW16 = ['ror:8', 'ror:4', 'ror:2', 'ror:1']
    Q8 = ("quad_perm:[1,0,3,2]", "quad_perm:[2,3,0,1]", "row_half_mirror")
    def kload(f):
        u, i = f >> 2, f & 3
        a(f"buffer_load_dwordx4 {R(4*f)}, v{vKo}, {S(sK)}, s{sKT+u} offen offset:{128*i}{KV}")
    def vload(idx):
        G, t, hf = idx >> 3, (idx >> 1) & 3, idx & 1
        base = 64 if G == 0 else 0
        a(f"buffer_load_dwordx4 {R(base+4*(2*t+hf))}, v{vVo}, {S(sV)}, s{sVG+G} offen offset:{512*t+256*hf}{KV}")
    def allred4(base, tmp, steps, op="add"):
        for st in steps:
            if st.startswith('ror'):
                for r in range(4): a(f"v_{op}_f32_dpp v{base+r}, v{base+r}, v{base+r} row_{st} {DPPF}")
            else:
                sw = "v_permlane16_swap_b32" if st == 'p16' else "v_permlane32_swap_b32"
                for r in range(4): a(f"v_mov_b32 v{tmp+r}, v{base+r}")
                for r in range(4): a(f"{sw} v{base+r}, v{tmp+r}")
                for r in range(4): a(f"v_{op}_f32 v{base+r}, v{base+r}, v{tmp+r}")
    def rnd2(x, y, tmp):
        a(f"v_cvt_pk_bf16_f32 v{tmp}, v{x}, v{y}")
        a(f"v_lshlrev_b32 v{x}, 16, v{tmp}")
        a(f"v_and_b32 v{y}, s{sHI}, v{tmp}")
    def tag_put(base, vtag):
        for r in range(4): a(f"v_perm_b32 v{base+r}, v{base+r}, v{vtag}, s{sSel[r]}")
    def tag_chk(base, t0, t1):
        a(f"v_perm_b32 v{t0}, v{base+1}, v{base}, s{sCk0}")
        a(f"v_perm_b32 v{t1}, v{base+3}, v{base+2}, s{sCk1}")
        a(f"v_or_b32 v{t0}, v{t0}, v{t1}")
        a(f"v_cmp_ne_u32 vcc, s{sTag}, v{t0}")
    def poll_many(lbl, loads, t0, t1):
        a(f"s_mov_b32 s{sCnt}, 0")
        a.label(lbl); a.forget()
        a("s_waitcnt vmcnt(0)")
        a(f"s_mov_b32 s{sE}, 0")
        for i, (base, fn) in enumerate(loads):
            tag_chk(base, t0, t1)
            a(f"s_cbranch_vccz {lbl}_s{i}")
            a("s_mov_b64 exec, vcc")
            fn()
            a("s_mov_b64 exec, -1")
            a(f"s_mov_b32 s{sE}, 1")
            a.label(f"{lbl}_s{i}")
        a(f"""
        s_cmp_eq_u32 s{sE}, 0
        s_cbranch_scc1 {lbl}_ok
        s_add_u32 s{sCnt}, s{sCnt}, 1
        s_cmp_gt_u32 s{sCnt}, {LIM}
        s_cbranch_scc0 {lbl}
        s_waitcnt vmcnt(0)
        """)
        a.label(lbl + "_ok"); a.forget()
    def setup2():
        a(f"""
        s_add_u32 s{sV}, s20, s{sKV}
        s_addc_u32 s{sV+1}, s21, 0
        s_mov_b32 s{sWS}, s42
        s_mov_b32 s{sWS+1}, s43
        s_load_dword s{sTag}, s[42:43], {EP_OFF}
        """)
        if stamps:
            for r in STR[:11]: a("s_mov_b32 s%d, 0" % r)
        tmp = vS
        a(f"""
        v_and_b32 v{tmp}, 1, v{vL}
        v_lshlrev_b32 v{tmp}, 4, v{tmp}
        v_mov_b32 v{tmp+1}, 0xffff
        v_lshlrev_b32 v{tmp+1}, v{tmp}, v{tmp+1}
        v_bfe_u32 v{tmp+2}, v{vL}, 1, 2
        """)
        for r in range(4):
            a(f"v_cmp_eq_u32 vcc, {r}, v{tmp+2}")
            a(f"s_mov_b32 s{sSel[r]}, {0x07060500 + r}")
            a(f"v_cndmask_b32 v{vMask+r}, 0, v{tmp+1}, vcc")
        a(f"""
        s_waitcnt lgkmcnt(0)
        s_and_b32 s{sCk0}, s{sTag}, 0x7f7f7f7f
        s_add_u32 s{sCk0}, s{sCk0}, 0x01010101
        s_and_b32 s{sTag}, s{sTag}, 0x80808080
        s_xor_b32 s{sTag}, s{sTag}, s{sCk0}
        s_mov_b32 s{sCk0}, 0x0c0c0400
        s_mov_b32 s{sCk1}, 0x04000c0c
        """)

    a.raw("; @launch grid=(256,1,1) block=(1024,1,1) lds=%d" % LDS)
    a.raw('.amdgcn_target "amdgcn-amd-amdhsa--gfx950"')
    a.raw(".text")
    a.raw(".globl %s_kernel" % NAME)
    a.raw(".p2align 8")
    a.raw(".type %s_kernel,@function" % NAME)
    a.raw("%s_kernel:" % NAME)
    a("s_cmp_ge_u32 s2, 256")
    a("s_cbranch_scc1 L_end")
    stamp(11)
    a("s_load_dwordx16 s[16:31], s[0:1], 0")
    a("s_load_dwordx8 s[32:39], s[0:1], 64")
    a("s_load_dwordx2 s[42:43], s[0:1], 104")
    n, g = 120, 121
    sX, sJ = sCk0, sCk1
    a(f"""
    v_lshrrev_b32 v{vT}, 6, v0
    v_and_b32 v{vL}, 63, v0
    s_and_b32 s{sX}, s2, 7
    v_readfirstlane_b32 s{sW}, v{vT}
    s_lshr_b32 s{sJ}, s2, 3
    """)
    if wmap == 1: a(f"""
    s_lshr_b32 s{sT0}, s{sJ}, 4
    s_lshl_b32 s{sH}, s{sX}, 1
    s_add_u32 s{sH}, s{sH}, s{sT0}
    s_lshr_b32 s{sB}, s{sJ}, 3
    s_and_b32 s{sB}, s{sB}, 1
    s_and_b32 s{sS}, s{sJ}, 7
    """)
    elif wmap == 0: a(f"""
    s_and_b32 s{sH}, s{sJ}, 15
    s_lshr_b32 s{sB}, s{sJ}, 4
    s_xor_b32 s{sS}, s{sX}, {fpar}
    """)
    elif wmap == 4: a(f"""
    s_and_b32 s{sT0}, s{sJ}, 3
    s_lshr_b32 s{sH}, s{sX}, 1
    s_lshl_b32 s{sH}, s{sH}, 2
    s_add_u32 s{sH}, s{sH}, s{sT0}
    s_lshr_b32 s{sB}, s{sJ}, 4
    s_lshr_b32 s{sS}, s{sJ}, 1
    s_and_b32 s{sS}, s{sS}, 6
    s_and_b32 s{sT0}, s{sX}, 1
    s_xor_b32 s{sT0}, s{sT0}, {fpar}
    s_or_b32 s{sS}, s{sS}, s{sT0}
    """)
    a(f"""
    s_lshl_b32 s{sJJ}, s{sB}, 3
    s_add_u32 s{sJJ}, s{sJJ}, s{sS}
    s_lshl_b32 s{sBH}, s{sB}, 4
    s_add_u32 s{sBH}, s{sBH}, s{sH}
    s_and_b32 s{sT0}, s{sS}, 1
    s_lshl_b32 s{sT0}, s{sT0}, 4
    s_or_b32 s{sT0}, s{sT0}, s{sH}
    s_cmp_lt_u32 s{sT0}, 14
    s_cselect_b32 s{sFF}, 1, 0
    v_and_b32 v{n}, 15, v{vL}
    v_lshrrev_b32 v{g}, 4, v{vL}
    v_and_b32 v{vT}, 7, v{vL}
    v_lshlrev_b32 v{vKo}, 9, v{vT}
    v_lshl_add_u32 v{vKo}, v{g}, 4, v{vKo}
    v_and_b32 v{vT}, 8, v{vL}
    v_lshl_add_u32 v{vKo}, v{vT}, 3, v{vKo}
    s_lshl_b32 s{sT2}, s{sW}, 14
    s_and_b32 s{sT3}, s{sW}, {3 if swz else 0}
    s_lshl_b32 s{sT1}, s{sT3}, 12
    s_or_b32 s{sKT}, s{sT2}, s{sT1}
    s_xor_b32 s{sKT+1}, s{sKT}, 4096
    s_xor_b32 s{sKT+2}, s{sKT}, 8192
    s_xor_b32 s{sKT+3}, s{sKT}, 12288
    s_lshl_b32 s{sKV}, s{sBH}, 21
    s_lshl_b32 s{sT1}, s{sS}, 18
    s_add_u32 s{sKV}, s{sKV}, s{sT1}
    s_mov_b32 s{sK+2}, 262144
    s_mov_b32 s{sK+3}, 0x00020000
    s_mov_b32 s{sV+2}, 262144
    s_mov_b32 s{sV+3}, 0x00020000
    s_mov_b32 s{sWS+2}, {WS_USED}
    s_mov_b32 s{sWS+3}, 0x00020000
    s_mov_b32 s{sWA+3}, 0x00020000
    s_mov_b32 s{sHI}, 0xffff0000
    s_cmp_le_u32 s{sW}, s{sFF}
    s_cbranch_scc1 L_stage1
    s_waitcnt lgkmcnt(0)
    s_add_u32 s{sK}, s18, s{sKV}
    s_addc_u32 s{sK+1}, s19, 0
    """)
    if early: a("s_memrealtime s[70:71]")
    if pf:
        a(f"""
        s_cmp_lg_u32 s{sW}, 3
        s_cbranch_scc1 L_nopf
        s_lshl_b32 s{sT0}, s{sH}, 3
        s_add_u32 s{sT0}, s{sT0}, s{sS}
        s_mul_i32 s{sT0}, s{sT0}, {16*896}
        s_mul_i32 s{sT1}, s{sT0}, s{sFF}
        s_lshl_b32 s{sT0}, s{sT0}, 1
        v_mov_b32 v64, s{sKV}
        v_mov_b32 v65, s{sT0}
        v_mov_b32 v66, s{sT1}
        v_mov_b32 v67, {OB_OFF}
        s_mov_b64 exec, 1
        global_load_dword v68, v64, s[20:21] nt
        global_load_dword v69, v65, s[24:25] nt
        global_load_dword v70, v66, s[32:33] nt
        global_load_dword v71, v67, s[42:43] nt
        s_mov_b64 exec, -1
        """)
        a.label("L_nopf")
    for f in range(16): kload(f)
    if cpf:
        a(f"""
        s_cmp_lg_u32 s{sW}, 2
        s_cbranch_scc1 L_nocpf
        s_cmp_ge_u32 s2, {8*cpf}
        s_cbranch_scc1 L_nocpf
        s_getpc_b64 s[70:71]
        v_lshlrev_b32 v64, 7, v{vL}
        s_mov_b32 exec_hi, 0xfff
        global_load_dword v65, v64, s[70:71]
        s_mov_b64 exec, -1
        """)
        a.label("L_nocpf")
    setup2()
    if early:
        a("s_mov_b32 s%d, s70" % STR[9])
        stamp(7)
        a("s_waitcnt vmcnt(15)")
        stamp(10)
    a.label("L_kdone"); a.forget()
    a(f"""
    v_lshlrev_b32 v{vVo}, 11, v{g}
    v_lshl_add_u32 v{vVo}, v{n}, 4, v{vVo}
    s_and_b32 s{sT1}, s{sKT}, 4096
    v_xor_b32 v{vVo}, s{sT1}, v{vVo}
    s_andn2_b32 s{sVG}, s{sKT}, 4096
    s_xor_b32 s{sVG+1}, s{sVG}, 8192
    """)
    for idx in range(NPRE): vload(idx)
    a(f"""
    s_mov_b32 s{sC}, {f32(1.4426950408889634/16)}
    s_movk_i32 s{s3584}, 3584
    s_lshr_b32 s{sRole}, s{sW}, 2
    s_lshl_b32 s{sT0}, s{sH}, 3
    s_add_u32 s{sT0}, s{sT0}, s{sS}
    s_mul_i32 s{sT0}, s{sT0}, {16*896}
    s_mul_i32 s{sT1}, s{sT0}, s{sFF}
    s_lshl_b32 s{sT0}, s{sT0}, 1
    s_cmp_eq_u32 s{sRole}, 1
    s_cselect_b32 s{sT0}, s{sT0}, s{sT1}
    s_cselect_b32 s{sT2}, s24, s32
    s_cselect_b32 s{sT3}, s25, s33
    s_add_u32 s{sWB}, s{sT2}, s{sT0}
    s_addc_u32 s{sWB+1}, s{sT3}, 0
    s_mov_b32 s{sWB+2}, 28672
    s_mov_b32 s{sWB+3}, 0x00020000
    s_lshl_b32 s{sT0}, s{sFF}, 1
    s_cmp_eq_u32 s{sRole}, 2
    s_cselect_b32 s{sRole}, s{sT0}, s{sRole}
    v_and_b32 v{vT}, 8, v{vL}
    v_lshlrev_b32 v{vT}, 3, v{vT}
    v_lshl_add_u32 v{vT}, v{g}, 4, v{vT}
    v_mul_u32_u24 v{vKo}, 7168, v{g}
    v_lshl_add_u32 v{vKo}, v{n}, 4, v{vKo}
    s_and_b32 s{sT0}, s{sW}, 3
    s_lshl_b32 s{sT1}, s{sT0}, 8
    v_add_u32 v{vKo}, s{sT1}, v{vKo}
    s_cmp_eq_u32 s{sT0}, 3
    s_cselect_b32 s{sT0}, 8, 0
    v_and_b32 v{vS}, s{sT0}, v{vL}
    v_lshl_or_b32 v{vKo}, v{vS}, 27, v{vKo}
    """)
    if stamps:
        a(f"""
        s_lshl_b32 s{sTSo}, s2, 4
        s_add_u32 s{sTSo}, s{sTSo}, s{sW}
        s_lshl_b32 s{sTSo}, s{sTSo}, 6
        s_add_u32 s{sTSo}, s{sTSo}, {TS_OFF}
        """)
    stamp(0)
    a("s_waitcnt lgkmcnt(0)")
    a("s_barrier")
    assert NPRE <= 4
    qb = [80, 84, 88, 92]
    for i in range(4): a(f"ds_read_b128 {R(qb[i])}, v{vT} offset:{L_Q+128*i}")
    a(f"s_sub_u32 s{sT0}, s{sRole}, 1")
    a(f"s_waitcnt vmcnt({NPRE})")
    stamp(1)
    acc = [vS, vS + 4, vQ, vQ + 4]
    for i in range(4):
        a(f"s_waitcnt lgkmcnt({3-i})")
        for u in range(4):
            c = "0" if i == 0 else R(acc[u])
            a(f"v_mfma_f32_16x16x32_bf16 {R(acc[u])}, {R(4*(4*u+i))}, {R(qb[i])}, {c}")
    a(f"""
    s_cmp_gt_u32 s{sT0}, 1
    s_cbranch_scc1 L_now
    """)
    for t in range(8):
        so_ = "0" if t < 4 else f"s{s3584}"
        a(f"buffer_load_dwordx4 {R(32+4*t)}, v{vKo}, {S(sWB)}, {so_} offen offset:{896*(t%4)}{WP}")
    a.label("L_now")
    NB2 = NPRE + NMID
    for idx in range(NPRE, NB2): vload(idx)
    a(f"""
    s_cmp_eq_u32 s{sW}, 3
    s_cbranch_scc1 L_ldgate
    """)
    a.label("L_sm")
    a("s_nop 1")
    for r in range(4): a(f"v_permlane32_swap_b32 v{acc[0]+r}, v{acc[1]+r}")
    for r in range(4): a(f"v_permlane32_swap_b32 v{acc[2]+r}, v{acc[3]+r}")
    for r in range(4): a(f"v_add_f32_dpp v{vS+r}, v{acc[1]+r}, v{acc[0]+r} row_ror:8 {DPPF}")
    for r in range(4): a(f"v_add_f32_dpp v{vS+4+r}, v{acc[3]+r}, v{acc[2]+r} row_ror:8 {DPPF}")
    for k in range(0, 8, 2): a(f"v_cvt_pk_bf16_f32 v{vA+k//2}, v{vS+k}, v{vS+k+1}")
    for k in range(4): a(f"v_mov_b32_dpp v{vA+k}, v{vA+k} row_ror:8 row_mask:0xf bank_mask:0xc")
    for k in range(0, 8, 2):
        a(f"v_lshlrev_b32 v{vS+k}, 16, v{vA+k//2}")
        a(f"v_and_b32 v{vS+k+1}, s{sHI}, v{vA+k//2}")
    m, t1, l, mc = vA, vA + 1, vA + 2, vA + 3
    a(f"""
    v_max3_f32 v{m}, v{vS}, v{vS+1}, v{vS+2}
    v_max3_f32 v{t1}, v{vS+3}, v{vS+4}, v{vS+5}
    v_max3_f32 v{m}, v{m}, v{vS+6}, v{vS+7}
    v_max_f32 v{m}, v{m}, v{t1}
    v_mov_b32 v{t1}, v{m}
    v_permlane16_swap_b32 v{m}, v{t1}
    v_max_f32 v{m}, v{m}, v{t1}
    v_mov_b32 v{t1}, v{m}
    v_permlane32_swap_b32 v{m}, v{t1}
    v_max_f32 v{m}, v{m}, v{t1}
    v_mul_f32 v{mc}, s{sC}, v{m}
    """)
    for k in range(8): a(f"v_fma_f32 v{vS+k}, v{vS+k}, s{sC}, -v{mc}")
    for k in range(8): a(f"v_exp_f32 v{vS+k}, v{vS+k}")
    a(f"""
    v_add_f32 v{l}, v{vS}, v{vS+1}
    v_add_f32 v{t1}, v{vS+2}, v{vS+3}
    v_add_f32 v{l}, v{l}, v{vS+4}
    v_add_f32 v{t1}, v{t1}, v{vS+5}
    v_add_f32 v{l}, v{l}, v{vS+6}
    v_add_f32 v{t1}, v{t1}, v{vS+7}
    v_add_f32 v{l}, v{l}, v{t1}
    v_mov_b32 v{t1}, v{l}
    v_permlane16_swap_b32 v{l}, v{t1}
    v_add_f32 v{l}, v{l}, v{t1}
    v_mov_b32 v{t1}, v{l}
    v_permlane32_swap_b32 v{l}, v{t1}
    v_add_f32 v{t1}, v{l}, v{t1}
    s_lshl_b32 s{sT0}, s{sW}, 3
    v_mov_b32 v{vT}, s{sT0}
    ds_write_b64 v{vT}, {R(m,2)} offset:{L_ML}
    v_and_b32 v{vT}, 15, v{vL}
    v_lshlrev_b32 v{vT}, 3, v{vT}
    s_waitcnt lgkmcnt(0)
    s_barrier
    ds_read_b64 {R(vO+4,2)}, v{vT} offset:{L_ML}
    """)
    for idx in range(NB2, 16): vload(idx)
    a("s_waitcnt lgkmcnt(0)")
    stamp(2)
    mi, li, M, L = vO + 4, vO + 5, vO, vO + 2
    a(f"v_mov_b32 v{M}, v{mi}")
    for k in (8, 4, 2, 1): a(f"v_max_f32_dpp v{M}, v{M}, v{M} row_ror:{k} {DPPF}")
    a(f"""
    v_sub_f32 v{m}, v{m}, v{M}
    v_mul_f32 v{m}, s{sC}, v{m}
    v_exp_f32 v{m}, v{m}
    s_cmp_eq_u32 s{sW}, 2
    s_cbranch_scc1 L_stat
    """)
    a.label("L_nostat")
    a(f"""
    v_and_b32 v{t1}, 8, v{vL}
    v_cmp_ne_u32 vcc, 0, v{t1}
    v_mov_b32 v{t1}, s{sHI}
    v_cndmask_b32 v{t1}, 0, v{t1}, vcc
    """)
    for k in range(8): a(f"v_mul_f32 v{vS+k}, v{vS+k}, v{m}")
    for k in range(8):
        tt = vA + 4 + (k & 3)
        a(f"v_cvt_pk_bf16_f32 v{tt}, v{vS+k}, v{vS+k}")
        a(f"v_and_b32 v{tt}, v{t1}, v{tt}")
        a(f"v_sub_f32 v{vS+k}, v{vS+k}, v{tt}")
        a(f"v_cvt_pk_bf16_f32 v{vS+k}, v{vS+k}, v{vS+k}")
    for t in range(4):
        ab = vA + 4 * (t & 1)
        for r in range(4): a(f"v_and_b32 v{ab+r}, v{vS+t}, v{vMask+r}")
        a(f"s_waitcnt vmcnt({14-2*t})")
        for hf in range(2):
            c = "0" if t == 0 else R(vO + 4 * hf)
            a(f"v_mfma_f32_16x16x32_bf16 {R(vO+4*hf)}, {R(ab)}, {R(64+4*(2*t+hf))}, {c}")
    stamp(3)
    for t in range(4):
        for r in range(4): a(f"v_and_b32 v{64+4*t+r}, v{vS+4+t}, v{vMask+r}")
    g, n = vA, vA + 1
    vTag = vKo; vSel = vVo
    a(f"""
    v_lshrrev_b32 v{g}, 4, v{vL}
    v_and_b32 v{n}, 15, v{vL}
    s_lshl_b32 s{sT0}, s{sW}, 10
    v_lshrrev_b32 v83, 5, v{vL}
    v_lshlrev_b32 v83, 9, v83
    v_lshl_add_u32 v83, v{n}, 5, v83
    v_and_b32 v{vT}, 16, v{vL}
    v_add3_u32 v83, v83, v{vT}, s{sT0}
    v_and_b32 v82, 31, v{vL}
    v_lshlrev_b32 v82, 2, v82
    v_lshrrev_b32 v81, 5, v{vL}
    v_lshl_add_u32 v81, v81, 13, v82
    s_and_b32 s{sT1}, s{sW}, 7
    s_lshl_b32 s{sT0}, s{sT1}, 7
    v_add_u32 v81, s{sT0}, v81
    v_and_b32 v{vSel}, 3, v{vL}
    v_add_u32 v{vSel}, 0x07060500, v{vSel}
    v_mov_b32 v80, 0
    v_mov_b32 v{vTag}, s{sTag}
    s_lshl_b32 s{sP0}, s{sBH}, 3
    s_add_u32 s{sP0}, s{sP0}, s{sT1}
    s_lshl_b32 s{sP0}, s{sP0}, 3
    s_add_u32 s{sP0}, s{sP0}, s{sS}
    s_lshl_b32 s{sP0}, s{sP0}, 7
    s_add_u32 s{sP0}, s{sP0}, {OB_OFF}
    s_movk_i32 s{sRed}, 99
    s_cmp_eq_u32 s{sRole}, 1
    s_cbranch_scc1 L_mid1
    s_cmp_eq_u32 s{sRole}, 2
    s_cbranch_scc1 L_mid2
    s_cmp_eq_u32 s{sW}, 0
    s_cbranch_scc1 L_mid3
    s_cmp_eq_u32 s{sW}, 3
    s_cbranch_scc1 L_gate
    """)
    a.label("L_pv2"); a.forget()
    for t in range(4):
        a(f"s_waitcnt vmcnt({6-2*t})")
        for hf in range(2):
            a(f"v_mfma_f32_16x16x32_bf16 {R(vO+4*hf)}, {R(64+4*t)}, {R(4*(2*t+hf))}, {R(vO+4*hf)}")
    a(f"s_cmp_lt_u32 s{sW}, 8")
    for r in range(4): a(f"v_permlane32_swap_b32 v{vO+r}, v{vO+4+r}")
    for r in range(4): a(f"v_add_f32 v{vO+r}, v{vO+r}, v{vO+4+r}")
    a(f"""
    ds_write_b128 v83, {R(vO)} offset:{L_OW}
    s_cbranch_scc1 L_low
    s_waitcnt lgkmcnt(0)
    s_barrier
    """)
    for i in range(4): a(f"ds_read2st64_b32 {R(2*i,2)}, v81 offset0:{L_OW//256+8*i} offset1:{L_OW//256+8*i+4}")
    a(f"""
    s_waitcnt lgkmcnt(2)
    v_add_f32 v0, v0, v1
    v_add_f32 v2, v2, v3
    s_waitcnt lgkmcnt(0)
    v_add_f32 v4, v4, v5
    v_add_f32 v6, v6, v7
    v_add_f32 v0, v0, v2
    v_add_f32 v4, v4, v6
    v_add_f32 v0, v0, v4
    v_mov_b32 v1, v0
    v_permlane32_swap_b32 v0, v1
    v_add_f32 v0, v0, v1
    v_perm_b32 v0, v0, v{vTag}, v{vSel}
    s_mov_b32 exec_hi, 0
    buffer_store_dword v0, v82, {S(sWS)}, s{sP0} offen sc1
    """)
    stamp(4)
    endpgm()
    a.label("L_low"); a.forget()
    a(f"""
    s_cmp_eq_u32 s{sRole}, 1
    s_cbranch_scc1 L_gemv1
    s_waitcnt lgkmcnt(0)
    s_barrier
    """)
    if xs: endpgm()
    a(f"""
    s_cmp_lt_u32 s{sRed}, 28
    s_cbranch_scc1 L_reduce
    s_cmp_eq_u32 s{sRed}, 28
    s_cbranch_scc1 L_epoch
    """)
    endpgm()

    a.label("L_gemv1"); a.forget()
    cf = 123
    def oload(): a(f"buffer_load_dwordx4 {R(0)}, v122, {S(sWS)}, s{sP1} offen sc1")
    a(f"s_mov_b32 s{sCnt}, 0")
    a.label("L_stchk")
    a(f"""
    v_cmp_ne_u32 vcc, s{sTag}, v85
    v_cmp_ne_u32 {S(sM,2)}, s{sTag}, v87
    s_or_b64 vcc, vcc, {S(sM,2)}
    s_cbranch_vccz L_stok
    s_add_u32 s{sCnt}, s{sCnt}, 1
    s_cmp_gt_u32 s{sCnt}, {LIM}
    s_cbranch_scc1 L_stok
    buffer_load_dwordx4 {R(84)}, v89, {S(sWS)}, s{sT3} offen sc1
    s_waitcnt vmcnt(0)
    s_branch L_stchk
    """)
    a.label("L_stok"); a.forget()
    M = vA
    a(f"v_mov_b32 v{M}, v84")
    for d in Q8: a(f"v_max_f32_dpp v{M}, v{M}, v{M} {d} {DPPF}")
    a(f"""
    v_sub_f32 v{cf}, v84, v{M}
    v_mul_f32 v{cf}, s{sC}, v{cf}
    v_exp_f32 v{cf}, v{cf}
    v_mul_f32 v{M}, v{cf}, v86
    """)
    for d in Q8: a(f"v_add_f32_dpp v{M}, v{M}, v{M} {d} {DPPF}")
    a(f"""
    v_rcp_f32 v{M}, v{M}
    v_mul_f32 v{cf}, v{cf}, v{M}
    s_mov_b32 s{sCnt}, 0
    s_cmp_eq_u32 s{sFF}, 0
    s_waitcnt lgkmcnt(0)
    s_barrier
    """)
    if xs: endpgm()
    oload()
    a(f"""
    ds_read_b64 {R(90,2)}, v80 offset:{L_GG}
    s_cbranch_scc1 L_nof
    ds_read_b128 {R(92)}, v120 offset:{L_F}
    """)
    a.label("L_nof")
    a("s_waitcnt lgkmcnt(0)")
    for r in range(4): a(f"v_mul_f32 v{92+r}, v{92+r}, v91")
    a("s_waitcnt vmcnt(0)")
    a.label("L_ochk"); a.forget()
    tag_chk(0, 4, 5)
    a(f"""
    s_cbranch_vccz L_ook
    s_mov_b64 exec, vcc
    """)
    oload()
    a(f"""
    s_mov_b64 exec, -1
    s_add_u32 s{sCnt}, s{sCnt}, 1
    s_waitcnt vmcnt({pipe})
    s_cmp_gt_u32 s{sCnt}, {LIM}
    s_cbranch_scc0 L_ochk
    """)
    a.label("L_ook"); a.forget()
    stamp(5)
    for r in range(4): a(f"v_mul_f32 v{24+r}, v{r}, v{cf}")
    for d in Q8:
        for r in range(4): a(f"v_add_f32_dpp v{24+r}, v{24+r}, v{24+r} {d} {DPPF}")
    for r in range(4): a(f"v_cvt_pk_bf16_f32 v{24+r}, v{24+r}, v{24+r}")
    for r in range(4): a(f"v_mov_b32_dpp v{28+r}, v{24+r} row_ror:8 {DPPF}")
    for t in range(8):
        ab = 8 + 4 * (t % 4)
        for r in range(4): a(f"v_and_b32 v{ab+r}, v{24+t}, v{vMask+r}")
        c = "0" if t == 0 else R(vO)
        a(f"v_mfma_f32_16x16x32_bf16 {R(vO)}, {R(ab)}, {R(32+4*t)}, {c}")
    a("s_mov_b32 exec_hi, 0")
    for r in range(4): a(f"v_fma_f32 v{vO+r}, v{vO+r}, v90, v{92+r}")
    tag_put(vO, vTag)
    a(f"buffer_store_dwordx4 {R(vO)}, v88, {S(sWS)}, s{sP2} offen sc1")
    stamp(6)
    endpgm()

    a.label("L_reduce"); a.forget()
    YL = 16 * YS
    def yload(i, base=None):
        per = 4096 // YL
        so_ = [sP1, sT1, sT2, sT3][i // per]
        a(f"buffer_load_dwordx4 {R(4*i if base is None else base+4*i)}, v84, {S(sWS)}, s{so_} offen offset:{YL*(i%per)} sc1")
    a(f"ds_read_b32 v91, v80 offset:{L_GG+4}")
    for i in range(8): yload(i)
    a(f"""
    s_mov_b32 s{sCnt}, 0
    s_mov_b32 s{sE}, 0
    s_waitcnt lgkmcnt(0)
    v_lshlrev_b32 v92, 16, v88
    v_and_b32 v93, s{sHI}, v88
    v_lshlrev_b32 v94, 16, v89
    v_and_b32 v95, s{sHI}, v89
    """)
    for r in range(4): a(f"v_mul_f32 v{92+r}, v{92+r}, v91")
    for r in range(4): a(f"v_mov_b32 v{36+r}, 0")
    a("s_waitcnt vmcnt(0)")
    a.label("L_ypoll"); a.forget()
    for i in range(8):
        a(f"s_bitcmp1_b32 s{sE}, {i}")
        a(f"s_cbranch_scc1 L_ys{i}")
        tag_chk(4*i, 32, 33)
        a(f"s_cbranch_vccz L_yd{i}")
        a("s_mov_b64 exec, vcc")
        yload(i)
        a("s_mov_b64 exec, -1")
        a(f"s_branch L_ys{i}")
        a.label(f"L_yd{i}")
        for r in range(4): a(f"v_add_f32 v{36+r}, v{36+r}, v{4*i+r}")
        a(f"s_bitset1_b32 s{sE}, {i}")
        a.label(f"L_ys{i}")
    a(f"""
    s_cmpk_eq_u32 s{sE}, 0xff
    s_cbranch_scc1 L_ypoll_ok
    s_add_u32 s{sCnt}, s{sCnt}, 1
    s_waitcnt vmcnt({pipe})
    s_cmp_gt_u32 s{sCnt}, {LIM}
    s_cbranch_scc0 L_ypoll
    """)
    a.label("L_ypoll_ok"); a.forget()
    stamp(7)
    a("s_nop 0")
    allred4(36, 0, ROW16)
    for r in range(4): a(f"v_add_f32 v{36+r}, v{36+r}, v{92+r}")
    a(f"""
    v_cvt_pk_bf16_f32 v36, v36, v37
    v_cvt_pk_bf16_f32 v37, v38, v39
    s_mov_b64 exec, {S(sM,2)}
    global_store_dwordx2 v90, {R(36,2)}, s[38:39]
    """)
    stamp(8)
    endpgm()
    a.label("L_epoch"); a.forget()
    a(f"""
    s_mov_b32 s{sCnt}, 0
    v_lshlrev_b32 v84, 4, v{vL}
    s_movk_i32 s{sT3}, {ST_OFF}
    """)
    a.label("L_fchk")
    for i in range(4):
        a(f"buffer_load_dwordx4 {R(32+4*i)}, v84, {S(sWS)}, s{sT3} offen offset:{1024*i} sc1")
    a("s_waitcnt vmcnt(0)")
    for i in range(4): a(f"v_xor_b32 v{33+4*i}, s{sTag}, v{33+4*i}")
    a(f"""
    v_or3_b32 v33, v33, v37, v41
    v_or_b32 v33, v33, v45
    v_cmp_ne_u32 vcc, 0, v33
    s_cbranch_vccz L_fok
    s_add_u32 s{sCnt}, s{sCnt}, 1
    s_cmp_gt_u32 s{sCnt}, {LIM}
    s_cbranch_scc0 L_fchk
    """)
    a.label("L_fok"); a.forget()
    a(f"""
    s_mov_b64 exec, 1
    buffer_store_dword v{vTag}, off, {S(sWS)}, 0 offset:{EP_OFF} sc1
    """)
    endpgm()

    a.label("L_stat"); a.forget()
    mi, li, M, L = vO + 4, vO + 5, vO, vO + 2
    a(f"""
    v_sub_f32 v{mi}, v{mi}, v{M}
    v_mul_f32 v{mi}, s{sC}, v{mi}
    v_exp_f32 v{mi}, v{mi}
    v_mul_f32 v{L}, v{li}, v{mi}
    """)
    for k in (8, 4, 2, 1): a(f"v_add_f32_dpp v{L}, v{L}, v{L} row_ror:{k} {DPPF}")
    a(f"""
    v_mov_b32 v{M+1}, s{sTag}
    v_mov_b32 v{L+1}, s{sTag}
    s_lshl_b32 s{sT0}, s{sBH}, 3
    s_add_u32 s{sT0}, s{sT0}, s{sS}
    s_lshl_b32 s{sT0}, s{sT0}, 4
    s_add_u32 s{sT0}, s{sT0}, {ST_OFF}
    s_mov_b64 exec, 1
    buffer_store_dwordx4 {R(M)}, off, {S(sWS)}, s{sT0} sc1
    s_mov_b64 exec, -1
    s_branch L_nostat
    """)
    a.label("L_mid1"); a.forget()
    a(f"""
    v_and_b32 v{vT}, 7, v{vL}
    v_lshlrev_b32 v89, 4, v{vT}
    s_lshl_b32 s{sT3}, s{sBH}, 7
    s_add_u32 s{sT3}, s{sT3}, {ST_OFF}
    v_lshlrev_b32 v122, 7, v{vT}
    v_lshl_add_u32 v122, v{g}, 5, v122
    v_bfe_u32 v{vT}, v{vL}, 3, 1
    v_lshl_add_u32 v122, v{vT}, 4, v122
    s_lshl_b32 s{sP1}, s{sBH}, 3
    s_add_u32 s{sP1}, s{sP1}, s{sS}
    s_lshl_b32 s{sP1}, s{sP1}, 10
    s_add_u32 s{sP1}, s{sP1}, {OB_OFF}
    buffer_load_dwordx4 {R(84)}, v89, {S(sWS)}, s{sT3} offen sc1
    s_and_b32 s{sT0}, s{sW}, 3
    s_cmp_lg_u32 s{sT0}, 0
    s_cbranch_scc1 L_mid1b
    buffer_load_dwordx4 {R(vS)}, v122, {S(sWS)}, s{sP1} offen sc1
    """)
    a.label("L_mid1b")
    a(f"""
    s_lshl_b32 s{sT1}, s{sT0}, 10
    v_lshlrev_b32 v120, 4, v{vL}
    v_add_u32 v120, s{sT1}, v120
    v_lshrrev_b32 v88, 1, v{n}
    v_mul_u32_u24 v88, {YST}, v88
    v_and_b32 v{vT}, 1, v{n}
    v_lshl_add_u32 v88, v{vT}, 5, v88
    v_and_b32 v{vT}, 16, v{vL}
    v_add_u32 v88, v88, v{vT}
    s_mul_i32 s{sP2}, s{sB}, 28
    s_lshl_b32 s{sT1}, s{sT0}, 3
    s_add_u32 s{sP2}, s{sP2}, s{sT1}
    s_mul_i32 s{sP2}, s{sP2}, {YST}
    s_lshl_b32 s{sT1}, s{sH}, 3
    s_add_u32 s{sT1}, s{sT1}, s{sS}
    s_lshl_b32 s{sT1}, s{sT1}, {YSH}
    s_add_u32 s{sP2}, s{sP2}, s{sT1}
    s_add_u32 s{sP2}, s{sP2}, {YB_OFF}
    s_cmp_eq_u32 s{sT0}, 3
    s_cselect_b32 s{sT0}, 8, 0
    v_and_b32 v{vT}, s{sT0}, v{vL}
    v_lshl_or_b32 v88, v{vT}, 27, v88
    v_mov_b32 v92, 0
    v_mov_b32 v93, 0
    v_mov_b32 v94, 0
    v_mov_b32 v95, 0
    s_branch L_pv2
    """)
    a.label("L_mid2"); a.forget()
    a(f"""
    v_lshlrev_b32 v{vT}, 5, v{g}
    ds_read_b128 {R(84)}, v{vT} offset:{L_R2}
    ds_read_b128 {R(88)}, v{vT} offset:{L_R2+16}
    s_waitcnt lgkmcnt(0)
    """)
    for t in range(8): a(f"v_cvt_pk_bf16_f32 v{84+t}, v{84+t}, v{84+t}")
    for t in range(8):
        ab = vA + 4 * (t & 1)
        for r in range(4): a(f"v_and_b32 v{ab+r}, v{84+t}, v{vMask+r}")
        c = "0" if t == 0 else R(92)
        a(f"v_mfma_f32_16x16x32_bf16 {R(92)}, {R(ab)}, {R(32+4*t)}, {c}")
    a(f"""
    s_and_b32 s{sT0}, s{sW}, 3
    s_lshl_b32 s{sT1}, s{sT0}, 10
    v_lshlrev_b32 v{vT}, 4, v{vL}
    v_add_u32 v{vT}, s{sT1}, v{vT}
    ds_write_b128 v{vT}, {R(92)} offset:{L_F}
    s_branch L_pv2
    """)
    a.label("L_mid3"); a.forget()
    if red == 2: a(f"""
    s_cmp_gt_u32 s{sH}, 3
    s_cbranch_scc1 L_pv2
    s_lshl_b32 s{sRed}, s{sH}, 3
    s_add_u32 s{sRed}, s{sRed}, s{sS}
    """)
    if red == 1: a(f"""
    s_cmp_gt_u32 s{sS}, 1
    s_cbranch_scc1 L_pv2
    s_lshl_b32 s{sRed}, s{sH}, 1
    s_add_u32 s{sRed}, s{sRed}, s{sS}
    """)
    if red == 3: a(f"""
    s_bitcmp0_b32 s{sS}, 0
    s_cbranch_scc1 L_pv2
    s_cmp_gt_u32 s{sH}, 7
    s_cbranch_scc1 L_pv2
    s_lshl_b32 s{sRed}, s{sH}, 2
    s_lshr_b32 s{sT0}, s{sS}, 1
    s_add_u32 s{sRed}, s{sRed}, s{sT0}
    """)
    a(f"""
    s_cmp_lt_u32 s{sRed}, 28
    s_cbranch_scc1 L_mid3b
    s_add_u32 s{sRed}, s{sRed}, s{sB}
    s_branch L_pv2
    """)
    a.label("L_mid3b")
    a(f"""
    v_lshlrev_b32 v84, {YSH}, v{n}
    v_lshl_add_u32 v84, v{g}, 4, v84
    s_mov_b32 s{sM}, 0x00010001
    s_mov_b32 s{sM+1}, 0x00010001
    v_lshlrev_b32 v{vT}, 3, v{g}
    s_lshl_b32 s{sT0}, s{sRed}, 5
    v_add_u32 v{vT}, s{sT0}, v{vT}
    s_mul_i32 s{sT0}, s{sB}, 896
    v_add_u32 v90, s{sT0}, v{vT}
    s_mul_i32 s{sP1}, s{sB}, 28
    s_add_u32 s{sP1}, s{sP1}, s{sRed}
    s_mul_i32 s{sP1}, s{sP1}, {YST}
    s_add_u32 s{sP1}, s{sP1}, {YB_OFF}
    s_add_u32 s{sT1}, s{sP1}, 4096
    s_add_u32 s{sT2}, s{sP1}, 8192
    s_add_u32 s{sT3}, s{sP1}, 12288
    global_load_dwordx2 {R(88,2)}, v{vT}, s[34:35]
    """)
    for i in range(8): yload(i, 32)
    a("s_branch L_pv2")
    a.label("L_gate"); a.forget()
    xa, ga = 32, 36
    a("v_mov_b32 v44, 0")
    for r in range(4):
        a(f"""
        v_lshlrev_b32 v40, 16, v{xa+r}
        v_and_b32 v41, s{sHI}, v{xa+r}
        v_lshlrev_b32 v42, 16, v{ga+r}
        v_and_b32 v43, s{sHI}, v{ga+r}
        v_mul_f32 v40, v40, v42
        v_mul_f32 v41, v41, v43
        v_cvt_pk_bf16_f32 v40, v40, v41
        v_lshlrev_b32 v41, 16, v40
        v_and_b32 v40, s{sHI}, v40
        v_add_f32 v44, v44, v41
        v_add_f32 v44, v44, v40
        """)
    for k in (8, 4, 2, 1): a(f"v_add_f32_dpp v44, v44, v44 row_ror:{k} {DPPF}")
    a(f"""
    v_mov_b32 v45, v44
    v_permlane16_swap_b32 v44, v45
    v_add_f32 v44, v44, v45
    v_mov_b32 v45, v44
    v_permlane32_swap_b32 v44, v45
    v_add_f32 v44, v44, v45
    v_cvt_pk_bf16_f32 v44, v44, v44
    v_and_b32 v44, s{sHI}, v44
    v_mul_f32 v44, {f32(-1.4426950408889634)}, v44
    v_exp_f32 v44, v44
    v_add_f32 v44, 1.0, v44
    v_rcp_f32 v44, v44
    v_cvt_pk_bf16_f32 v44, v44, v44
    v_and_b32 v44, s{sHI}, v44
    v_sub_f32 v45, 1.0, v44
    v_cvt_pk_bf16_f32 v45, v45, v45
    v_and_b32 v45, s{sHI}, v45
    ds_write_b64 v80, {R(44,2)} offset:{L_GG}
    s_branch L_pv2
    """)
    a.label("L_ldgate"); a.forget()
    for r in range(8): a(f"v_mov_b32 v{32+r}, 0")
    a(f"""
    v_lshlrev_b32 v{vA+1}, 4, v{vL}
    s_mul_i32 s{sT0}, s{sB}, 896
    v_add_u32 v{vA}, s{sT0}, v{vA+1}
    s_mov_b32 exec_hi, 0x00ffffff
    global_load_dwordx4 {R(32)}, v{vA}, s[16:17]
    global_load_dwordx4 {R(36)}, v{vA+1}, s[36:37]
    s_mov_b64 exec, -1
    s_branch L_sm
    """)

    n, g = 120, 121
    a.label("L_stage1"); a.forget()
    SO = [None, 60, 61, 62, 64, 65, 66, 67, 69, 70, 71, 76, 77, 78]
    sStr = sP1
    a(f"""
    s_movk_i32 s{sStr}, 3584
    s_mov_b32 s{sP0}, {SH_OFF}
    s_cmp_eq_u32 s{sW}, 0
    s_cselect_b32 s{sStr}, 8192, s{sStr}
    s_cselect_b32 s{sP2}, 9, 8
    s_cselect_b32 s{sP0}, {SQ_OFF}, s{sP0}
    s_mul_i32 s{sCnt}, s{sStr}, 448
    s_lshr_b32 s{sT1}, s{sJJ}, 1
    s_mul_i32 s{sT2}, s{sT1}, 56
    s_mul_i32 s{sT2}, s{sT2}, s{sStr}
    s_lshl_b32 s{sT3}, s{sH}, s{sP2}
    s_add_u32 s{sT2}, s{sT2}, s{sT3}
    s_and_b32 s{sT3}, s{sJJ}, 1
    s_lshl_b32 s{sT0}, s{sT3}, 8
    s_add_u32 s{sT2}, s{sT2}, s{sT0}
    s_sub_u32 s{sWA+2}, s{sCnt}, s{sT2}
    s_mul_i32 s{sT0}, s{sStr}, 14
    v_mul_u32_u24 v{vT}, s{sT0}, v{g}
    v_lshl_add_u32 v{vT}, v{n}, 4, v{vT}
    s_mov_b32 s{SO[1]}, s{sStr}
    """)
    for t in range(2, 14): a(f"s_add_u32 s{SO[t]}, s{SO[t-1]}, s{sStr}")
    a(f"""
    v_lshrrev_b32 v{vS}, 3, v{n}
    v_mul_u32_u24 v{vS}, 896, v{vS}
    v_mad_u32_u24 v{vS}, v{g}, 28, v{vS}
    s_mul_i32 s{sT0}, s{sT1}, 112
    v_add_u32 v{vS}, s{sT0}, v{vS}
    s_cmp_eq_u32 s{sW}, 0
    s_waitcnt lgkmcnt(0)
    s_cselect_b32 s{sWA}, s22, s28
    s_cselect_b32 s{sWA+1}, s23, s29
    s_add_u32 s{sWA}, s{sWA}, s{sT2}
    s_addc_u32 s{sWA+1}, s{sWA+1}, 0
    """)
    for t in range(14):
        a(f"buffer_load_dwordx4 {R(4*t)}, v{vT}, {S(sWA)}, {('s%d' % SO[t]) if t else '0'} offen{WQP}")
    a(f"""
    global_load_dwordx4 {R(56)}, v{vS}, s[16:17]
    global_load_dwordx3 {R(60,3)}, v{vS}, s[16:17] offset:16
    s_add_u32 s{sK}, s18, s{sKV}
    s_addc_u32 s{sK+1}, s19, 0
    """)
    setup2()
    a(f"""
    v_lshrrev_b32 v{vT}, 1, v{g}
    v_lshlrev_b32 v{vT}, 13, v{vT}
    v_lshl_add_u32 v{vT}, v{n}, 5, v{vT}
    v_and_b32 v{vS}, 16, v{vL}
    v_add_u32 v{vT}, v{vT}, v{vS}
    s_lshl_b32 s{sT0}, s{sH}, 14
    s_add_u32 s{sP0}, s{sP0}, s{sT0}
    s_lshl_b32 s{sT0}, s{sB}, 13
    s_add_u32 s{sP1}, s{sP0}, s{sT0}
    s_lshl_b32 s{sT2}, s{sT1}, 10
    s_add_u32 s{sP0}, s{sP0}, s{sT2}
    s_lshl_b32 s{sT2}, s{sT3}, 9
    s_add_u32 s{sP0}, s{sP0}, s{sT2}
    s_mov_b32 s{sT2}, 0x01000100
    s_mov_b32 s{sT3}, 0x03020302
    v_mov_b32 v{vQ}, s{sTag}
    v_lshlrev_b32 v{vQ+1}, 4, v{vL}
    s_add_u32 s{sP2}, s{sP1}, 4096
    s_waitcnt vmcnt(0)
    """)
    stamp(5)
    for t in range(14):
        ab = 112 if t & 1 else vA
        a(f"v_perm_b32 v{vS+4}, v{56+t//2}, v{56+t//2}, s{sT3 if t & 1 else sT2}")
        for r in range(4): a(f"v_and_b32 v{ab+r}, v{vS+4}, v{vMask+r}")
        c = "0" if t == 0 else R(vS)
        a(f"v_mfma_f32_16x16x32_bf16 {R(vS)}, {R(ab)}, {R(4*t)}, {c}")
    a(f"s_cmp_eq_u32 s{sW}, 1")
    tag_put(vS, vQ)
    a(f"buffer_store_dwordx4 {R(vS)}, v{vT}, {S(sWS)}, s{sP0} offen sc1")
    stamp(6)
    a("s_cbranch_scc1 L_hgather")
    def qload(i): a(f"buffer_load_dwordx4 {R(64+4*i)}, v{vQ+1}, {S(sWS)}, s{sP1 if i < 4 else sP2} offen offset:{1024*(i%4)} sc1")
    for f in range(KS): kload(f)
    for i in range(8): qload(i)
    poll_many("L_qp", [(64+4*i, (lambda i=i: qload(i))) for i in range(8)], vQ + 4, vQ + 5)
    for f in range(KS, 16): kload(f)
    for i in range(1, 8):
        for r in range(4): a(f"v_add_f32 v{64+r}, v{64+r}, v{64+4*i+r}")
    a(f"""
    v_cvt_pk_bf16_f32 v{vQ}, v64, v65
    v_cvt_pk_bf16_f32 v{vQ+1}, v66, v67
    v_lshlrev_b32 v{vT}, 3, v{vL}
    ds_write_b64 v{vT}, {R(vQ,2)} offset:{L_Q}
    """)
    stamp(10)
    a("s_branch L_kdone")
    a.label("L_hgather"); a.forget()
    for f in range(16): kload(f)
    h = vS
    a(f"""
    v_and_b32 v{vA}, 7, v{vL}
    v_lshrrev_b32 v{vQ}, 3, v{vL}
    v_lshlrev_b32 v{vQ}, 10, v{vQ}
    v_lshl_add_u32 v{vQ}, v{vA}, 4, v{vQ}
    s_lshl_b32 s{sT0}, s{sS}, 6
    s_add_u32 s{sP1}, s{sP1}, s{sT0}
    s_lshl_b32 s{sT1}, s{sH}, 8
    s_lshl_b32 s{sT0}, s{sS}, 5
    s_add_u32 s{sT1}, s{sT1}, s{sT0}
    v_lshlrev_b32 v{vT}, 3, v{vA}
    v_add_u32 v{vT}, s{sT1}, v{vT}
    global_load_dwordx2 {R(118,2)}, v{vT}, s[30:31]
    """)
    def hload(): a(f"buffer_load_dwordx4 {R(h)}, v{vQ}, {S(sWS)}, s{sP1} offen sc1")
    hload()
    poll_many("L_hp", [(h, hload)], vQ + 4, vQ + 5)
    allred4(h, h + 4, ['ror:8', 'p16', 'p32'])
    rnd2(h, h + 1, vQ + 4); rnd2(h + 2, h + 3, vQ + 5)
    a(f"""
    v_lshlrev_b32 v{h+4}, 16, v118
    v_and_b32 v{h+5}, s{sHI}, v118
    v_lshlrev_b32 v{h+6}, 16, v119
    v_and_b32 v{h+7}, s{sHI}, v119
    """)
    for r in range(4): a(f"v_add_f32 v{h+r}, v{h+r}, v{h+4+r}")
    rnd2(h, h + 1, vQ + 4); rnd2(h + 2, h + 3, vQ + 5)
    for r in range(4): a(f"v_max_f32 v{h+r}, 0, v{h+r}")
    for r in range(4): a(f"v_mul_f32 v{h+r}, v{h+r}, v{h+r}")
    a(f"""
    v_lshlrev_b32 v{vT}, 4, v{vA}
    ds_write_b128 v{vT}, {R(h)} offset:{L_R2}
    s_nop 1
    s_branch L_kdone
    """)
    if stamps:
        a.label("L_stampout"); a.forget()
        if amp >= 0:
            if amp == 99: a("s_movk_i32 s11, 10000")
            else:
                a("s_cmp_eq_u32 s%d, 0" % STR[amp])
                a("s_cbranch_scc1 L_end")
                a("s_sub_u32 s11, s%d, s15" % STR[amp])
                a("s_min_u32 s11, s11, 20000")
                a("s_lshl_b32 s11, s11, 3")
            a.label("L_amp")
            a("s_sleep 8")
            a("s_memrealtime s[%d:%d]" % (sTS, sTS + 1))
            a("s_waitcnt lgkmcnt(0)")
            a("s_sub_u32 s12, s%d, s15" % sTS)
            a("s_cmp_lt_u32 s12, s11")
            a("s_cbranch_scc1 L_amp")
        else:
            a("s_mov_b64 exec, -1")
            a("s_waitcnt vmcnt(0)")
            for i, r in enumerate(STR): a("v_writelane_b32 v0, s%d, %d" % (r, i))
            a(f"v_lshlrev_b32 v1, 2, v{vL}")
            a("s_mov_b64 exec, 0xfff")
            a("buffer_store_dword v0, v1, %s, s%d offen" % (S(sWS), sTSo))
    a.label("L_end")
    a("s_endpgm")
    a.raw('.section .rodata,"a"')
    a.raw(".p2align 6")
    a.raw(".amdhsa_kernel %s_kernel" % NAME)
    a.raw("  .amdhsa_next_free_vgpr 128")
    a.raw("  .amdhsa_next_free_sgpr 102")
    a.raw("  .amdhsa_accum_offset 128")
    a.raw("  .amdhsa_group_segment_fixed_size 0")
    a.raw("  .amdhsa_kernarg_size 112")
    a.raw("  .amdhsa_user_sgpr_count 2")
    a.raw("  .amdhsa_user_sgpr_kernarg_segment_ptr 1")
    a.raw("  .amdhsa_system_sgpr_workgroup_id_x 1")
    a.raw("  .amdhsa_float_denorm_mode_32 3")
    a.raw(".end_amdhsa_kernel")
    return a.text()

if __name__ == "__main__":
    import argparse, inspect
    ap = argparse.ArgumentParser()
    ap.add_argument("-o", default="cdna_kernels/%s.s" % NAME)
    sig = inspect.signature(gen)
    for k, p in sig.parameters.items():
        if isinstance(p.default, bool): ap.add_argument("--" + k, action="store_true")
        elif isinstance(p.default, int): ap.add_argument("--" + k, type=int, default=p.default)
        else: ap.add_argument("--" + k, default=p.default)
    x = vars(ap.parse_args()); o = x.pop("o")
    x = {k: ("" if v == "none" else v) for k, v in x.items()}
    open(o, "w").write(gen(**x))
```

```python
import sys, struct
from asmlib import Asm

NAME = "gated_mix__mha_block_cached__dense_activation_squared_relu__decode"
def f32(x): return "0x%08x" % struct.unpack('<I', struct.pack('<f', x))[0]

def gen(kv="nt", wq="nt", w2="nt", stamps=False, NPRE=2, NMID=2, swz=1, amp=-1, xs=0, wmap=4, pipe=0, fpar=0, red=2, ypad=0, yskew=256, KS=16, early=0, pf=0, cpf=0, lst=0):
    stamps = stamps or amp >= 0
    a = Asm()
    KV = (" " + kv) if kv else ""
    WQP = (" " + wq) if wq else ""
    WP = (" " + w2) if w2 else ""
    YS = 128 if ypad else 64
    YSH = 7 if ypad else 6
    YST = 128 * YS + yskew
    EP_OFF = 0; ST_OFF = 4096; OB_OFF = 8192; SQ_OFF = OB_OFF + 262144; SH_OFF = SQ_OFF + 262144
    YB_OFF = SH_OFF + 262144; TS_OFF = 1835008; WS_USED = 2097152
    assert YB_OFF + 56 * YST <= TS_OFF
    L_Q = 0; L_ML = 512; L_R2 = 640; L_GG = 768; L_TAG = 776; L_F = 1024; L_OW = 5120; OWS = 1024; LDS = L_OW + 16 * OWS
    sCk0, sCk1, sH, sB, sS, sJJ, sBH, sW = 3, 4, 5, 6, 7, 8, 9, 10
    sT0, sT1, sT2, sT3 = 11, 12, 13, 14
    sK, sV, sWS, sWA, sWB = 44, 48, 52, 56, 64
    sSel = [40, 41, 60, 61]; sE = 62; sFF = 63
    sKV = 68
    sKT = 72; sVG = 76; sC = 78; sHI = 79; sM = 80
    sP0, sP1, sP2 = 82, 83, 84
    sRole = 85; sRed = 86; sCnt = 87
    sTS = 88; sTSo = 90; s3584 = 91; sTag = 92
    vMask = 96; vS = 100; vQ = 108; vO = 108; vA = 116; vKo = 124; vVo = 125; vL = 126; vT = 127
    LIM = 1 << 23
    def R(b, n=4): return "v[%d:%d]" % (b, b + n - 1)
    def S(b, n=4): return "s[%d:%d]" % (b, b + n - 1)
    STR = [26, 27, 93, 94, 95, 96, 97, 98, 99, 100, 101, 15]
    def stamp(idx):
        if not stamps: return
        a("s_memrealtime s[%d:%d]" % (sTS, sTS + 1))
        a("s_waitcnt lgkmcnt(0)")
        a("s_mov_b32 s%d, s%d" % (STR[idx], sTS))
    def endpgm():
        if stamps: a("s_branch L_stampout")
        else: a("s_endpgm")
    DPPF = "row_mask:0xf bank_mask:0xf"
    ROW16 = ['ror:8', 'ror:4', 'ror:2', 'ror:1']
    Q8 = ("quad_perm:[1,0,3,2]", "quad_perm:[2,3,0,1]", "row_half_mirror")
    def kload(f):
        u, i = f >> 2, f & 3
        a(f"buffer_load_dwordx4 {R(4*f)}, v{vKo}, {S(sK)}, s{sKT+u} offen offset:{128*i}{KV}")
    def vload(idx):
        G, t, hf = idx >> 3, (idx >> 1) & 3, idx & 1
        base = 64 if G == 0 else 0
        a(f"buffer_load_dwordx4 {R(base+4*(2*t+hf))}, v{vVo}, {S(sV)}, s{sVG+G} offen offset:{512*t+256*hf}{KV}")
    def allred4(base, tmp, steps, op="add"):
        for st in steps:
            if st.startswith('ror'):
                for r in range(4): a(f"v_{op}_f32_dpp v{base+r}, v{base+r}, v{base+r} row_{st} {DPPF}")
            else:
                sw = "v_permlane16_swap_b32" if st == 'p16' else "v_permlane32_swap_b32"
                for r in range(4): a(f"v_mov_b32 v{tmp+r}, v{base+r}")
                for r in range(4): a(f"{sw} v{base+r}, v{tmp+r}")
                for r in range(4): a(f"v_{op}_f32 v{base+r}, v{base+r}, v{tmp+r}")
    def rnd2(x, y, tmp):
        a(f"v_cvt_pk_bf16_f32 v{tmp}, v{x}, v{y}")
        a(f"v_lshlrev_b32 v{x}, 16, v{tmp}")
        a(f"v_and_b32 v{y}, s{sHI}, v{tmp}")
    def tag_put(base, vtag):
        for r in range(4): a(f"v_perm_b32 v{base+r}, v{base+r}, v{vtag}, s{sSel[r]}")
    def tag_chk(base, t0, t1):
        a(f"v_perm_b32 v{t0}, v{base+1}, v{base}, s{sCk0}")
        a(f"v_perm_b32 v{t1}, v{base+3}, v{base+2}, s{sCk1}")
        a(f"v_or_b32 v{t0}, v{t0}, v{t1}")
        a(f"v_cmp_ne_u32 vcc, s{sTag}, v{t0}")
    def poll_many(lbl, loads, t0, t1):
        a(f"s_mov_b32 s{sCnt}, 0")
        a.label(lbl); a.forget()
        a("s_waitcnt vmcnt(0)")
        a(f"s_mov_b32 s{sE}, 0")
        for i, (base, fn) in enumerate(loads):
            tag_chk(base, t0, t1)
            a(f"s_cbranch_vccz {lbl}_s{i}")
            a("s_mov_b64 exec, vcc")
            fn()
            a("s_mov_b64 exec, -1")
            a(f"s_mov_b32 s{sE}, 1")
            a.label(f"{lbl}_s{i}")
        a(f"""
        s_cmp_eq_u32 s{sE}, 0
        s_cbranch_scc1 {lbl}_ok
        s_add_u32 s{sCnt}, s{sCnt}, 1
        s_cmp_gt_u32 s{sCnt}, {LIM}
        s_cbranch_scc0 {lbl}
        s_waitcnt vmcnt(0)
        """)
        a.label(lbl + "_ok"); a.forget()
    def setup2():
        a(f"""
        s_add_u32 s{sV}, s20, s{sKV}
        s_addc_u32 s{sV+1}, s21, 0
        s_mov_b32 s{sWS}, s42
        s_mov_b32 s{sWS+1}, s43
        """)
        if stamps:
            for r in STR[:11]: a("s_mov_b32 s%d, 0" % r)
        tmp = vS
        a(f"""
        v_and_b32 v{tmp}, 1, v{vL}
        v_lshlrev_b32 v{tmp}, 4, v{tmp}
        v_mov_b32 v{tmp+1}, 0xffff
        v_lshlrev_b32 v{tmp+1}, v{tmp}, v{tmp+1}
        v_bfe_u32 v{tmp+2}, v{vL}, 1, 2
        """)
        for r in range(4):
            a(f"v_cmp_eq_u32 vcc, {r}, v{tmp+2}")
            a(f"s_mov_b32 s{sSel[r]}, {0x07060500 + r}")
            a(f"v_cndmask_b32 v{vMask+r}, 0, v{tmp+1}, vcc")
        a(f"""
        s_mov_b32 s{sCk0}, 0x0c0c0400
        s_mov_b32 s{sCk1}, 0x04000c0c
        """)

    if lst == 2: a.raw("; @launch kernel=tiny_kernel grid=(1,1,1) block=(64,1,1) lds=0")
    if lst: a.raw("; @launch kernel=%s_kernel grid=(256,1,1) block=(1024,1,1) lds=%d" % (NAME, LDS))
    else: a.raw("; @launch grid=(256,1,1) block=(1024,1,1) lds=%d" % LDS)
    if lst == 3: a.raw("; @launch kernel=tiny_kernel grid=(1,1,1) block=(64,1,1) lds=0")
    a.raw('.amdgcn_target "amdgcn-amd-amdhsa--gfx950"')
    a.raw(".text")
    a.raw(".globl %s_kernel" % NAME)
    a.raw(".p2align 8")
    a.raw(".type %s_kernel,@function" % NAME)
    a.raw("%s_kernel:" % NAME)
    a("s_cmp_ge_u32 s2, 256")
    a("s_cbranch_scc1 L_end")
    stamp(11)
    a("s_load_dwordx16 s[16:31], s[0:1], 0")
    a("s_load_dwordx8 s[32:39], s[0:1], 64")
    a("s_load_dwordx2 s[42:43], s[0:1], 104")
    n, g = 120, 121
    sX, sJ = sCk0, sCk1
    a(f"""
    v_lshrrev_b32 v{vT}, 6, v0
    v_and_b32 v{vL}, 63, v0
    s_and_b32 s{sX}, s2, 7
    v_readfirstlane_b32 s{sW}, v{vT}
    s_lshr_b32 s{sJ}, s2, 3
    """)
    if wmap == 1: a(f"""
    s_lshr_b32 s{sT0}, s{sJ}, 4
    s_lshl_b32 s{sH}, s{sX}, 1
    s_add_u32 s{sH}, s{sH}, s{sT0}
    s_lshr_b32 s{sB}, s{sJ}, 3
    s_and_b32 s{sB}, s{sB}, 1
    s_and_b32 s{sS}, s{sJ}, 7
    """)
    elif wmap == 0: a(f"""
    s_and_b32 s{sH}, s{sJ}, 15
    s_lshr_b32 s{sB}, s{sJ}, 4
    s_xor_b32 s{sS}, s{sX}, {fpar}
    """)
    elif wmap == 4: a(f"""
    s_and_b32 s{sT0}, s{sJ}, 3
    s_lshr_b32 s{sH}, s{sX}, 1
    s_lshl_b32 s{sH}, s{sH}, 2
    s_add_u32 s{sH}, s{sH}, s{sT0}
    s_lshr_b32 s{sB}, s{sJ}, 4
    s_lshr_b32 s{sS}, s{sJ}, 1
    s_and_b32 s{sS}, s{sS}, 6
    s_and_b32 s{sT0}, s{sX}, 1
    s_xor_b32 s{sT0}, s{sT0}, {fpar}
    s_or_b32 s{sS}, s{sS}, s{sT0}
    """)
    a(f"""
    s_lshl_b32 s{sJJ}, s{sB}, 3
    s_add_u32 s{sJJ}, s{sJJ}, s{sS}
    s_lshl_b32 s{sBH}, s{sB}, 4
    s_add_u32 s{sBH}, s{sBH}, s{sH}
    s_and_b32 s{sT0}, s{sS}, 1
    s_lshl_b32 s{sT0}, s{sT0}, 4
    s_or_b32 s{sT0}, s{sT0}, s{sH}
    s_cmp_lt_u32 s{sT0}, 14
    s_cselect_b32 s{sFF}, 1, 0
    v_and_b32 v{n}, 15, v{vL}
    v_lshrrev_b32 v{g}, 4, v{vL}
    v_and_b32 v{vT}, 7, v{vL}
    v_lshlrev_b32 v{vKo}, 9, v{vT}
    v_lshl_add_u32 v{vKo}, v{g}, 4, v{vKo}
    v_and_b32 v{vT}, 8, v{vL}
    v_lshl_add_u32 v{vKo}, v{vT}, 3, v{vKo}
    s_lshl_b32 s{sT2}, s{sW}, 14
    s_and_b32 s{sT3}, s{sW}, {3 if swz else 0}
    s_lshl_b32 s{sT1}, s{sT3}, 12
    s_or_b32 s{sKT}, s{sT2}, s{sT1}
    s_xor_b32 s{sKT+1}, s{sKT}, 4096
    s_xor_b32 s{sKT+2}, s{sKT}, 8192
    s_xor_b32 s{sKT+3}, s{sKT}, 12288
    s_lshl_b32 s{sKV}, s{sBH}, 21
    s_lshl_b32 s{sT1}, s{sS}, 18
    s_add_u32 s{sKV}, s{sKV}, s{sT1}
    s_mov_b32 s{sK+2}, 262144
    s_mov_b32 s{sK+3}, 0x00020000
    s_mov_b32 s{sV+2}, 262144
    s_mov_b32 s{sV+3}, 0x00020000
    s_mov_b32 s{sWS+2}, {WS_USED}
    s_mov_b32 s{sWS+3}, 0x00020000
    s_mov_b32 s{sWA+3}, 0x00020000
    s_mov_b32 s{sHI}, 0xffff0000
    s_cmp_le_u32 s{sW}, s{sFF}
    s_cbranch_scc1 L_stage1
    s_waitcnt lgkmcnt(0)
    s_add_u32 s{sK}, s18, s{sKV}
    s_addc_u32 s{sK+1}, s19, 0
    """)
    if early: a("s_memrealtime s[70:71]")
    if pf:
        a(f"""
        s_cmp_lg_u32 s{sW}, 3
        s_cbranch_scc1 L_nopf
        s_lshl_b32 s{sT0}, s{sH}, 3
        s_add_u32 s{sT0}, s{sT0}, s{sS}
        s_mul_i32 s{sT0}, s{sT0}, {16*896}
        s_mul_i32 s{sT1}, s{sT0}, s{sFF}
        s_lshl_b32 s{sT0}, s{sT0}, 1
        v_mov_b32 v64, s{sKV}
        v_mov_b32 v65, s{sT0}
        v_mov_b32 v66, s{sT1}
        v_mov_b32 v67, {OB_OFF}
        s_mov_b64 exec, 1
        global_load_dword v68, v64, s[20:21] nt
        global_load_dword v69, v65, s[24:25] nt
        global_load_dword v70, v66, s[32:33] nt
        global_load_dword v71, v67, s[42:43] nt
        s_mov_b64 exec, -1
        """)
        a.label("L_nopf")
    for f in range(16): kload(f)
    if cpf:
        a(f"""
        s_cmp_lg_u32 s{sW}, 2
        s_cbranch_scc1 L_nocpf
        s_cmp_ge_u32 s2, {8*cpf}
        s_cbranch_scc1 L_nocpf
        s_getpc_b64 s[70:71]
        v_lshlrev_b32 v64, 7, v{vL}
        s_mov_b32 exec_hi, 0xfff
        global_load_dword v65, v64, s[70:71]
        s_mov_b64 exec, -1
        """)
        a.label("L_nocpf")
    setup2()
    if early:
        a("s_mov_b32 s%d, s70" % STR[9])
        stamp(7)
        a("s_waitcnt vmcnt(15)")
        stamp(10)
    a.label("L_kdone"); a.forget()
    a(f"""
    v_lshlrev_b32 v{vVo}, 11, v{g}
    v_lshl_add_u32 v{vVo}, v{n}, 4, v{vVo}
    s_and_b32 s{sT1}, s{sKT}, 4096
    v_xor_b32 v{vVo}, s{sT1}, v{vVo}
    s_andn2_b32 s{sVG}, s{sKT}, 4096
    s_xor_b32 s{sVG+1}, s{sVG}, 8192
    """)
    for idx in range(NPRE): vload(idx)
    a(f"""
    s_mov_b32 s{sC}, {f32(1.4426950408889634/16)}
    s_movk_i32 s{s3584}, 3584
    s_lshr_b32 s{sRole}, s{sW}, 2
    s_lshl_b32 s{sT0}, s{sH}, 3
    s_add_u32 s{sT0}, s{sT0}, s{sS}
    s_mul_i32 s{sT0}, s{sT0}, {16*896}
    s_mul_i32 s{sT1}, s{sT0}, s{sFF}
    s_lshl_b32 s{sT0}, s{sT0}, 1
    s_cmp_eq_u32 s{sRole}, 1
    s_cselect_b32 s{sT0}, s{sT0}, s{sT1}
    s_cselect_b32 s{sT2}, s24, s32
    s_cselect_b32 s{sT3}, s25, s33
    s_add_u32 s{sWB}, s{sT2}, s{sT0}
    s_addc_u32 s{sWB+1}, s{sT3}, 0
    s_mov_b32 s{sWB+2}, 28672
    s_mov_b32 s{sWB+3}, 0x00020000
    s_lshl_b32 s{sT0}, s{sFF}, 1
    s_cmp_eq_u32 s{sRole}, 2
    s_cselect_b32 s{sRole}, s{sT0}, s{sRole}
    v_and_b32 v{vT}, 8, v{vL}
    v_lshlrev_b32 v{vT}, 3, v{vT}
    v_lshl_add_u32 v{vT}, v{g}, 4, v{vT}
    v_mul_u32_u24 v{vKo}, 7168, v{g}
    v_lshl_add_u32 v{vKo}, v{n}, 4, v{vKo}
    s_and_b32 s{sT0}, s{sW}, 3
    s_lshl_b32 s{sT1}, s{sT0}, 8
    v_add_u32 v{vKo}, s{sT1}, v{vKo}
    s_cmp_eq_u32 s{sT0}, 3
    s_cselect_b32 s{sT0}, 8, 0
    v_and_b32 v{vS}, s{sT0}, v{vL}
    v_lshl_or_b32 v{vKo}, v{vS}, 27, v{vKo}
    """)
    if stamps:
        a(f"""
        s_lshl_b32 s{sTSo}, s2, 4
        s_add_u32 s{sTSo}, s{sTSo}, s{sW}
        s_lshl_b32 s{sTSo}, s{sTSo}, 6
        s_add_u32 s{sTSo}, s{sTSo}, {TS_OFF}
        """)
    stamp(0)
    a("s_waitcnt lgkmcnt(0)")
    a("s_barrier")
    assert NPRE <= 4
    qb = [80, 84, 88, 92]
    for i in range(4): a(f"ds_read_b128 {R(qb[i])}, v{vT} offset:{L_Q+128*i}")
    a(f"s_sub_u32 s{sT0}, s{sRole}, 1")
    a(f"s_waitcnt vmcnt({NPRE})")
    stamp(1)
    acc = [vS, vS + 4, vQ, vQ + 4]
    for i in range(4):
        a(f"s_waitcnt lgkmcnt({3-i})")
        for u in range(4):
            c = "0" if i == 0 else R(acc[u])
            a(f"v_mfma_f32_16x16x32_bf16 {R(acc[u])}, {R(4*(4*u+i))}, {R(qb[i])}, {c}")
    a(f"""
    s_cmp_gt_u32 s{sT0}, 1
    s_cbranch_scc1 L_now
    """)
    for t in range(8):
        so_ = "0" if t < 4 else f"s{s3584}"
        a(f"buffer_load_dwordx4 {R(32+4*t)}, v{vKo}, {S(sWB)}, {so_} offen offset:{896*(t%4)}{WP}")
    a.label("L_now")
    NB2 = NPRE + NMID
    for idx in range(NPRE, NB2): vload(idx)
    a(f"""
    s_cmp_eq_u32 s{sW}, 3
    s_cbranch_scc1 L_ldgate
    """)
    a.label("L_sm")
    a("s_nop 1")
    for r in range(4): a(f"v_permlane32_swap_b32 v{acc[0]+r}, v{acc[1]+r}")
    for r in range(4): a(f"v_permlane32_swap_b32 v{acc[2]+r}, v{acc[3]+r}")
    for r in range(4): a(f"v_add_f32_dpp v{vS+r}, v{acc[1]+r}, v{acc[0]+r} row_ror:8 {DPPF}")
    for r in range(4): a(f"v_add_f32_dpp v{vS+4+r}, v{acc[3]+r}, v{acc[2]+r} row_ror:8 {DPPF}")
    for k in range(0, 8, 2): a(f"v_cvt_pk_bf16_f32 v{vA+k//2}, v{vS+k}, v{vS+k+1}")
    for k in range(4): a(f"v_mov_b32_dpp v{vA+k}, v{vA+k} row_ror:8 row_mask:0xf bank_mask:0xc")
    for k in range(0, 8, 2):
        a(f"v_lshlrev_b32 v{vS+k}, 16, v{vA+k//2}")
        a(f"v_and_b32 v{vS+k+1}, s{sHI}, v{vA+k//2}")
    m, t1, l, mc = vA, vA + 1, vA + 2, vA + 3
    a(f"""
    v_max3_f32 v{m}, v{vS}, v{vS+1}, v{vS+2}
    v_max3_f32 v{t1}, v{vS+3}, v{vS+4}, v{vS+5}
    v_max3_f32 v{m}, v{m}, v{vS+6}, v{vS+7}
    v_max_f32 v{m}, v{m}, v{t1}
    v_mov_b32 v{t1}, v{m}
    v_permlane16_swap_b32 v{m}, v{t1}
    v_max_f32 v{m}, v{m}, v{t1}
    v_mov_b32 v{t1}, v{m}
    v_permlane32_swap_b32 v{m}, v{t1}
    v_max_f32 v{m}, v{m}, v{t1}
    v_mul_f32 v{mc}, s{sC}, v{m}
    """)
    for k in range(8): a(f"v_fma_f32 v{vS+k}, v{vS+k}, s{sC}, -v{mc}")
    for k in range(8): a(f"v_exp_f32 v{vS+k}, v{vS+k}")
    a(f"""
    v_add_f32 v{l}, v{vS}, v{vS+1}
    v_add_f32 v{t1}, v{vS+2}, v{vS+3}
    v_add_f32 v{l}, v{l}, v{vS+4}
    v_add_f32 v{t1}, v{t1}, v{vS+5}
    v_add_f32 v{l}, v{l}, v{vS+6}
    v_add_f32 v{t1}, v{t1}, v{vS+7}
    v_add_f32 v{l}, v{l}, v{t1}
    v_mov_b32 v{t1}, v{l}
    v_permlane16_swap_b32 v{l}, v{t1}
    v_add_f32 v{l}, v{l}, v{t1}
    v_mov_b32 v{t1}, v{l}
    v_permlane32_swap_b32 v{l}, v{t1}
    v_add_f32 v{t1}, v{l}, v{t1}
    s_lshl_b32 s{sT0}, s{sW}, 3
    v_mov_b32 v{vT}, s{sT0}
    ds_write_b64 v{vT}, {R(m,2)} offset:{L_ML}
    v_and_b32 v{vT}, 15, v{vL}
    v_lshlrev_b32 v{vT}, 3, v{vT}
    v_mov_b32 v{l}, 0
    s_waitcnt lgkmcnt(0)
    s_barrier
    ds_read_b64 {R(vO+4,2)}, v{vT} offset:{L_ML}
    ds_read_b32 v{vKo}, v{l} offset:{L_TAG}
    """)
    for idx in range(NB2, 16): vload(idx)
    a("s_waitcnt lgkmcnt(0)")
    a(f"v_readfirstlane_b32 s{sTag}, v{vKo}")
    stamp(2)
    mi, li, M, L = vO + 4, vO + 5, vO, vO + 2
    a(f"v_mov_b32 v{M}, v{mi}")
    for k in (8, 4, 2, 1): a(f"v_max_f32_dpp v{M}, v{M}, v{M} row_ror:{k} {DPPF}")
    a(f"""
    v_sub_f32 v{m}, v{m}, v{M}
    v_mul_f32 v{m}, s{sC}, v{m}
    v_exp_f32 v{m}, v{m}
    s_cmp_eq_u32 s{sW}, 2
    s_cbranch_scc1 L_stat
    """)
    a.label("L_nostat")
    a(f"""
    v_and_b32 v{t1}, 8, v{vL}
    v_cmp_ne_u32 vcc, 0, v{t1}
    v_mov_b32 v{t1}, s{sHI}
    v_cndmask_b32 v{t1}, 0, v{t1}, vcc
    """)
    for k in range(8): a(f"v_mul_f32 v{vS+k}, v{vS+k}, v{m}")
    for k in range(8):
        tt = vA + 4 + (k & 3)
        a(f"v_cvt_pk_bf16_f32 v{tt}, v{vS+k}, v{vS+k}")
        a(f"v_and_b32 v{tt}, v{t1}, v{tt}")
        a(f"v_sub_f32 v{vS+k}, v{vS+k}, v{tt}")
        a(f"v_cvt_pk_bf16_f32 v{vS+k}, v{vS+k}, v{vS+k}")
    for t in range(4):
        ab = vA + 4 * (t & 1)
        for r in range(4): a(f"v_and_b32 v{ab+r}, v{vS+t}, v{vMask+r}")
        a(f"s_waitcnt vmcnt({14-2*t})")
        for hf in range(2):
            c = "0" if t == 0 else R(vO + 4 * hf)
            a(f"v_mfma_f32_16x16x32_bf16 {R(vO+4*hf)}, {R(ab)}, {R(64+4*(2*t+hf))}, {c}")
    stamp(3)
    for t in range(4):
        for r in range(4): a(f"v_and_b32 v{64+4*t+r}, v{vS+4+t}, v{vMask+r}")
    g, n = vA, vA + 1
    vTag = vKo; vSel = vVo
    a(f"""
    v_lshrrev_b32 v{g}, 4, v{vL}
    v_and_b32 v{n}, 15, v{vL}
    s_lshl_b32 s{sT0}, s{sW}, 10
    v_lshrrev_b32 v83, 5, v{vL}
    v_lshlrev_b32 v83, 9, v83
    v_lshl_add_u32 v83, v{n}, 5, v83
    v_and_b32 v{vT}, 16, v{vL}
    v_add3_u32 v83, v83, v{vT}, s{sT0}
    v_and_b32 v82, 31, v{vL}
    v_lshlrev_b32 v82, 2, v82
    v_lshrrev_b32 v81, 5, v{vL}
    v_lshl_add_u32 v81, v81, 13, v82
    s_and_b32 s{sT1}, s{sW}, 7
    s_lshl_b32 s{sT0}, s{sT1}, 7
    v_add_u32 v81, s{sT0}, v81
    v_and_b32 v{vSel}, 3, v{vL}
    v_add_u32 v{vSel}, 0x07060500, v{vSel}
    v_mov_b32 v80, 0
    s_lshl_b32 s{sP0}, s{sBH}, 3
    s_add_u32 s{sP0}, s{sP0}, s{sT1}
    s_lshl_b32 s{sP0}, s{sP0}, 3
    s_add_u32 s{sP0}, s{sP0}, s{sS}
    s_lshl_b32 s{sP0}, s{sP0}, 7
    s_add_u32 s{sP0}, s{sP0}, {OB_OFF}
    s_movk_i32 s{sRed}, 99
    s_cmp_eq_u32 s{sRole}, 1
    s_cbranch_scc1 L_mid1
    s_cmp_eq_u32 s{sRole}, 2
    s_cbranch_scc1 L_mid2
    s_cmp_eq_u32 s{sW}, 0
    s_cbranch_scc1 L_mid3
    s_cmp_eq_u32 s{sW}, 3
    s_cbranch_scc1 L_gate
    """)
    a.label("L_pv2"); a.forget()
    for t in range(4):
        a(f"s_waitcnt vmcnt({6-2*t})")
        for hf in range(2):
            a(f"v_mfma_f32_16x16x32_bf16 {R(vO+4*hf)}, {R(64+4*t)}, {R(4*(2*t+hf))}, {R(vO+4*hf)}")
    a(f"s_cmp_lt_u32 s{sW}, 8")
    for r in range(4): a(f"v_permlane32_swap_b32 v{vO+r}, v{vO+4+r}")
    for r in range(4): a(f"v_add_f32 v{vO+r}, v{vO+r}, v{vO+4+r}")
    a(f"""
    ds_write_b128 v83, {R(vO)} offset:{L_OW}
    s_cbranch_scc1 L_low
    s_waitcnt lgkmcnt(0)
    s_barrier
    """)
    for i in range(4): a(f"ds_read2st64_b32 {R(2*i,2)}, v81 offset0:{L_OW//256+8*i} offset1:{L_OW//256+8*i+4}")
    a(f"""
    s_waitcnt lgkmcnt(2)
    v_add_f32 v0, v0, v1
    v_add_f32 v2, v2, v3
    s_waitcnt lgkmcnt(0)
    v_add_f32 v4, v4, v5
    v_add_f32 v6, v6, v7
    v_add_f32 v0, v0, v2
    v_add_f32 v4, v4, v6
    v_add_f32 v0, v0, v4
    v_mov_b32 v1, v0
    v_permlane32_swap_b32 v0, v1
    v_add_f32 v0, v0, v1
    v_perm_b32 v0, v0, v{vTag}, v{vSel}
    s_mov_b32 exec_hi, 0
    buffer_store_dword v0, v82, {S(sWS)}, s{sP0} offen sc1
    """)
    stamp(4)
    endpgm()
    a.label("L_low"); a.forget()
    a(f"""
    s_cmp_eq_u32 s{sRole}, 1
    s_cbranch_scc1 L_gemv1
    s_waitcnt lgkmcnt(0)
    s_barrier
    """)
    if xs: endpgm()
    a(f"""
    s_cmp_lt_u32 s{sRed}, 28
    s_cbranch_scc1 L_reduce
    s_cmp_eq_u32 s{sRed}, 28
    s_cbranch_scc1 L_epoch
    """)
    endpgm()

    a.label("L_gemv1"); a.forget()
    cf = 123
    def oload(): a(f"buffer_load_dwordx4 {R(0)}, v122, {S(sWS)}, s{sP1} offen sc1")
    a(f"s_mov_b32 s{sCnt}, 0")
    a.label("L_stchk")
    a(f"""
    v_cmp_ne_u32 vcc, s{sTag}, v85
    v_cmp_ne_u32 {S(sM,2)}, s{sTag}, v87
    s_or_b64 vcc, vcc, {S(sM,2)}
    s_cbranch_vccz L_stok
    s_add_u32 s{sCnt}, s{sCnt}, 1
    s_cmp_gt_u32 s{sCnt}, {LIM}
    s_cbranch_scc1 L_stok
    buffer_load_dwordx4 {R(84)}, v89, {S(sWS)}, s{sT3} offen sc1
    s_waitcnt vmcnt(0)
    s_branch L_stchk
    """)
    a.label("L_stok"); a.forget()
    M = vA
    a(f"v_mov_b32 v{M}, v84")
    for d in Q8: a(f"v_max_f32_dpp v{M}, v{M}, v{M} {d} {DPPF}")
    a(f"""
    v_sub_f32 v{cf}, v84, v{M}
    v_mul_f32 v{cf}, s{sC}, v{cf}
    v_exp_f32 v{cf}, v{cf}
    v_mul_f32 v{M}, v{cf}, v86
    """)
    for d in Q8: a(f"v_add_f32_dpp v{M}, v{M}, v{M} {d} {DPPF}")
    a(f"""
    v_rcp_f32 v{M}, v{M}
    v_mul_f32 v{cf}, v{cf}, v{M}
    s_mov_b32 s{sCnt}, 0
    s_cmp_eq_u32 s{sFF}, 0
    s_waitcnt lgkmcnt(0)
    s_barrier
    """)
    if xs: endpgm()
    oload()
    a(f"""
    ds_read_b64 {R(90,2)}, v80 offset:{L_GG}
    s_cbranch_scc1 L_nof
    ds_read_b128 {R(92)}, v120 offset:{L_F}
    """)
    a.label("L_nof")
    a("s_waitcnt lgkmcnt(0)")
    for r in range(4): a(f"v_mul_f32 v{92+r}, v{92+r}, v91")
    a("s_waitcnt vmcnt(0)")
    a.label("L_ochk"); a.forget()
    tag_chk(0, 4, 5)
    a(f"""
    s_cbranch_vccz L_ook
    s_mov_b64 exec, vcc
    """)
    oload()
    a(f"""
    s_mov_b64 exec, -1
    s_add_u32 s{sCnt}, s{sCnt}, 1
    s_waitcnt vmcnt({pipe})
    s_cmp_gt_u32 s{sCnt}, {LIM}
    s_cbranch_scc0 L_ochk
    """)
    a.label("L_ook"); a.forget()
    stamp(5)
    for r in range(4): a(f"v_mul_f32 v{24+r}, v{r}, v{cf}")
    for d in Q8:
        for r in range(4): a(f"v_add_f32_dpp v{24+r}, v{24+r}, v{24+r} {d} {DPPF}")
    for r in range(4): a(f"v_cvt_pk_bf16_f32 v{24+r}, v{24+r}, v{24+r}")
    for r in range(4): a(f"v_mov_b32_dpp v{28+r}, v{24+r} row_ror:8 {DPPF}")
    for t in range(8):
        ab = 8 + 4 * (t % 4)
        for r in range(4): a(f"v_and_b32 v{ab+r}, v{24+t}, v{vMask+r}")
        c = "0" if t == 0 else R(vO)
        a(f"v_mfma_f32_16x16x32_bf16 {R(vO)}, {R(ab)}, {R(32+4*t)}, {c}")
    a("s_mov_b32 exec_hi, 0")
    for r in range(4): a(f"v_fma_f32 v{vO+r}, v{vO+r}, v90, v{92+r}")
    tag_put(vO, vTag)
    a(f"buffer_store_dwordx4 {R(vO)}, v88, {S(sWS)}, s{sP2} offen sc1")
    stamp(6)
    endpgm()

    a.label("L_reduce"); a.forget()
    YL = 16 * YS
    def yload(i, base=None):
        per = 4096 // YL
        so_ = [sP1, sT1, sT2, sT3][i // per]
        a(f"buffer_load_dwordx4 {R(4*i if base is None else base+4*i)}, v84, {S(sWS)}, s{so_} offen offset:{YL*(i%per)} sc1")
    a(f"ds_read_b32 v91, v80 offset:{L_GG+4}")
    for i in range(8): yload(i)
    a(f"""
    s_mov_b32 s{sCnt}, 0
    s_mov_b32 s{sE}, 0
    s_waitcnt lgkmcnt(0)
    v_lshlrev_b32 v92, 16, v88
    v_and_b32 v93, s{sHI}, v88
    v_lshlrev_b32 v94, 16, v89
    v_and_b32 v95, s{sHI}, v89
    """)
    for r in range(4): a(f"v_mul_f32 v{92+r}, v{92+r}, v91")
    for r in range(4): a(f"v_mov_b32 v{36+r}, 0")
    a("s_waitcnt vmcnt(0)")
    a.label("L_ypoll"); a.forget()
    for i in range(8):
        a(f"s_bitcmp1_b32 s{sE}, {i}")
        a(f"s_cbranch_scc1 L_ys{i}")
        tag_chk(4*i, 32, 33)
        a(f"s_cbranch_vccz L_yd{i}")
        a("s_mov_b64 exec, vcc")
        yload(i)
        a("s_mov_b64 exec, -1")
        a(f"s_branch L_ys{i}")
        a.label(f"L_yd{i}")
        for r in range(4): a(f"v_add_f32 v{36+r}, v{36+r}, v{4*i+r}")
        a(f"s_bitset1_b32 s{sE}, {i}")
        a.label(f"L_ys{i}")
    a(f"""
    s_cmpk_eq_u32 s{sE}, 0xff
    s_cbranch_scc1 L_ypoll_ok
    s_add_u32 s{sCnt}, s{sCnt}, 1
    s_waitcnt vmcnt({pipe})
    s_cmp_gt_u32 s{sCnt}, {LIM}
    s_cbranch_scc0 L_ypoll
    """)
    a.label("L_ypoll_ok"); a.forget()
    stamp(7)
    a("s_nop 0")
    allred4(36, 0, ROW16)
    for r in range(4): a(f"v_add_f32 v{36+r}, v{36+r}, v{92+r}")
    a(f"""
    v_cvt_pk_bf16_f32 v36, v36, v37
    v_cvt_pk_bf16_f32 v37, v38, v39
    s_mov_b64 exec, {S(sM,2)}
    global_store_dwordx2 v90, {R(36,2)}, s[38:39]
    """)
    stamp(8)
    endpgm()
    a.label("L_epoch"); a.forget()
    a(f"""
    s_mov_b32 s{sCnt}, 0
    v_lshlrev_b32 v84, 4, v{vL}
    s_movk_i32 s{sT3}, {ST_OFF}
    """)
    a.label("L_fchk")
    for i in range(4):
        a(f"buffer_load_dwordx4 {R(32+4*i)}, v84, {S(sWS)}, s{sT3} offen offset:{1024*i} sc1")
    a("s_waitcnt vmcnt(0)")
    for i in range(4): a(f"v_xor_b32 v{33+4*i}, s{sTag}, v{33+4*i}")
    a(f"""
    v_or3_b32 v33, v33, v37, v41
    v_or_b32 v33, v33, v45
    v_cmp_ne_u32 vcc, 0, v33
    s_cbranch_vccz L_fok
    s_add_u32 s{sCnt}, s{sCnt}, 1
    s_cmp_gt_u32 s{sCnt}, {LIM}
    s_cbranch_scc0 L_fchk
    """)
    a.label("L_fok"); a.forget()
    a(f"""
    s_mov_b64 exec, 1
    buffer_store_dword v{vTag}, off, {S(sWS)}, 0 offset:{EP_OFF} sc1
    """)
    endpgm()

    a.label("L_stat"); a.forget()
    mi, li, M, L = vO + 4, vO + 5, vO, vO + 2
    a(f"""
    v_sub_f32 v{mi}, v{mi}, v{M}
    v_mul_f32 v{mi}, s{sC}, v{mi}
    v_exp_f32 v{mi}, v{mi}
    v_mul_f32 v{L}, v{li}, v{mi}
    """)
    for k in (8, 4, 2, 1): a(f"v_add_f32_dpp v{L}, v{L}, v{L} row_ror:{k} {DPPF}")
    a(f"""
    v_mov_b32 v{M+1}, s{sTag}
    v_mov_b32 v{L+1}, s{sTag}
    s_lshl_b32 s{sT0}, s{sBH}, 3
    s_add_u32 s{sT0}, s{sT0}, s{sS}
    s_lshl_b32 s{sT0}, s{sT0}, 4
    s_add_u32 s{sT0}, s{sT0}, {ST_OFF}
    s_mov_b64 exec, 1
    buffer_store_dwordx4 {R(M)}, off, {S(sWS)}, s{sT0} sc1
    s_mov_b64 exec, -1
    s_branch L_nostat
    """)
    a.label("L_mid1"); a.forget()
    a(f"""
    v_and_b32 v{vT}, 7, v{vL}
    v_lshlrev_b32 v89, 4, v{vT}
    s_lshl_b32 s{sT3}, s{sBH}, 7
    s_add_u32 s{sT3}, s{sT3}, {ST_OFF}
    v_lshlrev_b32 v122, 7, v{vT}
    v_lshl_add_u32 v122, v{g}, 5, v122
    v_bfe_u32 v{vT}, v{vL}, 3, 1
    v_lshl_add_u32 v122, v{vT}, 4, v122
    s_lshl_b32 s{sP1}, s{sBH}, 3
    s_add_u32 s{sP1}, s{sP1}, s{sS}
    s_lshl_b32 s{sP1}, s{sP1}, 10
    s_add_u32 s{sP1}, s{sP1}, {OB_OFF}
    buffer_load_dwordx4 {R(84)}, v89, {S(sWS)}, s{sT3} offen sc1
    s_and_b32 s{sT0}, s{sW}, 3
    s_cmp_lg_u32 s{sT0}, 0
    s_cbranch_scc1 L_mid1b
    buffer_load_dwordx4 {R(vS)}, v122, {S(sWS)}, s{sP1} offen sc1
    """)
    a.label("L_mid1b")
    a(f"""
    s_lshl_b32 s{sT1}, s{sT0}, 10
    v_lshlrev_b32 v120, 4, v{vL}
    v_add_u32 v120, s{sT1}, v120
    v_lshrrev_b32 v88, 1, v{n}
    v_mul_u32_u24 v88, {YST}, v88
    v_and_b32 v{vT}, 1, v{n}
    v_lshl_add_u32 v88, v{vT}, 5, v88
    v_and_b32 v{vT}, 16, v{vL}
    v_add_u32 v88, v88, v{vT}
    s_mul_i32 s{sP2}, s{sB}, 28
    s_lshl_b32 s{sT1}, s{sT0}, 3
    s_add_u32 s{sP2}, s{sP2}, s{sT1}
    s_mul_i32 s{sP2}, s{sP2}, {YST}
    s_lshl_b32 s{sT1}, s{sH}, 3
    s_add_u32 s{sT1}, s{sT1}, s{sS}
    s_lshl_b32 s{sT1}, s{sT1}, {YSH}
    s_add_u32 s{sP2}, s{sP2}, s{sT1}
    s_add_u32 s{sP2}, s{sP2}, {YB_OFF}
    s_cmp_eq_u32 s{sT0}, 3
    s_cselect_b32 s{sT0}, 8, 0
    v_and_b32 v{vT}, s{sT0}, v{vL}
    v_lshl_or_b32 v88, v{vT}, 27, v88
    v_mov_b32 v92, 0
    v_mov_b32 v93, 0
    v_mov_b32 v94, 0
    v_mov_b32 v95, 0
    s_branch L_pv2
    """)
    a.label("L_mid2"); a.forget()
    a(f"""
    v_lshlrev_b32 v{vT}, 5, v{g}
    ds_read_b128 {R(84)}, v{vT} offset:{L_R2}
    ds_read_b128 {R(88)}, v{vT} offset:{L_R2+16}
    s_waitcnt lgkmcnt(0)
    """)
    for t in range(8): a(f"v_cvt_pk_bf16_f32 v{84+t}, v{84+t}, v{84+t}")
    for t in range(8):
        ab = vA + 4 * (t & 1)
        for r in range(4): a(f"v_and_b32 v{ab+r}, v{84+t}, v{vMask+r}")
        c = "0" if t == 0 else R(92)
        a(f"v_mfma_f32_16x16x32_bf16 {R(92)}, {R(ab)}, {R(32+4*t)}, {c}")
    a(f"""
    s_and_b32 s{sT0}, s{sW}, 3
    s_lshl_b32 s{sT1}, s{sT0}, 10
    v_lshlrev_b32 v{vT}, 4, v{vL}
    v_add_u32 v{vT}, s{sT1}, v{vT}
    ds_write_b128 v{vT}, {R(92)} offset:{L_F}
    s_branch L_pv2
    """)
    a.label("L_mid3"); a.forget()
    if red == 2: a(f"""
    s_cmp_gt_u32 s{sH}, 3
    s_cbranch_scc1 L_pv2
    s_lshl_b32 s{sRed}, s{sH}, 3
    s_add_u32 s{sRed}, s{sRed}, s{sS}
    """)
    if red == 1: a(f"""
    s_cmp_gt_u32 s{sS}, 1
    s_cbranch_scc1 L_pv2
    s_lshl_b32 s{sRed}, s{sH}, 1
    s_add_u32 s{sRed}, s{sRed}, s{sS}
    """)
    if red == 3: a(f"""
    s_bitcmp0_b32 s{sS}, 0
    s_cbranch_scc1 L_pv2
    s_cmp_gt_u32 s{sH}, 7
    s_cbranch_scc1 L_pv2
    s_lshl_b32 s{sRed}, s{sH}, 2
    s_lshr_b32 s{sT0}, s{sS}, 1
    s_add_u32 s{sRed}, s{sRed}, s{sT0}
    """)
    a(f"""
    s_cmp_lt_u32 s{sRed}, 28
    s_cbranch_scc1 L_mid3b
    s_add_u32 s{sRed}, s{sRed}, s{sB}
    s_branch L_pv2
    """)
    a.label("L_mid3b")
    a(f"""
    v_lshlrev_b32 v84, {YSH}, v{n}
    v_lshl_add_u32 v84, v{g}, 4, v84
    s_mov_b32 s{sM}, 0x00010001
    s_mov_b32 s{sM+1}, 0x00010001
    v_lshlrev_b32 v{vT}, 3, v{g}
    s_lshl_b32 s{sT0}, s{sRed}, 5
    v_add_u32 v{vT}, s{sT0}, v{vT}
    s_mul_i32 s{sT0}, s{sB}, 896
    v_add_u32 v90, s{sT0}, v{vT}
    s_mul_i32 s{sP1}, s{sB}, 28
    s_add_u32 s{sP1}, s{sP1}, s{sRed}
    s_mul_i32 s{sP1}, s{sP1}, {YST}
    s_add_u32 s{sP1}, s{sP1}, {YB_OFF}
    s_add_u32 s{sT1}, s{sP1}, 4096
    s_add_u32 s{sT2}, s{sP1}, 8192
    s_add_u32 s{sT3}, s{sP1}, 12288
    global_load_dwordx2 {R(88,2)}, v{vT}, s[34:35]
    """)
    for i in range(8): yload(i, 32)
    a("s_branch L_pv2")
    a.label("L_gate"); a.forget()
    xa, ga = 32, 36
    a("v_mov_b32 v44, 0")
    for r in range(4):
        a(f"""
        v_lshlrev_b32 v40, 16, v{xa+r}
        v_and_b32 v41, s{sHI}, v{xa+r}
        v_lshlrev_b32 v42, 16, v{ga+r}
        v_and_b32 v43, s{sHI}, v{ga+r}
        v_mul_f32 v40, v40, v42
        v_mul_f32 v41, v41, v43
        v_cvt_pk_bf16_f32 v40, v40, v41
        v_lshlrev_b32 v41, 16, v40
        v_and_b32 v40, s{sHI}, v40
        v_add_f32 v44, v44, v41
        v_add_f32 v44, v44, v40
        """)
    for k in (8, 4, 2, 1): a(f"v_add_f32_dpp v44, v44, v44 row_ror:{k} {DPPF}")
    a(f"""
    v_mov_b32 v45, v44
    v_permlane16_swap_b32 v44, v45
    v_add_f32 v44, v44, v45
    v_mov_b32 v45, v44
    v_permlane32_swap_b32 v44, v45
    v_add_f32 v44, v44, v45
    v_cvt_pk_bf16_f32 v44, v44, v44
    v_and_b32 v44, s{sHI}, v44
    v_mul_f32 v44, {f32(-1.4426950408889634)}, v44
    v_exp_f32 v44, v44
    v_add_f32 v44, 1.0, v44
    v_rcp_f32 v44, v44
    v_cvt_pk_bf16_f32 v44, v44, v44
    v_and_b32 v44, s{sHI}, v44
    v_sub_f32 v45, 1.0, v44
    v_cvt_pk_bf16_f32 v45, v45, v45
    v_and_b32 v45, s{sHI}, v45
    ds_write_b64 v80, {R(44,2)} offset:{L_GG}
    s_branch L_pv2
    """)
    a.label("L_ldgate"); a.forget()
    for r in range(8): a(f"v_mov_b32 v{32+r}, 0")
    a(f"""
    v_lshlrev_b32 v{vA+1}, 4, v{vL}
    s_mul_i32 s{sT0}, s{sB}, 896
    v_add_u32 v{vA}, s{sT0}, v{vA+1}
    s_mov_b32 exec_hi, 0x00ffffff
    global_load_dwordx4 {R(32)}, v{vA}, s[16:17]
    global_load_dwordx4 {R(36)}, v{vA+1}, s[36:37]
    s_mov_b64 exec, -1
    s_branch L_sm
    """)

    n, g = 120, 121
    a.label("L_stage1"); a.forget()
    SO = [None, 60, 61, 62, 64, 65, 66, 67, 69, 70, 71, 76, 77, 78]
    sStr = sP1
    a(f"""
    s_movk_i32 s{sStr}, 3584
    s_mov_b32 s{sP0}, {SH_OFF}
    s_cmp_eq_u32 s{sW}, 0
    s_cselect_b32 s{sStr}, 8192, s{sStr}
    s_cselect_b32 s{sP2}, 9, 8
    s_cselect_b32 s{sP0}, {SQ_OFF}, s{sP0}
    s_mul_i32 s{sCnt}, s{sStr}, 448
    s_lshr_b32 s{sT1}, s{sJJ}, 1
    s_mul_i32 s{sT2}, s{sT1}, 56
    s_mul_i32 s{sT2}, s{sT2}, s{sStr}
    s_lshl_b32 s{sT3}, s{sH}, s{sP2}
    s_add_u32 s{sT2}, s{sT2}, s{sT3}
    s_and_b32 s{sT3}, s{sJJ}, 1
    s_lshl_b32 s{sT0}, s{sT3}, 8
    s_add_u32 s{sT2}, s{sT2}, s{sT0}
    s_sub_u32 s{sWA+2}, s{sCnt}, s{sT2}
    s_mul_i32 s{sT0}, s{sStr}, 14
    v_mul_u32_u24 v{vT}, s{sT0}, v{g}
    v_lshl_add_u32 v{vT}, v{n}, 4, v{vT}
    s_mov_b32 s{SO[1]}, s{sStr}
    """)
    for t in range(2, 14): a(f"s_add_u32 s{SO[t]}, s{SO[t-1]}, s{sStr}")
    a(f"""
    v_lshrrev_b32 v{vS}, 3, v{n}
    v_mul_u32_u24 v{vS}, 896, v{vS}
    v_mad_u32_u24 v{vS}, v{g}, 28, v{vS}
    s_mul_i32 s{sT0}, s{sT1}, 112
    v_add_u32 v{vS}, s{sT0}, v{vS}
    v_mov_b32 v{vS+1}, 0
    s_cmp_eq_u32 s{sW}, 0
    s_waitcnt lgkmcnt(0)
    s_cselect_b32 s{sWA}, s22, s28
    s_cselect_b32 s{sWA+1}, s23, s29
    s_add_u32 s{sWA}, s{sWA}, s{sT2}
    s_addc_u32 s{sWA+1}, s{sWA+1}, 0
    """)
    for t in range(14):
        a(f"buffer_load_dwordx4 {R(4*t)}, v{vT}, {S(sWA)}, {('s%d' % SO[t]) if t else '0'} offen{WQP}")
    a(f"""
    global_load_dwordx4 {R(56)}, v{vS}, s[16:17]
    global_load_dwordx3 {R(60,3)}, v{vS}, s[16:17] offset:16
    global_load_dword v63, v{vS+1}, s[42:43] offset:{EP_OFF} sc1
    s_add_u32 s{sK}, s18, s{sKV}
    s_addc_u32 s{sK+1}, s19, 0
    """)
    setup2()
    a(f"""
    v_lshrrev_b32 v{vT}, 1, v{g}
    v_lshlrev_b32 v{vT}, 13, v{vT}
    v_lshl_add_u32 v{vT}, v{n}, 5, v{vT}
    v_and_b32 v{vS}, 16, v{vL}
    v_add_u32 v{vT}, v{vT}, v{vS}
    s_lshl_b32 s{sT0}, s{sH}, 14
    s_add_u32 s{sP0}, s{sP0}, s{sT0}
    s_lshl_b32 s{sT0}, s{sB}, 13
    s_add_u32 s{sP1}, s{sP0}, s{sT0}
    s_lshl_b32 s{sT2}, s{sT1}, 10
    s_add_u32 s{sP0}, s{sP0}, s{sT2}
    s_lshl_b32 s{sT2}, s{sT3}, 9
    s_add_u32 s{sP0}, s{sP0}, s{sT2}
    s_mov_b32 s{sT2}, 0x01000100
    s_mov_b32 s{sT3}, 0x03020302
    v_lshlrev_b32 v{vQ+1}, 4, v{vL}
    s_add_u32 s{sP2}, s{sP1}, 4096
    s_waitcnt vmcnt(0)
    v_and_b32 v{vQ}, 0x7f7f7f7f, v63
    v_add_u32 v{vQ}, 0x671b3501, v{vQ}
    v_xor_b32 v63, 0xe79b3501, v63
    v_and_b32 v63, 0x80808080, v63
    v_xor_b32 v{vQ}, v{vQ}, v63
    v_mov_b32 v63, 0
    v_readfirstlane_b32 s{sTag}, v{vQ}
    ds_write_b32 v63, v{vQ} offset:{L_TAG}
    """)
    stamp(5)
    for t in range(14):
        ab = 112 if t & 1 else vA
        a(f"v_perm_b32 v{vS+4}, v{56+t//2}, v{56+t//2}, s{sT3 if t & 1 else sT2}")
        for r in range(4): a(f"v_and_b32 v{ab+r}, v{vS+4}, v{vMask+r}")
        c = "0" if t == 0 else R(vS)
        a(f"v_mfma_f32_16x16x32_bf16 {R(vS)}, {R(ab)}, {R(4*t)}, {c}")
    a(f"s_cmp_eq_u32 s{sW}, 1")
    tag_put(vS, vQ)
    a(f"buffer_store_dwordx4 {R(vS)}, v{vT}, {S(sWS)}, s{sP0} offen sc1")
    stamp(6)
    a("s_cbranch_scc1 L_hgather")
    def qload(i): a(f"buffer_load_dwordx4 {R(64+4*i)}, v{vQ+1}, {S(sWS)}, s{sP1 if i < 4 else sP2} offen offset:{1024*(i%4)} sc1")
    for f in range(KS): kload(f)
    for i in range(8): qload(i)
    poll_many("L_qp", [(64+4*i, (lambda i=i: qload(i))) for i in range(8)], vQ + 4, vQ + 5)
    for f in range(KS, 16): kload(f)
    for i in range(1, 8):
        for r in range(4): a(f"v_add_f32 v{64+r}, v{64+r}, v{64+4*i+r}")
    a(f"""
    v_cvt_pk_bf16_f32 v{vQ}, v64, v65
    v_cvt_pk_bf16_f32 v{vQ+1}, v66, v67
    v_lshlrev_b32 v{vT}, 3, v{vL}
    ds_write_b64 v{vT}, {R(vQ,2)} offset:{L_Q}
    """)
    stamp(10)
    a("s_branch L_kdone")
    a.label("L_hgather"); a.forget()
    for f in range(16): kload(f)
    h = vS
    a(f"""
    v_and_b32 v{vA}, 7, v{vL}
    v_lshrrev_b32 v{vQ}, 3, v{vL}
    v_lshlrev_b32 v{vQ}, 10, v{vQ}
    v_lshl_add_u32 v{vQ}, v{vA}, 4, v{vQ}
    s_lshl_b32 s{sT0}, s{sS}, 6
    s_add_u32 s{sP1}, s{sP1}, s{sT0}
    s_lshl_b32 s{sT1}, s{sH}, 8
    s_lshl_b32 s{sT0}, s{sS}, 5
    s_add_u32 s{sT1}, s{sT1}, s{sT0}
    v_lshlrev_b32 v{vT}, 3, v{vA}
    v_add_u32 v{vT}, s{sT1}, v{vT}
    global_load_dwordx2 {R(118,2)}, v{vT}, s[30:31]
    """)
    def hload(): a(f"buffer_load_dwordx4 {R(h)}, v{vQ}, {S(sWS)}, s{sP1} offen sc1")
    hload()
    poll_many("L_hp", [(h, hload)], vQ + 4, vQ + 5)
    allred4(h, h + 4, ['ror:8', 'p16', 'p32'])
    rnd2(h, h + 1, vQ + 4); rnd2(h + 2, h + 3, vQ + 5)
    a(f"""
    v_lshlrev_b32 v{h+4}, 16, v118
    v_and_b32 v{h+5}, s{sHI}, v118
    v_lshlrev_b32 v{h+6}, 16, v119
    v_and_b32 v{h+7}, s{sHI}, v119
    """)
    for r in range(4): a(f"v_add_f32 v{h+r}, v{h+r}, v{h+4+r}")
    rnd2(h, h + 1, vQ + 4); rnd2(h + 2, h + 3, vQ + 5)
    for r in range(4): a(f"v_max_f32 v{h+r}, 0, v{h+r}")
    for r in range(4): a(f"v_mul_f32 v{h+r}, v{h+r}, v{h+r}")
    a(f"""
    v_lshlrev_b32 v{vT}, 4, v{vA}
    ds_write_b128 v{vT}, {R(h)} offset:{L_R2}
    s_nop 1
    s_branch L_kdone
    """)
    if stamps:
        a.label("L_stampout"); a.forget()
        if amp >= 0:
            if amp == 99: a("s_movk_i32 s11, 10000")
            else:
                a("s_cmp_eq_u32 s%d, 0" % STR[amp])
                a("s_cbranch_scc1 L_end")
                a("s_sub_u32 s11, s%d, s15" % STR[amp])
                a("s_min_u32 s11, s11, 20000")
                a("s_lshl_b32 s11, s11, 3")
            a.label("L_amp")
            a("s_sleep 8")
            a("s_memrealtime s[%d:%d]" % (sTS, sTS + 1))
            a("s_waitcnt lgkmcnt(0)")
            a("s_sub_u32 s12, s%d, s15" % sTS)
            a("s_cmp_lt_u32 s12, s11")
            a("s_cbranch_scc1 L_amp")
        else:
            a("s_mov_b64 exec, -1")
            a("s_waitcnt vmcnt(0)")
            for i, r in enumerate(STR): a("v_writelane_b32 v0, s%d, %d" % (r, i))
            a(f"v_lshlrev_b32 v1, 2, v{vL}")
            a("s_mov_b64 exec, 0xfff")
            a("buffer_store_dword v0, v1, %s, s%d offen" % (S(sWS), sTSo))
    a.label("L_end")
    a("s_endpgm")
    if lst >= 2:
        a.raw(".globl tiny_kernel\n.p2align 8\n.type tiny_kernel,@function\ntiny_kernel:\n    s_endpgm")
    a.raw('.section .rodata,"a"')
    if lst >= 2:
        a.raw(".p2align 6\n.amdhsa_kernel tiny_kernel\n  .amdhsa_next_free_vgpr 8\n  .amdhsa_next_free_sgpr 16\n  .amdhsa_accum_offset 8\n  .amdhsa_group_segment_fixed_size 0\n  .amdhsa_kernarg_size 112\n  .amdhsa_user_sgpr_count 2\n  .amdhsa_user_sgpr_kernarg_segment_ptr 1\n  .amdhsa_system_sgpr_workgroup_id_x 1\n.end_amdhsa_kernel")
    a.raw(".p2align 6")
    a.raw(".amdhsa_kernel %s_kernel" % NAME)
    a.raw("  .amdhsa_next_free_vgpr 128")
    a.raw("  .amdhsa_next_free_sgpr 102")
    a.raw("  .amdhsa_accum_offset 128")
    a.raw("  .amdhsa_group_segment_fixed_size 0")
    a.raw("  .amdhsa_kernarg_size 112")
    a.raw("  .amdhsa_user_sgpr_count 2")
    a.raw("  .amdhsa_user_sgpr_kernarg_segment_ptr 1")
    a.raw("  .amdhsa_system_sgpr_workgroup_id_x 1")
    a.raw("  .amdhsa_float_denorm_mode_32 3")
    a.raw(".end_amdhsa_kernel")
    return a.text()

if __name__ == "__main__":
    import argparse, inspect
    ap = argparse.ArgumentParser()
    ap.add_argument("-o", default="cdna_kernels/%s.s" % NAME)
    sig = inspect.signature(gen)
    for k, p in sig.parameters.items():
        if isinstance(p.default, bool): ap.add_argument("--" + k, action="store_true")
        elif isinstance(p.default, int): ap.add_argument("--" + k, type=int, default=p.default)
        else: ap.add_argument("--" + k, default=p.default)
    x = vars(ap.parse_args()); o = x.pop("o")
    x = {k: ("" if v == "none" else v) for k, v in x.items()}
    open(o, "w").write(gen(**x))
```

```python
import sys, struct
from asmlib import Asm

NAME = "gated_mix__mha_block_cached__dense_activation_squared_relu__decode"
def f32(x): return "0x%08x" % struct.unpack('<I', struct.pack('<f', x))[0]

def gen(kv="nt", wq="nt", w2="nt", stamps=False, NPRE=2, NMID=2, swz=1, amp=-1, xs=0, wmap=4, pipe=0, fpar=0, red=2, ypad=0, yskew=256, KS=16, early=0, pf=0, cpf=0, lst=0, BL=0, b0=0, ack=0, psl=0, ywarm=1, hx=0):
    stamps = stamps or amp >= 0
    a = Asm()
    KV = (" " + kv) if kv else ""
    WQP = (" " + wq) if wq else ""
    WP = (" " + w2) if w2 else ""
    YS = 128 if ypad else 64
    YSH = 7 if ypad else 6
    YST = 128 * YS + yskew
    EP_OFF = 0; ST_OFF = 4096; OB_OFF = 8192; SQ_OFF = OB_OFF + 262144; SH_OFF = SQ_OFF + 262144
    YB_OFF = SH_OFF + 262144; TS_OFF = 1835008; WS_USED = 2097152
    assert YB_OFF + 56 * YST <= TS_OFF
    L_Q = 0; L_ML = 512; L_R2 = 640; L_GG = 768; L_TAG = 776; L_CNT = 780; L_YP = 1024; L_F = 1024; L_OW = 5120; OWS = 1024; LDS = L_OW + 16 * OWS
    sCk0, sCk1, sH, sB, sS, sJJ, sBH, sW = 3, 4, 5, 6, 7, 8, 9, 10
    sT0, sT1, sT2, sT3 = 11, 12, 13, 14
    sK, sV, sWS, sWA, sWB = 44, 48, 52, 56, 64
    sSel = [40, 41, 60, 61]; sE = 62; sFF = 63; sHF = 1
    sKV = 68
    sKT = 72; sVG = 76; sC = 78; sHI = 79; sM = 80
    sP0, sP1, sP2 = 82, 83, 84
    sRole = 85; sRed = 86; sCnt = 87
    sTS = 88; sTSo = 90; s3584 = 91; sTag = 92
    vMask = 96; vS = 100; vQ = 108; vO = 108; vA = 116; vKo = 124; vVo = 125; vL = 126; vT = 127
    LIM = 1 << 23
    def R(b, n=4): return "v[%d:%d]" % (b, b + n - 1)
    def S(b, n=4): return "s[%d:%d]" % (b, b + n - 1)
    STR = [26, 27, 93, 94, 95, 96, 97, 98, 99, 100, 101, 15]
    def stamp(idx):
        if not stamps: return
        a("s_memrealtime s[%d:%d]" % (sTS, sTS + 1))
        a("s_waitcnt lgkmcnt(0)")
        a("s_mov_b32 s%d, s%d" % (STR[idx], sTS))
    def endpgm():
        if stamps: a("s_branch L_stampout")
        else: a("s_endpgm")
    DPPF = "row_mask:0xf bank_mask:0xf"
    ROW16 = ['ror:8', 'ror:4', 'ror:2', 'ror:1']
    Q8 = ("quad_perm:[1,0,3,2]", "quad_perm:[2,3,0,1]", "row_half_mirror")
    def kload(f):
        u, i = f >> 2, f & 3
        a(f"buffer_load_dwordx4 {R(4*f)}, v{vKo}, {S(sK)}, s{sKT+u} offen offset:{128*i}{KV}")
    def vload(idx):
        G, t, hf = idx >> 3, (idx >> 1) & 3, idx & 1
        base = 64 if G == 0 else 0
        a(f"buffer_load_dwordx4 {R(base+4*(2*t+hf))}, v{vVo}, {S(sV)}, s{sVG+G} offen offset:{512*t+256*hf}{KV}")
    def allred4(base, tmp, steps, op="add"):
        for st in steps:
            if st.startswith('ror'):
                for r in range(4): a(f"v_{op}_f32_dpp v{base+r}, v{base+r}, v{base+r} row_{st} {DPPF}")
            else:
                sw = "v_permlane16_swap_b32" if st == 'p16' else "v_permlane32_swap_b32"
                for r in range(4): a(f"v_mov_b32 v{tmp+r}, v{base+r}")
                for r in range(4): a(f"{sw} v{base+r}, v{tmp+r}")
                for r in range(4): a(f"v_{op}_f32 v{base+r}, v{base+r}, v{tmp+r}")
    def rnd2(x, y, tmp):
        a(f"v_cvt_pk_bf16_f32 v{tmp}, v{x}, v{y}")
        a(f"v_lshlrev_b32 v{x}, 16, v{tmp}")
        a(f"v_and_b32 v{y}, s{sHI}, v{tmp}")
    def tag_put(base, vtag):
        for r in range(4): a(f"v_perm_b32 v{base+r}, v{base+r}, v{vtag}, s{sSel[r]}")
    def tag_chk(base, t0, t1):
        a(f"v_perm_b32 v{t0}, v{base+1}, v{base}, s{sCk0}")
        a(f"v_perm_b32 v{t1}, v{base+3}, v{base+2}, s{sCk1}")
        a(f"v_or_b32 v{t0}, v{t0}, v{t1}")
        a(f"v_cmp_ne_u32 vcc, s{sTag}, v{t0}")
    def poll_many(lbl, loads, t0, t1):
        a(f"s_mov_b32 s{sCnt}, 0")
        a.label(lbl); a.forget()
        a("s_waitcnt vmcnt(0)")
        a(f"s_mov_b32 s{sE}, 0")
        for i, (base, fn) in enumerate(loads):
            tag_chk(base, t0, t1)
            a(f"s_cbranch_vccz {lbl}_s{i}")
            a("s_mov_b64 exec, vcc")
            fn()
            a("s_mov_b64 exec, -1")
            a(f"s_mov_b32 s{sE}, 1")
            a.label(f"{lbl}_s{i}")
        a(f"""
        s_cmp_eq_u32 s{sE}, 0
        s_cbranch_scc1 {lbl}_ok
        s_add_u32 s{sCnt}, s{sCnt}, 1
        s_cmp_gt_u32 s{sCnt}, {LIM}
        s_cbranch_scc0 {lbl}
        s_waitcnt vmcnt(0)
        """)
        a.label(lbl + "_ok"); a.forget()
    def setup2():
        a(f"""
        s_add_u32 s{sV}, s20, s{sKV}
        s_addc_u32 s{sV+1}, s21, 0
        s_mov_b32 s{sWS}, s42
        s_mov_b32 s{sWS+1}, s43
        """)
        if stamps:
            for r in STR[:11]: a("s_mov_b32 s%d, 0" % r)
        tmp = vS
        a(f"""
        v_and_b32 v{tmp}, 1, v{vL}
        v_lshlrev_b32 v{tmp}, 4, v{tmp}
        v_mov_b32 v{tmp+1}, 0xffff
        v_lshlrev_b32 v{tmp+1}, v{tmp}, v{tmp+1}
        v_bfe_u32 v{tmp+2}, v{vL}, 1, 2
        """)
        for r in range(4):
            a(f"v_cmp_eq_u32 vcc, {r}, v{tmp+2}")
            a(f"s_mov_b32 s{sSel[r]}, {0x07060500 + r}")
            a(f"v_cndmask_b32 v{vMask+r}, 0, v{tmp+1}, vcc")
        a(f"""
        s_mov_b32 s{sCk0}, 0x0c0c0400
        s_mov_b32 s{sCk1}, 0x04000c0c
        """)

    if lst == 2: a.raw("; @launch kernel=tiny_kernel grid=(1,1,1) block=(64,1,1) lds=0")
    if lst: a.raw("; @launch kernel=%s_kernel grid=(256,1,1) block=(1024,1,1) lds=%d" % (NAME, LDS))
    else: a.raw("; @launch grid=(256,1,1) block=(1024,1,1) lds=%d" % LDS)
    if lst == 3: a.raw("; @launch kernel=tiny_kernel grid=(1,1,1) block=(64,1,1) lds=0")
    a.raw('.amdgcn_target "amdgcn-amd-amdhsa--gfx950"')
    a.raw(".text")
    a.raw(".globl %s_kernel" % NAME)
    a.raw(".p2align 8")
    a.raw(".type %s_kernel,@function" % NAME)
    a.raw("%s_kernel:" % NAME)
    a("s_cmp_ge_u32 s2, 256")
    a("s_cbranch_scc1 L_end")
    stamp(11)
    a("s_load_dwordx16 s[16:31], s[0:1], 0")
    a("s_load_dwordx8 s[32:39], s[0:1], 64")
    a("s_load_dwordx2 s[42:43], s[0:1], 104")
    n, g = 120, 121
    sX, sJ = sCk0, sCk1
    a(f"""
    v_lshrrev_b32 v{vT}, 6, v0
    v_and_b32 v{vL}, 63, v0
    s_and_b32 s{sX}, s2, 7
    v_readfirstlane_b32 s{sW}, v{vT}
    s_lshr_b32 s{sJ}, s2, 3
    """)
    if wmap == 1: a(f"""
    s_lshr_b32 s{sT0}, s{sJ}, 4
    s_lshl_b32 s{sH}, s{sX}, 1
    s_add_u32 s{sH}, s{sH}, s{sT0}
    s_lshr_b32 s{sB}, s{sJ}, 3
    s_and_b32 s{sB}, s{sB}, 1
    s_and_b32 s{sS}, s{sJ}, 7
    """)
    elif wmap == 0: a(f"""
    s_and_b32 s{sH}, s{sJ}, 15
    s_lshr_b32 s{sB}, s{sJ}, 4
    s_xor_b32 s{sS}, s{sX}, {fpar}
    """)
    elif wmap == 4: a(f"""
    s_and_b32 s{sT0}, s{sJ}, 3
    s_lshr_b32 s{sH}, s{sX}, 1
    s_lshl_b32 s{sH}, s{sH}, 2
    s_add_u32 s{sH}, s{sH}, s{sT0}
    s_lshr_b32 s{sB}, s{sJ}, 4
    s_lshr_b32 s{sS}, s{sJ}, 1
    s_and_b32 s{sS}, s{sS}, 6
    s_and_b32 s{sT0}, s{sX}, 1
    s_xor_b32 s{sT0}, s{sT0}, {fpar}
    s_or_b32 s{sS}, s{sS}, s{sT0}
    """)
    a(f"""
    s_lshl_b32 s{sJJ}, s{sB}, 3
    s_add_u32 s{sJJ}, s{sJJ}, s{sS}
    s_lshl_b32 s{sBH}, s{sB}, 4
    s_add_u32 s{sBH}, s{sBH}, s{sH}
    s_and_b32 s{sT0}, s{sS}, 1
    s_lshl_b32 s{sT0}, s{sT0}, 4
    s_xor_b32 s{sHF}, s{sH}, {hx}
    s_or_b32 s{sT0}, s{sT0}, s{sHF}
    s_cmp_lt_u32 s{sT0}, 14
    s_cselect_b32 s{sFF}, 1, 0
    v_and_b32 v{n}, 15, v{vL}
    v_lshrrev_b32 v{g}, 4, v{vL}
    v_and_b32 v{vT}, 7, v{vL}
    v_lshlrev_b32 v{vKo}, 9, v{vT}
    v_lshl_add_u32 v{vKo}, v{g}, 4, v{vKo}
    v_and_b32 v{vT}, 8, v{vL}
    v_lshl_add_u32 v{vKo}, v{vT}, 3, v{vKo}
    s_lshl_b32 s{sT2}, s{sW}, 14
    s_and_b32 s{sT3}, s{sW}, {3 if swz else 0}
    s_lshl_b32 s{sT1}, s{sT3}, 12
    s_or_b32 s{sKT}, s{sT2}, s{sT1}
    s_xor_b32 s{sKT+1}, s{sKT}, 4096
    s_xor_b32 s{sKT+2}, s{sKT}, 8192
    s_xor_b32 s{sKT+3}, s{sKT}, 12288
    s_lshl_b32 s{sKV}, s{sBH}, 21
    s_lshl_b32 s{sT1}, s{sS}, 18
    s_add_u32 s{sKV}, s{sKV}, s{sT1}
    s_mov_b32 s{sK+2}, 262144
    s_mov_b32 s{sK+3}, 0x00020000
    s_mov_b32 s{sV+2}, 262144
    s_mov_b32 s{sV+3}, 0x00020000
    s_mov_b32 s{sWS+2}, {WS_USED}
    s_mov_b32 s{sWS+3}, 0x00020000
    s_mov_b32 s{sWA+3}, 0x00020000
    s_mov_b32 s{sHI}, 0xffff0000
    s_cmp_le_u32 s{sW}, s{sFF}
    s_cbranch_scc1 L_stage1
    s_waitcnt lgkmcnt(0)
    s_add_u32 s{sK}, s18, s{sKV}
    s_addc_u32 s{sK+1}, s19, 0
    """)
    if early: a("s_memrealtime s[70:71]")
    if pf:
        a(f"""
        s_cmp_lg_u32 s{sW}, 3
        s_cbranch_scc1 L_nopf
        s_lshl_b32 s{sT0}, s{sH}, 3
        s_add_u32 s{sT0}, s{sT0}, s{sS}
        s_mul_i32 s{sT0}, s{sT0}, {16*896}
        s_mul_i32 s{sT1}, s{sT0}, s{sFF}
        s_lshl_b32 s{sT0}, s{sT0}, 1
        v_mov_b32 v64, s{sKV}
        v_mov_b32 v65, s{sT0}
        v_mov_b32 v66, s{sT1}
        v_mov_b32 v67, {OB_OFF}
        s_mov_b64 exec, 1
        global_load_dword v68, v64, s[20:21] nt
        global_load_dword v69, v65, s[24:25] nt
        global_load_dword v70, v66, s[32:33] nt
        global_load_dword v71, v67, s[42:43] nt
        s_mov_b64 exec, -1
        """)
        a.label("L_nopf")
    if b0: a("s_barrier")
    for f in range(16):
        kload(f)
        if BL and f % BL == BL - 1 and f < 15: a("s_nop 0")
    if cpf:
        a(f"""
        s_cmp_lg_u32 s{sW}, 2
        s_cbranch_scc1 L_nocpf
        s_cmp_ge_u32 s2, {8*cpf}
        s_cbranch_scc1 L_nocpf
        s_getpc_b64 s[70:71]
        v_lshlrev_b32 v64, 7, v{vL}
        s_mov_b32 exec_hi, 0xfff
        global_load_dword v65, v64, s[70:71]
        s_mov_b64 exec, -1
        """)
        a.label("L_nocpf")
    setup2()
    if early:
        a("s_mov_b32 s%d, s70" % STR[9])
        stamp(7)
        a("s_waitcnt vmcnt(15)")
        stamp(10)
    a.label("L_kdone"); a.forget()
    a(f"""
    v_lshlrev_b32 v{vVo}, 11, v{g}
    v_lshl_add_u32 v{vVo}, v{n}, 4, v{vVo}
    s_and_b32 s{sT1}, s{sKT}, 4096
    v_xor_b32 v{vVo}, s{sT1}, v{vVo}
    s_andn2_b32 s{sVG}, s{sKT}, 4096
    s_xor_b32 s{sVG+1}, s{sVG}, 8192
    """)
    for idx in range(NPRE): vload(idx)
    a(f"""
    s_mov_b32 s{sC}, {f32(1.4426950408889634/16)}
    s_movk_i32 s{s3584}, 3584
    s_lshr_b32 s{sRole}, s{sW}, 2
    s_lshl_b32 s{sT0}, s{sH}, 3
    s_add_u32 s{sT0}, s{sT0}, s{sS}
    s_mul_i32 s{sT0}, s{sT0}, {32*896}
    s_lshl_b32 s{sT1}, s{sHF}, 3
    s_add_u32 s{sT1}, s{sT1}, s{sS}
    s_mul_i32 s{sT1}, s{sT1}, {16*896}
    s_mul_i32 s{sT1}, s{sT1}, s{sFF}
    s_cmp_eq_u32 s{sRole}, 1
    s_cselect_b32 s{sT0}, s{sT0}, s{sT1}
    s_cselect_b32 s{sT2}, s24, s32
    s_cselect_b32 s{sT3}, s25, s33
    s_add_u32 s{sWB}, s{sT2}, s{sT0}
    s_addc_u32 s{sWB+1}, s{sT3}, 0
    s_mov_b32 s{sWB+2}, 28672
    s_mov_b32 s{sWB+3}, 0x00020000
    s_lshl_b32 s{sT0}, s{sFF}, 1
    s_cmp_eq_u32 s{sRole}, 2
    s_cselect_b32 s{sRole}, s{sT0}, s{sRole}
    v_and_b32 v{vT}, 8, v{vL}
    v_lshlrev_b32 v{vT}, 3, v{vT}
    v_lshl_add_u32 v{vT}, v{g}, 4, v{vT}
    v_mul_u32_u24 v{vKo}, 7168, v{g}
    v_lshl_add_u32 v{vKo}, v{n}, 4, v{vKo}
    s_and_b32 s{sT0}, s{sW}, 3
    s_lshl_b32 s{sT1}, s{sT0}, 8
    v_add_u32 v{vKo}, s{sT1}, v{vKo}
    s_cmp_eq_u32 s{sT0}, 3
    s_cselect_b32 s{sT0}, 8, 0
    v_and_b32 v{vS}, s{sT0}, v{vL}
    v_lshl_or_b32 v{vKo}, v{vS}, 27, v{vKo}
    """)
    a(f"""
    s_lshl_b32 s{sRed}, s{sH}, 2
    s_lshr_b32 s{sT0}, s{sS}, 1
    s_add_u32 s{sRed}, s{sRed}, s{sT0}
    s_bitcmp1_b32 s{sS}, 0
    s_cselect_b32 s{sRed}, s{sRed}, 99
    s_cmp_lg_u32 s{sW}, 2
    s_cbranch_scc1 L_noz
    v_mov_b32 v{vS}, 0
    v_mov_b32 v{vS+1}, 0
    v_mov_b32 v{vS+2}, 0
    v_mov_b32 v{vS+3}, 0
    v_lshlrev_b32 v{vS+4}, 4, v{vL}
    ds_write_b128 v{vS+4}, {R(vS)} offset:{L_YP}
    ds_write_b32 v{vS}, v{vS} offset:{L_CNT}
    """)
    a.label("L_noz")
    if stamps:
        a(f"""
        s_lshl_b32 s{sTSo}, s2, 4
        s_add_u32 s{sTSo}, s{sTSo}, s{sW}
        s_lshl_b32 s{sTSo}, s{sTSo}, 6
        s_add_u32 s{sTSo}, s{sTSo}, {TS_OFF}
        """)
    stamp(0)
    a("s_waitcnt lgkmcnt(0)")
    a("s_barrier")
    assert NPRE <= 4
    qb = [80, 84, 88, 92]
    for i in range(4): a(f"ds_read_b128 {R(qb[i])}, v{vT} offset:{L_Q+128*i}")
    a(f"s_sub_u32 s{sT0}, s{sRole}, 1")
    a(f"s_waitcnt vmcnt({NPRE})")
    stamp(1)
    acc = [vS, vS + 4, vQ, vQ + 4]
    for i in range(4):
        a(f"s_waitcnt lgkmcnt({3-i})")
        for u in range(4):
            c = "0" if i == 0 else R(acc[u])
            a(f"v_mfma_f32_16x16x32_bf16 {R(acc[u])}, {R(4*(4*u+i))}, {R(qb[i])}, {c}")
    a(f"""
    s_cmp_gt_u32 s{sT0}, 1
    s_cbranch_scc1 L_now
    """)
    for t in range(8):
        so_ = "0" if t < 4 else f"s{s3584}"
        a(f"buffer_load_dwordx4 {R(32+4*t)}, v{vKo}, {S(sWB)}, {so_} offen offset:{896*(t%4)}{WP}")
    a.label("L_now")
    NB2 = NPRE + NMID
    for idx in range(NPRE, NB2): vload(idx)
    a(f"""
    s_cmp_eq_u32 s{sW}, 3
    s_cbranch_scc1 L_ldgate
    """)
    a.label("L_sm")
    a("s_nop 1")
    for r in range(4): a(f"v_permlane32_swap_b32 v{acc[0]+r}, v{acc[1]+r}")
    for r in range(4): a(f"v_permlane32_swap_b32 v{acc[2]+r}, v{acc[3]+r}")
    for r in range(4): a(f"v_add_f32_dpp v{vS+r}, v{acc[1]+r}, v{acc[0]+r} row_ror:8 {DPPF}")
    for r in range(4): a(f"v_add_f32_dpp v{vS+4+r}, v{acc[3]+r}, v{acc[2]+r} row_ror:8 {DPPF}")
    for k in range(0, 8, 2): a(f"v_cvt_pk_bf16_f32 v{vA+k//2}, v{vS+k}, v{vS+k+1}")
    for k in range(4): a(f"v_mov_b32_dpp v{vA+k}, v{vA+k} row_ror:8 row_mask:0xf bank_mask:0xc")
    for k in range(0, 8, 2):
        a(f"v_lshlrev_b32 v{vS+k}, 16, v{vA+k//2}")
        a(f"v_and_b32 v{vS+k+1}, s{sHI}, v{vA+k//2}")
    m, t1, l, mc = vA, vA + 1, vA + 2, vA + 3
    a(f"""
    v_max3_f32 v{m}, v{vS}, v{vS+1}, v{vS+2}
    v_max3_f32 v{t1}, v{vS+3}, v{vS+4}, v{vS+5}
    v_max3_f32 v{m}, v{m}, v{vS+6}, v{vS+7}
    v_max_f32 v{m}, v{m}, v{t1}
    v_mov_b32 v{t1}, v{m}
    v_permlane16_swap_b32 v{m}, v{t1}
    v_max_f32 v{m}, v{m}, v{t1}
    v_mov_b32 v{t1}, v{m}
    v_permlane32_swap_b32 v{m}, v{t1}
    v_max_f32 v{m}, v{m}, v{t1}
    v_mul_f32 v{mc}, s{sC}, v{m}
    """)
    for k in range(8): a(f"v_fma_f32 v{vS+k}, v{vS+k}, s{sC}, -v{mc}")
    for k in range(8): a(f"v_exp_f32 v{vS+k}, v{vS+k}")
    a(f"""
    v_add_f32 v{l}, v{vS}, v{vS+1}
    v_add_f32 v{t1}, v{vS+2}, v{vS+3}
    v_add_f32 v{l}, v{l}, v{vS+4}
    v_add_f32 v{t1}, v{t1}, v{vS+5}
    v_add_f32 v{l}, v{l}, v{vS+6}
    v_add_f32 v{t1}, v{t1}, v{vS+7}
    v_add_f32 v{l}, v{l}, v{t1}
    v_mov_b32 v{t1}, v{l}
    v_permlane16_swap_b32 v{l}, v{t1}
    v_add_f32 v{l}, v{l}, v{t1}
    v_mov_b32 v{t1}, v{l}
    v_permlane32_swap_b32 v{l}, v{t1}
    v_add_f32 v{t1}, v{l}, v{t1}
    s_lshl_b32 s{sT0}, s{sW}, 3
    v_mov_b32 v{vT}, s{sT0}
    ds_write_b64 v{vT}, {R(m,2)} offset:{L_ML}
    v_and_b32 v{vT}, 15, v{vL}
    v_lshlrev_b32 v{vT}, 3, v{vT}
    v_mov_b32 v{l}, 0
    s_waitcnt lgkmcnt(0)
    s_barrier
    ds_read_b64 {R(vO+4,2)}, v{vT} offset:{L_ML}
    ds_read_b32 v{vKo}, v{l} offset:{L_TAG}
    """)
    for idx in range(NB2, 16): vload(idx)
    a("s_waitcnt lgkmcnt(0)")
    a(f"v_readfirstlane_b32 s{sTag}, v{vKo}")
    stamp(2)
    mi, li, M, L = vO + 4, vO + 5, vO, vO + 2
    a(f"v_mov_b32 v{M}, v{mi}")
    for k in (8, 4, 2, 1): a(f"v_max_f32_dpp v{M}, v{M}, v{M} row_ror:{k} {DPPF}")
    a(f"""
    v_sub_f32 v{m}, v{m}, v{M}
    v_mul_f32 v{m}, s{sC}, v{m}
    v_exp_f32 v{m}, v{m}
    s_cmp_eq_u32 s{sW}, 2
    s_cbranch_scc1 L_stat
    """)
    a.label("L_nostat")
    a(f"""
    v_and_b32 v{t1}, 8, v{vL}
    v_cmp_ne_u32 vcc, 0, v{t1}
    v_mov_b32 v{t1}, s{sHI}
    v_cndmask_b32 v{t1}, 0, v{t1}, vcc
    """)
    for k in range(8): a(f"v_mul_f32 v{vS+k}, v{vS+k}, v{m}")
    for k in range(8):
        tt = vA + 4 + (k & 3)
        a(f"v_cvt_pk_bf16_f32 v{tt}, v{vS+k}, v{vS+k}")
        a(f"v_and_b32 v{tt}, v{t1}, v{tt}")
        a(f"v_sub_f32 v{vS+k}, v{vS+k}, v{tt}")
        a(f"v_cvt_pk_bf16_f32 v{vS+k}, v{vS+k}, v{vS+k}")
    for t in range(4):
        ab = vA + 4 * (t & 1)
        for r in range(4): a(f"v_and_b32 v{ab+r}, v{vS+t}, v{vMask+r}")
        a(f"s_waitcnt vmcnt({14-2*t})")
        for hf in range(2):
            c = "0" if t == 0 else R(vO + 4 * hf)
            a(f"v_mfma_f32_16x16x32_bf16 {R(vO+4*hf)}, {R(ab)}, {R(64+4*(2*t+hf))}, {c}")
    stamp(3)
    for t in range(4):
        for r in range(4): a(f"v_and_b32 v{64+4*t+r}, v{vS+4+t}, v{vMask+r}")
    g, n = vA, vA + 1
    vTag = vKo; vSel = vVo
    a(f"""
    v_lshrrev_b32 v{g}, 4, v{vL}
    v_and_b32 v{n}, 15, v{vL}
    s_lshl_b32 s{sT0}, s{sW}, 10
    v_lshrrev_b32 v83, 5, v{vL}
    v_lshlrev_b32 v83, 9, v83
    v_lshl_add_u32 v83, v{n}, 5, v83
    v_and_b32 v{vT}, 16, v{vL}
    v_add3_u32 v83, v83, v{vT}, s{sT0}
    v_and_b32 v82, 31, v{vL}
    v_lshlrev_b32 v82, 2, v82
    v_lshrrev_b32 v81, 5, v{vL}
    v_lshl_add_u32 v81, v81, 13, v82
    s_and_b32 s{sT1}, s{sW}, 7
    s_lshl_b32 s{sT0}, s{sT1}, 7
    v_add_u32 v81, s{sT0}, v81
    v_and_b32 v{vSel}, 3, v{vL}
    v_add_u32 v{vSel}, 0x07060500, v{vSel}
    v_mov_b32 v80, 0
    s_lshl_b32 s{sP0}, s{sBH}, 3
    s_add_u32 s{sP0}, s{sP0}, s{sT1}
    s_lshl_b32 s{sP0}, s{sP0}, 3
    s_add_u32 s{sP0}, s{sP0}, s{sS}
    s_lshl_b32 s{sP0}, s{sP0}, 7
    s_add_u32 s{sP0}, s{sP0}, {OB_OFF}
    s_cmp_eq_u32 s{sRole}, 1
    s_cbranch_scc1 L_mid1
    s_cmp_eq_u32 s{sRole}, 2
    s_cbranch_scc1 L_mid2
    s_cmp_ge_u32 s{sW}, 8
    s_cbranch_scc1 L_mid3
    s_cmp_eq_u32 s{sW}, 3
    s_cbranch_scc1 L_gate
    """)
    a.label("L_pv2"); a.forget()
    for t in range(4):
        a(f"s_waitcnt vmcnt({6-2*t})")
        for hf in range(2):
            a(f"v_mfma_f32_16x16x32_bf16 {R(vO+4*hf)}, {R(64+4*t)}, {R(4*(2*t+hf))}, {R(vO+4*hf)}")
    if ack: stamp(0)
    a(f"s_cmp_lt_u32 s{sW}, 8")
    for r in range(4): a(f"v_permlane32_swap_b32 v{vO+r}, v{vO+4+r}")
    for r in range(4): a(f"v_add_f32 v{vO+r}, v{vO+r}, v{vO+4+r}")
    a(f"""
    ds_write_b128 v83, {R(vO)} offset:{L_OW}
    s_cbranch_scc1 L_low
    s_waitcnt lgkmcnt(0)
    s_barrier
    """)
    for i in range(4): a(f"ds_read2st64_b32 {R(2*i,2)}, v81 offset0:{L_OW//256+8*i} offset1:{L_OW//256+8*i+4}")
    a(f"""
    s_waitcnt lgkmcnt(2)
    v_add_f32 v0, v0, v1
    v_add_f32 v2, v2, v3
    s_waitcnt lgkmcnt(0)
    v_add_f32 v4, v4, v5
    v_add_f32 v6, v6, v7
    v_add_f32 v0, v0, v2
    v_add_f32 v4, v4, v6
    v_add_f32 v0, v0, v4
    v_mov_b32 v1, v0
    v_permlane32_swap_b32 v0, v1
    v_add_f32 v0, v0, v1
    v_perm_b32 v0, v0, v{vTag}, v{vSel}
    s_mov_b32 exec_hi, 0
    buffer_store_dword v0, v82, {S(sWS)}, s{sP0} offen sc1
    """)
    stamp(4)
    a(f"""
    s_cmp_lt_u32 s{sRed}, 28
    s_cbranch_scc1 L_reduce
    """)
    endpgm()
    a.label("L_low"); a.forget()
    a(f"""
    s_cmp_eq_u32 s{sRole}, 1
    s_cbranch_scc1 L_gemv1
    s_waitcnt lgkmcnt(0)
    s_barrier
    """)
    if xs: endpgm()
    a(f"""
    s_add_u32 s{sT0}, s{sRed}, s{sB}
    s_add_u32 s{sT0}, s{sT0}, s{sW}
    s_max_u32 s{sT1}, s{sRed}, 28
    s_cmp_lg_u32 s{sT1}, s{sRed}
    s_cselect_b32 s{sT0}, 99, s{sT0}
    s_cmp_eq_u32 s{sT0}, 28
    s_cbranch_scc1 L_epoch
    """)
    endpgm()

    a.label("L_gemv1"); a.forget()
    cf = 123
    def oload(): a(f"buffer_load_dwordx4 {R(0)}, v122, {S(sWS)}, s{sP1} offen sc1")
    a(f"s_mov_b32 s{sCnt}, 0")
    a.label("L_stchk")
    a(f"""
    v_cmp_ne_u32 vcc, s{sTag}, v85
    v_cmp_ne_u32 {S(sM,2)}, s{sTag}, v87
    s_or_b64 vcc, vcc, {S(sM,2)}
    s_cbranch_vccz L_stok
    s_add_u32 s{sCnt}, s{sCnt}, 1
    s_cmp_gt_u32 s{sCnt}, {LIM}
    s_cbranch_scc1 L_stok
    buffer_load_dwordx4 {R(84)}, v89, {S(sWS)}, s{sT3} offen sc1
    s_waitcnt vmcnt(0)
    s_branch L_stchk
    """)
    a.label("L_stok"); a.forget()
    M = vA
    a(f"v_mov_b32 v{M}, v84")
    for d in Q8: a(f"v_max_f32_dpp v{M}, v{M}, v{M} {d} {DPPF}")
    a(f"""
    v_sub_f32 v{cf}, v84, v{M}
    v_mul_f32 v{cf}, s{sC}, v{cf}
    v_exp_f32 v{cf}, v{cf}
    v_mul_f32 v{M}, v{cf}, v86
    """)
    for d in Q8: a(f"v_add_f32_dpp v{M}, v{M}, v{M} {d} {DPPF}")
    a(f"""
    v_rcp_f32 v{M}, v{M}
    v_mul_f32 v{cf}, v{cf}, v{M}
    s_mov_b32 s{sCnt}, 0
    s_cmp_eq_u32 s{sFF}, 0
    s_waitcnt lgkmcnt(0)
    s_barrier
    """)
    if xs: endpgm()
    oload()
    a(f"""
    ds_read_b64 {R(90,2)}, v80 offset:{L_GG}
    s_cbranch_scc1 L_nof
    ds_read_b128 {R(92)}, v120 offset:{L_F}
    """)
    a.label("L_nof")
    a("s_waitcnt lgkmcnt(0)")
    for r in range(4): a(f"v_mul_f32 v{92+r}, v{92+r}, v91")
    a("s_waitcnt vmcnt(0)")
    a.label("L_ochk"); a.forget()
    tag_chk(0, 4, 5)
    a(f"""
    s_cbranch_vccz L_ook
    s_mov_b64 exec, vcc
    """)
    oload()
    a(f"""
    s_mov_b64 exec, -1
    s_add_u32 s{sCnt}, s{sCnt}, 1
    s_waitcnt vmcnt({pipe})
    s_cmp_gt_u32 s{sCnt}, {LIM}
    s_cbranch_scc0 L_ochk
    """)
    a.label("L_ook"); a.forget()
    stamp(5)
    for r in range(4): a(f"v_mul_f32 v{24+r}, v{r}, v{cf}")
    for d in Q8:
        for r in range(4): a(f"v_add_f32_dpp v{24+r}, v{24+r}, v{24+r} {d} {DPPF}")
    for r in range(4): a(f"v_cvt_pk_bf16_f32 v{24+r}, v{24+r}, v{24+r}")
    for r in range(4): a(f"v_mov_b32_dpp v{28+r}, v{24+r} row_ror:8 {DPPF}")
    for t in range(8):
        ab = 8 + 4 * (t % 4)
        for r in range(4): a(f"v_and_b32 v{ab+r}, v{24+t}, v{vMask+r}")
        c = "0" if t == 0 else R(vO)
        a(f"v_mfma_f32_16x16x32_bf16 {R(vO)}, {R(ab)}, {R(32+4*t)}, {c}")
    a("s_mov_b32 exec_hi, 0")
    for r in range(4): a(f"v_fma_f32 v{vO+r}, v{vO+r}, v90, v{92+r}")
    tag_put(vO, vTag)
    a(f"buffer_store_dwordx4 {R(vO)}, v88, {S(sWS)}, s{sP2} offen sc1")
    stamp(6)
    if ack:
        a("s_waitcnt vmcnt(0)")
        stamp(9)
    endpgm()

    a.label("L_reduce"); a.forget()
    def yload(base=8): a(f"buffer_load_dwordx4 {R(base)}, v84, {S(sWS)}, s{sP1} offen sc1")
    a("s_mov_b64 exec, -1")
    yload()
    a(f"s_mov_b32 s{sCnt}, 0")
    a.label("L_ypoll"); a.forget()
    a("s_waitcnt vmcnt(0)")
    tag_chk(8, 4, 5)
    a(f"""
    s_cbranch_vccz L_yok
    s_mov_b64 exec, vcc
    """)
    yload()
    a(f"""
    s_mov_b64 exec, -1
    s_add_u32 s{sCnt}, s{sCnt}, 1
    s_cmp_gt_u32 s{sCnt}, {LIM}
    s_cbranch_scc0 L_ypoll
    s_waitcnt vmcnt(0)
    """)
    a.label("L_yok"); a.forget()
    stamp(7)
    allred4(8, 0, ROW16)
    a(f"""
    s_mov_b64 exec, {S(sM,2)}
    ds_write_b128 v85, {R(8)} offset:{L_YP}
    s_mov_b64 exec, 1
    ds_add_rtn_u32 v4, v80, v86 offset:{L_CNT}
    s_mov_b64 exec, -1
    ds_read_b128 {R(12)}, v84 offset:{L_YP}
    s_waitcnt lgkmcnt(1)
    v_readfirstlane_b32 s{sT0}, v4
    s_cmp_lg_u32 s{sT0}, 7
    s_cbranch_scc1 L_yend
    s_waitcnt lgkmcnt(0)
    """)
    allred4(12, 0, ROW16)
    a(f"""
    v_cvt_pk_bf16_f32 v12, v12, v13
    v_cvt_pk_bf16_f32 v13, v14, v15
    s_mov_b64 exec, {S(sM,2)}
    global_store_dwordx2 v90, {R(12,2)}, s[38:39]
    """)
    stamp(8)
    a.label("L_yend")
    endpgm()
    a.label("L_epoch"); a.forget()
    a(f"""
    s_mov_b32 s{sCnt}, 0
    v_lshlrev_b32 v84, 4, v{vL}
    s_movk_i32 s{sT3}, {ST_OFF}
    """)
    a.label("L_fchk")
    for i in range(4):
        a(f"buffer_load_dwordx4 {R(32+4*i)}, v84, {S(sWS)}, s{sT3} offen offset:{1024*i} sc1")
    a("s_waitcnt vmcnt(0)")
    for i in range(4): a(f"v_xor_b32 v{33+4*i}, s{sTag}, v{33+4*i}")
    a(f"""
    v_or3_b32 v33, v33, v37, v41
    v_or_b32 v33, v33, v45
    v_cmp_ne_u32 vcc, 0, v33
    s_cbranch_vccz L_fok
    s_add_u32 s{sCnt}, s{sCnt}, 1
    s_cmp_gt_u32 s{sCnt}, {LIM}
    s_cbranch_scc0 L_fchk
    """)
    a.label("L_fok"); a.forget()
    a(f"""
    s_mov_b64 exec, 1
    buffer_store_dword v{vTag}, off, {S(sWS)}, 0 offset:{EP_OFF} sc1
    """)
    endpgm()

    a.label("L_stat"); a.forget()
    mi, li, M, L = vO + 4, vO + 5, vO, vO + 2
    a(f"""
    v_sub_f32 v{mi}, v{mi}, v{M}
    v_mul_f32 v{mi}, s{sC}, v{mi}
    v_exp_f32 v{mi}, v{mi}
    v_mul_f32 v{L}, v{li}, v{mi}
    """)
    for k in (8, 4, 2, 1): a(f"v_add_f32_dpp v{L}, v{L}, v{L} row_ror:{k} {DPPF}")
    a(f"""
    v_mov_b32 v{M+1}, s{sTag}
    v_mov_b32 v{L+1}, s{sTag}
    s_lshl_b32 s{sT0}, s{sBH}, 3
    s_add_u32 s{sT0}, s{sT0}, s{sS}
    s_lshl_b32 s{sT0}, s{sT0}, 4
    s_add_u32 s{sT0}, s{sT0}, {ST_OFF}
    s_mov_b64 exec, 1
    buffer_store_dwordx4 {R(M)}, off, {S(sWS)}, s{sT0} sc1
    s_mov_b64 exec, -1
    s_branch L_nostat
    """)
    a.label("L_mid1"); a.forget()
    a(f"""
    v_and_b32 v{vT}, 7, v{vL}
    v_lshlrev_b32 v89, 4, v{vT}
    s_lshl_b32 s{sT3}, s{sBH}, 7
    s_add_u32 s{sT3}, s{sT3}, {ST_OFF}
    v_lshlrev_b32 v122, 7, v{vT}
    v_lshl_add_u32 v122, v{g}, 5, v122
    v_bfe_u32 v{vT}, v{vL}, 3, 1
    v_lshl_add_u32 v122, v{vT}, 4, v122
    s_lshl_b32 s{sP1}, s{sBH}, 3
    s_add_u32 s{sP1}, s{sP1}, s{sS}
    s_lshl_b32 s{sP1}, s{sP1}, 10
    s_add_u32 s{sP1}, s{sP1}, {OB_OFF}
    buffer_load_dwordx4 {R(84)}, v89, {S(sWS)}, s{sT3} offen sc1
    s_and_b32 s{sT0}, s{sW}, 3
    s_cmp_lg_u32 s{sT0}, 0
    s_cbranch_scc1 L_mid1b
    buffer_load_dwordx4 {R(vS)}, v122, {S(sWS)}, s{sP1} offen sc1
    """)
    a.label("L_mid1b")
    a(f"""
    s_lshl_b32 s{sT1}, s{sT0}, 10
    v_lshlrev_b32 v120, 4, v{vL}
    v_add_u32 v120, s{sT1}, v120
    v_lshrrev_b32 v88, 1, v{n}
    v_mul_u32_u24 v88, {YST}, v88
    v_and_b32 v{vT}, 1, v{n}
    v_lshl_add_u32 v88, v{vT}, 5, v88
    v_and_b32 v{vT}, 16, v{vL}
    v_add_u32 v88, v88, v{vT}
    s_mul_i32 s{sP2}, s{sB}, 28
    s_lshl_b32 s{sT1}, s{sT0}, 3
    s_add_u32 s{sP2}, s{sP2}, s{sT1}
    s_mul_i32 s{sP2}, s{sP2}, {YST}
    s_lshl_b32 s{sT1}, s{sH}, 3
    s_add_u32 s{sT1}, s{sT1}, s{sS}
    s_lshl_b32 s{sT1}, s{sT1}, {YSH}
    s_add_u32 s{sP2}, s{sP2}, s{sT1}
    s_add_u32 s{sP2}, s{sP2}, {YB_OFF}
    s_cmp_eq_u32 s{sT0}, 3
    s_cselect_b32 s{sT0}, 8, 0
    v_and_b32 v{vT}, s{sT0}, v{vL}
    v_lshl_or_b32 v88, v{vT}, 27, v88
    v_mov_b32 v92, 0
    v_mov_b32 v93, 0
    v_mov_b32 v94, 0
    v_mov_b32 v95, 0
    s_branch L_pv2
    """)
    a.label("L_mid2"); a.forget()
    a(f"""
    v_lshlrev_b32 v{vT}, 5, v{g}
    ds_read_b128 {R(84)}, v{vT} offset:{L_R2}
    ds_read_b128 {R(88)}, v{vT} offset:{L_R2+16}
    s_waitcnt lgkmcnt(0)
    """)
    for t in range(8): a(f"v_cvt_pk_bf16_f32 v{84+t}, v{84+t}, v{84+t}")
    for t in range(8):
        ab = vA + 4 * (t & 1)
        for r in range(4): a(f"v_and_b32 v{ab+r}, v{84+t}, v{vMask+r}")
        c = "0" if t == 0 else R(92)
        a(f"v_mfma_f32_16x16x32_bf16 {R(92)}, {R(ab)}, {R(32+4*t)}, {c}")
    a(f"""
    s_and_b32 s{sT0}, s{sW}, 3
    s_lshl_b32 s{sT1}, s{sT0}, 10
    v_lshlrev_b32 v{vT}, 4, v{vL}
    v_add_u32 v{vT}, s{sT1}, v{vT}
    ds_write_b128 v{vT}, {R(92)} offset:{L_F}
    s_branch L_pv2
    """)
    a.label("L_mid3"); a.forget()
    assert YS == 64
    a(f"""
    s_cmp_ge_u32 s{sRed}, 28
    s_cbranch_scc1 L_pv2
    v_lshlrev_b32 v84, 6, v{n}
    v_lshl_add_u32 v84, v{g}, 4, v84
    s_mov_b32 s{sM}, 0x00010001
    s_mov_b32 s{sM+1}, 0x00010001
    s_and_b32 s{sT1}, s{sW}, 7
    s_lshl_b32 s{sT0}, s{sT1}, 6
    v_lshlrev_b32 v85, 4, v{g}
    v_add_u32 v85, s{sT0}, v85
    v_mov_b32 v86, 1
    s_lshl_b32 s{sT0}, s{sRed}, 5
    s_mul_i32 s{sT2}, s{sB}, 896
    s_add_u32 s{sT0}, s{sT0}, s{sT2}
    v_lshlrev_b32 v90, 3, v{g}
    v_add_u32 v90, s{sT0}, v90
    s_mul_i32 s{sP1}, s{sB}, 28
    s_add_u32 s{sP1}, s{sP1}, s{sRed}
    s_mul_i32 s{sP1}, s{sP1}, {YST}
    s_lshl_b32 s{sT1}, s{sT1}, 10
    s_add_u32 s{sP1}, s{sP1}, s{sT1}
    s_add_u32 s{sP1}, s{sP1}, {YB_OFF}
    """)
    if ywarm: yload(32)
    a("s_branch L_pv2")
    a.label("L_gate"); a.forget()
    xa, ga = 32, 36
    a("v_mov_b32 v44, 0")
    for r in range(4):
        a(f"""
        v_lshlrev_b32 v40, 16, v{xa+r}
        v_and_b32 v41, s{sHI}, v{xa+r}
        v_lshlrev_b32 v42, 16, v{ga+r}
        v_and_b32 v43, s{sHI}, v{ga+r}
        v_mul_f32 v40, v40, v42
        v_mul_f32 v41, v41, v43
        v_cvt_pk_bf16_f32 v40, v40, v41
        v_lshlrev_b32 v41, 16, v40
        v_and_b32 v40, s{sHI}, v40
        v_add_f32 v44, v44, v41
        v_add_f32 v44, v44, v40
        """)
    for k in (8, 4, 2, 1): a(f"v_add_f32_dpp v44, v44, v44 row_ror:{k} {DPPF}")
    a(f"""
    v_mov_b32 v45, v44
    v_permlane16_swap_b32 v44, v45
    v_add_f32 v44, v44, v45
    v_mov_b32 v45, v44
    v_permlane32_swap_b32 v44, v45
    v_add_f32 v44, v44, v45
    v_cvt_pk_bf16_f32 v44, v44, v44
    v_and_b32 v44, s{sHI}, v44
    v_mul_f32 v44, {f32(-1.4426950408889634)}, v44
    v_exp_f32 v44, v44
    v_add_f32 v44, 1.0, v44
    v_rcp_f32 v44, v44
    v_cvt_pk_bf16_f32 v44, v44, v44
    v_and_b32 v44, s{sHI}, v44
    v_sub_f32 v45, 1.0, v44
    v_cvt_pk_bf16_f32 v45, v45, v45
    v_and_b32 v45, s{sHI}, v45
    ds_write_b64 v80, {R(44,2)} offset:{L_GG}
    s_cmp_ge_u32 s{sRed}, 28
    s_cbranch_scc1 L_pv2
    v_lshlrev_b32 v40, 16, v46
    v_and_b32 v41, s{sHI}, v46
    v_lshlrev_b32 v42, 16, v47
    v_and_b32 v43, s{sHI}, v47
    v_mul_f32 v40, v40, v45
    v_mul_f32 v41, v41, v45
    v_mul_f32 v42, v42, v45
    v_mul_f32 v43, v43, v45
    v_lshlrev_b32 v{vT}, 4, v{g}
    ds_write_b128 v{vT}, {R(40)} offset:{L_YP+512}
    s_branch L_pv2
    """)
    a.label("L_ldgate"); a.forget()
    for r in range(8): a(f"v_mov_b32 v{32+r}, 0")
    a(f"""
    v_lshlrev_b32 v{vA+1}, 4, v{vL}
    s_mul_i32 s{sT0}, s{sB}, 896
    v_add_u32 v{vA}, s{sT0}, v{vA+1}
    s_min_u32 s{sT0}, s{sRed}, 27
    s_lshl_b32 s{sT0}, s{sT0}, 5
    v_lshrrev_b32 v{vA+2}, 4, v{vL}
    v_lshlrev_b32 v{vA+2}, 3, v{vA+2}
    v_add_u32 v{vA+2}, s{sT0}, v{vA+2}
    s_mov_b32 exec_hi, 0x00ffffff
    global_load_dwordx4 {R(32)}, v{vA}, s[16:17]
    global_load_dwordx4 {R(36)}, v{vA+1}, s[36:37]
    s_mov_b64 exec, -1
    global_load_dwordx2 {R(46,2)}, v{vA+2}, s[34:35]
    s_branch L_sm
    """)

    n, g = 120, 121
    a.label("L_stage1"); a.forget()
    SO = [None, 60, 61, 62, 64, 65, 66, 67, 69, 70, 71, 76, 77, 78]
    sStr = sP1
    a(f"""
    s_movk_i32 s{sStr}, 3584
    s_mov_b32 s{sP0}, {SH_OFF}
    s_cmp_eq_u32 s{sW}, 0
    s_cselect_b32 s{sStr}, 8192, s{sStr}
    s_cselect_b32 s{sP2}, 9, 8
    s_cselect_b32 s{sT3}, s{sH}, s{sHF}
    s_cselect_b32 s{sP0}, {SQ_OFF}, s{sP0}
    s_mul_i32 s{sCnt}, s{sStr}, 448
    s_lshr_b32 s{sT1}, s{sJJ}, 1
    s_mul_i32 s{sT2}, s{sT1}, 56
    s_mul_i32 s{sT2}, s{sT2}, s{sStr}
    s_lshl_b32 s{sT3}, s{sT3}, s{sP2}
    s_add_u32 s{sT2}, s{sT2}, s{sT3}
    s_and_b32 s{sT3}, s{sJJ}, 1
    s_lshl_b32 s{sT0}, s{sT3}, 8
    s_add_u32 s{sT2}, s{sT2}, s{sT0}
    s_sub_u32 s{sWA+2}, s{sCnt}, s{sT2}
    s_mul_i32 s{sT0}, s{sStr}, 14
    v_mul_u32_u24 v{vT}, s{sT0}, v{g}
    v_lshl_add_u32 v{vT}, v{n}, 4, v{vT}
    s_mov_b32 s{SO[1]}, s{sStr}
    """)
    for t in range(2, 14): a(f"s_add_u32 s{SO[t]}, s{SO[t-1]}, s{sStr}")
    a(f"""
    v_lshrrev_b32 v{vS}, 3, v{n}
    v_mul_u32_u24 v{vS}, 896, v{vS}
    v_mad_u32_u24 v{vS}, v{g}, 28, v{vS}
    s_mul_i32 s{sT0}, s{sT1}, 112
    v_add_u32 v{vS}, s{sT0}, v{vS}
    v_mov_b32 v{vS+1}, 0
    s_cmp_eq_u32 s{sW}, 0
    s_waitcnt lgkmcnt(0)
    s_cselect_b32 s{sWA}, s22, s28
    s_cselect_b32 s{sWA+1}, s23, s29
    s_add_u32 s{sWA}, s{sWA}, s{sT2}
    s_addc_u32 s{sWA+1}, s{sWA+1}, 0
    """)
    for t in range(14):
        a(f"buffer_load_dwordx4 {R(4*t)}, v{vT}, {S(sWA)}, {('s%d' % SO[t]) if t else '0'} offen{WQP}")
    a(f"""
    global_load_dwordx4 {R(56)}, v{vS}, s[16:17]
    global_load_dwordx3 {R(60,3)}, v{vS}, s[16:17] offset:16
    global_load_dword v63, v{vS+1}, s[42:43] offset:{EP_OFF} sc1
    {"s_barrier" if b0 else "s_nop 0"}
    s_add_u32 s{sK}, s18, s{sKV}
    s_addc_u32 s{sK+1}, s19, 0
    """)
    setup2()
    a(f"""
    v_lshrrev_b32 v{vT}, 1, v{g}
    v_lshlrev_b32 v{vT}, 13, v{vT}
    v_lshl_add_u32 v{vT}, v{n}, 5, v{vT}
    v_and_b32 v{vS}, 16, v{vL}
    v_add_u32 v{vT}, v{vT}, v{vS}
    s_lshl_b32 s{sT0}, s{sH}, 14
    s_add_u32 s{sP0}, s{sP0}, s{sT0}
    s_lshl_b32 s{sT0}, s{sB}, 13
    s_add_u32 s{sP1}, s{sP0}, s{sT0}
    s_lshl_b32 s{sT2}, s{sT1}, 10
    s_add_u32 s{sP0}, s{sP0}, s{sT2}
    s_lshl_b32 s{sT2}, s{sT3}, 9
    s_add_u32 s{sP0}, s{sP0}, s{sT2}
    s_mov_b32 s{sT2}, 0x01000100
    s_mov_b32 s{sT3}, 0x03020302
    v_lshlrev_b32 v{vQ+1}, 4, v{vL}
    s_add_u32 s{sP2}, s{sP1}, 4096
    s_waitcnt vmcnt(0)
    v_and_b32 v{vQ}, 0x7f7f7f7f, v63
    v_add_u32 v{vQ}, 0x671b3501, v{vQ}
    v_xor_b32 v63, 0xe79b3501, v63
    v_and_b32 v63, 0x80808080, v63
    v_xor_b32 v{vQ}, v{vQ}, v63
    v_mov_b32 v63, 0
    v_readfirstlane_b32 s{sTag}, v{vQ}
    ds_write_b32 v63, v{vQ} offset:{L_TAG}
    """)
    stamp(5)
    for t in range(14):
        ab = 112 if t & 1 else vA
        a(f"v_perm_b32 v{vS+4}, v{56+t//2}, v{56+t//2}, s{sT3 if t & 1 else sT2}")
        for r in range(4): a(f"v_and_b32 v{ab+r}, v{vS+4}, v{vMask+r}")
        c = "0" if t == 0 else R(vS)
        a(f"v_mfma_f32_16x16x32_bf16 {R(vS)}, {R(ab)}, {R(4*t)}, {c}")
    a(f"s_cmp_eq_u32 s{sW}, 1")
    tag_put(vS, vQ)
    a(f"buffer_store_dwordx4 {R(vS)}, v{vT}, {S(sWS)}, s{sP0} offen sc1")
    stamp(6)
    a("s_cbranch_scc1 L_hgather")
    def qload(i): a(f"buffer_load_dwordx4 {R(64+4*i)}, v{vQ+1}, {S(sWS)}, s{sP1 if i < 4 else sP2} offen offset:{1024*(i%4)} sc1")
    for f in range(KS): kload(f)
    for i in range(8): qload(i)
    poll_many("L_qp", [(64+4*i, (lambda i=i: qload(i))) for i in range(8)], vQ + 4, vQ + 5)
    for f in range(KS, 16): kload(f)
    for i in range(1, 8):
        for r in range(4): a(f"v_add_f32 v{64+r}, v{64+r}, v{64+4*i+r}")
    a(f"""
    v_cvt_pk_bf16_f32 v{vQ}, v64, v65
    v_cvt_pk_bf16_f32 v{vQ+1}, v66, v67
    v_lshlrev_b32 v{vT}, 3, v{vL}
    ds_write_b64 v{vT}, {R(vQ,2)} offset:{L_Q}
    """)
    stamp(10)
    a("s_branch L_kdone")
    a.label("L_hgather"); a.forget()
    for f in range(16): kload(f)
    h = vS
    a(f"""
    v_and_b32 v{vA}, 7, v{vL}
    v_lshrrev_b32 v{vQ}, 3, v{vL}
    v_lshlrev_b32 v{vQ}, 10, v{vQ}
    v_lshl_add_u32 v{vQ}, v{vA}, 4, v{vQ}
    s_lshl_b32 s{sT0}, s{sS}, 6
    s_add_u32 s{sP1}, s{sP1}, s{sT0}
    s_lshl_b32 s{sT1}, s{sHF}, 8
    s_lshl_b32 s{sT0}, s{sS}, 5
    s_add_u32 s{sT1}, s{sT1}, s{sT0}
    v_lshlrev_b32 v{vT}, 3, v{vA}
    v_add_u32 v{vT}, s{sT1}, v{vT}
    global_load_dwordx2 {R(118,2)}, v{vT}, s[30:31]
    """)
    def hload(): a(f"buffer_load_dwordx4 {R(h)}, v{vQ}, {S(sWS)}, s{sP1} offen sc1")
    hload()
    poll_many("L_hp", [(h, hload)], vQ + 4, vQ + 5)
    allred4(h, h + 4, ['ror:8', 'p16', 'p32'])
    rnd2(h, h + 1, vQ + 4); rnd2(h + 2, h + 3, vQ + 5)
    a(f"""
    v_lshlrev_b32 v{h+4}, 16, v118
    v_and_b32 v{h+5}, s{sHI}, v118
    v_lshlrev_b32 v{h+6}, 16, v119
    v_and_b32 v{h+7}, s{sHI}, v119
    """)
    for r in range(4): a(f"v_add_f32 v{h+r}, v{h+r}, v{h+4+r}")
    rnd2(h, h + 1, vQ + 4); rnd2(h + 2, h + 3, vQ + 5)
    for r in range(4): a(f"v_max_f32 v{h+r}, 0, v{h+r}")
    for r in range(4): a(f"v_mul_f32 v{h+r}, v{h+r}, v{h+r}")
    a(f"""
    v_lshlrev_b32 v{vT}, 4, v{vA}
    ds_write_b128 v{vT}, {R(h)} offset:{L_R2}
    s_nop 1
    s_branch L_kdone
    """)
    if stamps:
        a.label("L_stampout"); a.forget()
        if amp >= 0:
            if amp == 99: a("s_movk_i32 s11, 10000")
            else:
                a("s_cmp_eq_u32 s%d, 0" % STR[amp])
                a("s_cbranch_scc1 L_end")
                a("s_sub_u32 s11, s%d, s15" % STR[amp])
                a("s_min_u32 s11, s11, 20000")
                a("s_lshl_b32 s11, s11, 3")
            a.label("L_amp")
            a("s_sleep 8")
            a("s_memrealtime s[%d:%d]" % (sTS, sTS + 1))
            a("s_waitcnt lgkmcnt(0)")
            a("s_sub_u32 s12, s%d, s15" % sTS)
            a("s_cmp_lt_u32 s12, s11")
            a("s_cbranch_scc1 L_amp")
        else:
            a("s_mov_b64 exec, -1")
            a("s_waitcnt vmcnt(0)")
            for i, r in enumerate(STR): a("v_writelane_b32 v0, s%d, %d" % (r, i))
            a(f"v_lshlrev_b32 v1, 2, v{vL}")
            a("s_mov_b64 exec, 0xfff")
            a("buffer_store_dword v0, v1, %s, s%d offen" % (S(sWS), sTSo))
    a.label("L_end")
    a("s_endpgm")
    if lst >= 2:
        a.raw(".globl tiny_kernel\n.p2align 8\n.type tiny_kernel,@function\ntiny_kernel:\n    s_endpgm")
    a.raw('.section .rodata,"a"')
    if lst >= 2:
        a.raw(".p2align 6\n.amdhsa_kernel tiny_kernel\n  .amdhsa_next_free_vgpr 8\n  .amdhsa_next_free_sgpr 16\n  .amdhsa_accum_offset 8\n  .amdhsa_group_segment_fixed_size 0\n  .amdhsa_kernarg_size 112\n  .amdhsa_user_sgpr_count 2\n  .amdhsa_user_sgpr_kernarg_segment_ptr 1\n  .amdhsa_system_sgpr_workgroup_id_x 1\n.end_amdhsa_kernel")
    a.raw(".p2align 6")
    a.raw(".amdhsa_kernel %s_kernel" % NAME)
    a.raw("  .amdhsa_next_free_vgpr 128")
    a.raw("  .amdhsa_next_free_sgpr 102")
    a.raw("  .amdhsa_accum_offset 128")
    a.raw("  .amdhsa_group_segment_fixed_size 0")
    a.raw("  .amdhsa_kernarg_size 112")
    a.raw("  .amdhsa_user_sgpr_count 2")
    a.raw("  .amdhsa_user_sgpr_kernarg_segment_ptr 1")
    a.raw("  .amdhsa_system_sgpr_workgroup_id_x 1")
    a.raw("  .amdhsa_float_denorm_mode_32 3")
    a.raw(".end_amdhsa_kernel")
    return a.text()

if __name__ == "__main__":
    import argparse, inspect
    ap = argparse.ArgumentParser()
    ap.add_argument("-o", default="cdna_kernels/%s.s" % NAME)
    sig = inspect.signature(gen)
    for k, p in sig.parameters.items():
        if isinstance(p.default, bool): ap.add_argument("--" + k, action="store_true")
        elif isinstance(p.default, int): ap.add_argument("--" + k, type=int, default=p.default)
        else: ap.add_argument("--" + k, default=p.default)
    x = vars(ap.parse_args()); o = x.pop("o")
    x = {k: ("" if v == "none" else v) for k, v in x.items()}
    open(o, "w").write(gen(**x))
```

```python
import sys, struct
from asmlib import Asm

NAME = "gated_mix__mha_block_cached__dense_activation_squared_relu__decode"
def f32(x): return "0x%08x" % struct.unpack('<I', struct.pack('<f', x))[0]

def gen(kv="nt", wq="nt", w2="nt", stamps=False, NPRE=2, NMID=2, swz=1, amp=-1, xs=0, wmap=4, pipe=0, fpar=0, red=2, ypad=0, yskew=256, KS=16, early=0, pf=0, cpf=0, lst=0, BL=0, b0=0, ack=0, psl=0, ywarm=1, hx=0):
    stamps = stamps or amp >= 0
    a = Asm()
    KV = (" " + kv) if kv else ""
    WQP = (" " + wq) if wq else ""
    WP = (" " + w2) if w2 else ""
    YS = 128 if ypad else 64
    YSH = 7 if ypad else 6
    YST = 128 * YS + yskew
    EP_OFF = 0; ST_OFF = 4096; OB_OFF = 8192; SQ_OFF = OB_OFF + 262144; SH_OFF = SQ_OFF + 262144
    YB_OFF = SH_OFF + 262144; TS_OFF = 1835008; WS_USED = 2097152
    assert YB_OFF + 56 * YST <= TS_OFF
    L_Q = 0; L_ML = 512; L_R2 = 640; L_GG = 768; L_TAG = 776; L_CNT = 780; L_YP = 1024; L_F = 1024; L_OW = 5120; OWS = 1024; LDS = L_OW + 16 * OWS
    sCk0, sCk1, sH, sB, sS, sJJ, sBH, sW = 3, 4, 5, 6, 7, 8, 9, 10
    sT0, sT1, sT2, sT3 = 11, 12, 13, 14
    sK, sV, sWS, sWA, sWB = 44, 48, 52, 56, 64
    sSel = [40, 41, 60, 61]; sE = 62; sFF = 63; sHF = 1
    sKV = 68
    sKT = 72; sVG = 76; sC = 78; sHI = 79; sM = 80
    sP0, sP1, sP2 = 82, 83, 84
    sRole = 85; sRed = 86; sCnt = 87
    sTS = 88; sTSo = 90; s3584 = 91; sTag = 92
    vMask = 96; vS = 100; vQ = 108; vO = 108; vA = 116; vKo = 124; vVo = 125; vL = 126; vT = 127
    LIM = 1 << 23
    def R(b, n=4): return "v[%d:%d]" % (b, b + n - 1)
    def S(b, n=4): return "s[%d:%d]" % (b, b + n - 1)
    STR = [26, 27, 93, 94, 95, 96, 97, 98, 99, 100, 101, 15]
    def stamp(idx):
        if not stamps: return
        a("s_memrealtime s[%d:%d]" % (sTS, sTS + 1))
        a("s_waitcnt lgkmcnt(0)")
        a("s_mov_b32 s%d, s%d" % (STR[idx], sTS))
    def endpgm():
        if stamps: a("s_branch L_stampout")
        else: a("s_endpgm")
    DPPF = "row_mask:0xf bank_mask:0xf"
    ROW16 = ['ror:8', 'ror:4', 'ror:2', 'ror:1']
    Q8 = ("quad_perm:[1,0,3,2]", "quad_perm:[2,3,0,1]", "row_half_mirror")
    def kload(f):
        u, i = f >> 2, f & 3
        a(f"buffer_load_dwordx4 {R(4*f)}, v{vKo}, {S(sK)}, s{sKT+u} offen offset:{128*i}{KV}")
    def vload(idx):
        G, t, hf = idx >> 3, (idx >> 1) & 3, idx & 1
        base = 64 if G == 0 else 0
        a(f"buffer_load_dwordx4 {R(base+4*(2*t+hf))}, v{vVo}, {S(sV)}, s{sVG+G} offen offset:{512*t+256*hf}{KV}")
    def allred4(base, tmp, steps, op="add"):
        for st in steps:
            if st.startswith('ror'):
                for r in range(4): a(f"v_{op}_f32_dpp v{base+r}, v{base+r}, v{base+r} row_{st} {DPPF}")
            else:
                sw = "v_permlane16_swap_b32" if st == 'p16' else "v_permlane32_swap_b32"
                for r in range(4): a(f"v_mov_b32 v{tmp+r}, v{base+r}")
                for r in range(4): a(f"{sw} v{base+r}, v{tmp+r}")
                for r in range(4): a(f"v_{op}_f32 v{base+r}, v{base+r}, v{tmp+r}")
    def rnd2(x, y, tmp):
        a(f"v_cvt_pk_bf16_f32 v{tmp}, v{x}, v{y}")
        a(f"v_lshlrev_b32 v{x}, 16, v{tmp}")
        a(f"v_and_b32 v{y}, s{sHI}, v{tmp}")
    def tag_put(base, vtag):
        for r in range(4): a(f"v_perm_b32 v{base+r}, v{base+r}, v{vtag}, s{sSel[r]}")
    def tag_chk(base, t0, t1):
        a(f"v_perm_b32 v{t0}, v{base+1}, v{base}, s{sCk0}")
        a(f"v_perm_b32 v{t1}, v{base+3}, v{base+2}, s{sCk1}")
        a(f"v_or_b32 v{t0}, v{t0}, v{t1}")
        a(f"v_cmp_ne_u32 vcc, s{sTag}, v{t0}")
    def poll_many(lbl, loads, t0, t1):
        a(f"s_mov_b32 s{sCnt}, 0")
        a.label(lbl); a.forget()
        a("s_waitcnt vmcnt(0)")
        a(f"s_mov_b32 s{sE}, 0")
        for i, (base, fn) in enumerate(loads):
            tag_chk(base, t0, t1)
            a(f"s_cbranch_vccz {lbl}_s{i}")
            a("s_mov_b64 exec, vcc")
            fn()
            a("s_mov_b64 exec, -1")
            a(f"s_mov_b32 s{sE}, 1")
            a.label(f"{lbl}_s{i}")
        a(f"""
        s_cmp_eq_u32 s{sE}, 0
        s_cbranch_scc1 {lbl}_ok
        s_add_u32 s{sCnt}, s{sCnt}, 1
        s_cmp_gt_u32 s{sCnt}, {LIM}
        s_cbranch_scc0 {lbl}
        s_waitcnt vmcnt(0)
        """)
        a.label(lbl + "_ok"); a.forget()
    def setup2():
        a(f"""
        s_add_u32 s{sV}, s20, s{sKV}
        s_addc_u32 s{sV+1}, s21, 0
        s_mov_b32 s{sWS}, s42
        s_mov_b32 s{sWS+1}, s43
        """)
        if stamps:
            for r in STR[:11]: a("s_mov_b32 s%d, 0" % r)
        tmp = vS
        a(f"""
        v_and_b32 v{tmp}, 1, v{vL}
        v_lshlrev_b32 v{tmp}, 4, v{tmp}
        v_mov_b32 v{tmp+1}, 0xffff
        v_lshlrev_b32 v{tmp+1}, v{tmp}, v{tmp+1}
        v_bfe_u32 v{tmp+2}, v{vL}, 1, 2
        """)
        for r in range(4):
            a(f"v_cmp_eq_u32 vcc, {r}, v{tmp+2}")
            a(f"s_mov_b32 s{sSel[r]}, {0x07060500 + r}")
            a(f"v_cndmask_b32 v{vMask+r}, 0, v{tmp+1}, vcc")
        a(f"""
        s_mov_b32 s{sCk0}, 0x0c0c0400
        s_mov_b32 s{sCk1}, 0x04000c0c
        """)

    if lst == 2: a.raw("; @launch kernel=tiny_kernel grid=(1,1,1) block=(64,1,1) lds=0")
    if lst: a.raw("; @launch kernel=%s_kernel grid=(256,1,1) block=(1024,1,1) lds=%d" % (NAME, LDS))
    else: a.raw("; @launch grid=(256,1,1) block=(1024,1,1) lds=%d" % LDS)
    if lst == 3: a.raw("; @launch kernel=tiny_kernel grid=(1,1,1) block=(64,1,1) lds=0")
    if lst == 4: a.raw("; @launch kernel=tiny_kernel grid=(256,1,1) block=(1024,1,1) lds=21504")
    if lst == 5: a.raw("; @launch kernel=tiny_kernel grid=(256,1,1) block=(512,1,1) lds=21504")
    if lst == 6: a.raw("; @launch kernel=tiny_kernel grid=(256,1,1) block=(64,1,1) lds=0")
    if lst == 7: a.raw("; @launch kernel=%s_kernel grid=(256,1,1) block=(1024,1,1) lds=%d" % (NAME, LDS))
    a.raw('.amdgcn_target "amdgcn-amd-amdhsa--gfx950"')
    a.raw(".text")
    a.raw(".globl %s_kernel" % NAME)
    a.raw(".p2align 8")
    a.raw(".type %s_kernel,@function" % NAME)
    a.raw("%s_kernel:" % NAME)
    a("s_cmp_ge_u32 s2, 256")
    a("s_cbranch_scc1 L_end")
    stamp(11)
    a("s_load_dwordx16 s[16:31], s[0:1], 0")
    a("s_load_dwordx8 s[32:39], s[0:1], 64")
    a("s_load_dwordx2 s[42:43], s[0:1], 104")
    n, g = 120, 121
    sX, sJ = sCk0, sCk1
    a(f"""
    v_lshrrev_b32 v{vT}, 6, v0
    v_and_b32 v{vL}, 63, v0
    s_and_b32 s{sX}, s2, 7
    v_readfirstlane_b32 s{sW}, v{vT}
    s_lshr_b32 s{sJ}, s2, 3
    """)
    if wmap == 1: a(f"""
    s_lshr_b32 s{sT0}, s{sJ}, 4
    s_lshl_b32 s{sH}, s{sX}, 1
    s_add_u32 s{sH}, s{sH}, s{sT0}
    s_lshr_b32 s{sB}, s{sJ}, 3
    s_and_b32 s{sB}, s{sB}, 1
    s_and_b32 s{sS}, s{sJ}, 7
    """)
    elif wmap == 0: a(f"""
    s_and_b32 s{sH}, s{sJ}, 15
    s_lshr_b32 s{sB}, s{sJ}, 4
    s_xor_b32 s{sS}, s{sX}, {fpar}
    """)
    elif wmap == 4: a(f"""
    s_and_b32 s{sT0}, s{sJ}, 3
    s_lshr_b32 s{sH}, s{sX}, 1
    s_lshl_b32 s{sH}, s{sH}, 2
    s_add_u32 s{sH}, s{sH}, s{sT0}
    s_lshr_b32 s{sB}, s{sJ}, 4
    s_lshr_b32 s{sS}, s{sJ}, 1
    s_and_b32 s{sS}, s{sS}, 6
    s_and_b32 s{sT0}, s{sX}, 1
    s_xor_b32 s{sT0}, s{sT0}, {fpar}
    s_or_b32 s{sS}, s{sS}, s{sT0}
    """)
    a(f"""
    s_lshl_b32 s{sJJ}, s{sB}, 3
    s_add_u32 s{sJJ}, s{sJJ}, s{sS}
    s_lshl_b32 s{sBH}, s{sB}, 4
    s_add_u32 s{sBH}, s{sBH}, s{sH}
    s_and_b32 s{sT0}, s{sS}, 1
    s_lshl_b32 s{sT0}, s{sT0}, 4
    s_xor_b32 s{sHF}, s{sH}, {hx}
    s_or_b32 s{sT0}, s{sT0}, s{sHF}
    s_cmp_lt_u32 s{sT0}, 14
    s_cselect_b32 s{sFF}, 1, 0
    v_and_b32 v{n}, 15, v{vL}
    v_lshrrev_b32 v{g}, 4, v{vL}
    v_and_b32 v{vT}, 7, v{vL}
    v_lshlrev_b32 v{vKo}, 9, v{vT}
    v_lshl_add_u32 v{vKo}, v{g}, 4, v{vKo}
    v_and_b32 v{vT}, 8, v{vL}
    v_lshl_add_u32 v{vKo}, v{vT}, 3, v{vKo}
    s_lshl_b32 s{sT2}, s{sW}, 14
    s_and_b32 s{sT3}, s{sW}, {3 if swz else 0}
    s_lshl_b32 s{sT1}, s{sT3}, 12
    s_or_b32 s{sKT}, s{sT2}, s{sT1}
    s_xor_b32 s{sKT+1}, s{sKT}, 4096
    s_xor_b32 s{sKT+2}, s{sKT}, 8192
    s_xor_b32 s{sKT+3}, s{sKT}, 12288
    s_lshl_b32 s{sKV}, s{sBH}, 21
    s_lshl_b32 s{sT1}, s{sS}, 18
    s_add_u32 s{sKV}, s{sKV}, s{sT1}
    s_mov_b32 s{sK+2}, 262144
    s_mov_b32 s{sK+3}, 0x00020000
    s_mov_b32 s{sV+2}, 262144
    s_mov_b32 s{sV+3}, 0x00020000
    s_mov_b32 s{sWS+2}, {WS_USED}
    s_mov_b32 s{sWS+3}, 0x00020000
    s_mov_b32 s{sWA+3}, 0x00020000
    s_mov_b32 s{sHI}, 0xffff0000
    s_cmp_le_u32 s{sW}, s{sFF}
    s_cbranch_scc1 L_stage1
    s_waitcnt lgkmcnt(0)
    s_add_u32 s{sK}, s18, s{sKV}
    s_addc_u32 s{sK+1}, s19, 0
    """)
    if early: a("s_memrealtime s[70:71]")
    if pf:
        a(f"""
        s_cmp_lg_u32 s{sW}, 3
        s_cbranch_scc1 L_nopf
        s_lshl_b32 s{sT0}, s{sH}, 3
        s_add_u32 s{sT0}, s{sT0}, s{sS}
        s_mul_i32 s{sT0}, s{sT0}, {16*896}
        s_mul_i32 s{sT1}, s{sT0}, s{sFF}
        s_lshl_b32 s{sT0}, s{sT0}, 1
        v_mov_b32 v64, s{sKV}
        v_mov_b32 v65, s{sT0}
        v_mov_b32 v66, s{sT1}
        v_mov_b32 v67, {OB_OFF}
        s_mov_b64 exec, 1
        global_load_dword v68, v64, s[20:21] nt
        global_load_dword v69, v65, s[24:25] nt
        global_load_dword v70, v66, s[32:33] nt
        global_load_dword v71, v67, s[42:43] nt
        s_mov_b64 exec, -1
        """)
        a.label("L_nopf")
    if b0: a("s_barrier")
    for f in range(16):
        kload(f)
        if BL and f % BL == BL - 1 and f < 15: a("s_nop 0")
    if cpf:
        a(f"""
        s_cmp_lg_u32 s{sW}, 2
        s_cbranch_scc1 L_nocpf
        s_cmp_ge_u32 s2, {8*cpf}
        s_cbranch_scc1 L_nocpf
        s_getpc_b64 s[70:71]
        v_lshlrev_b32 v64, 7, v{vL}
        s_mov_b32 exec_hi, 0xfff
        global_load_dword v65, v64, s[70:71]
        s_mov_b64 exec, -1
        """)
        a.label("L_nocpf")
    setup2()
    if early:
        a("s_mov_b32 s%d, s70" % STR[9])
        stamp(7)
        a("s_waitcnt vmcnt(15)")
        stamp(10)
    a.label("L_kdone"); a.forget()
    a(f"""
    v_lshlrev_b32 v{vVo}, 11, v{g}
    v_lshl_add_u32 v{vVo}, v{n}, 4, v{vVo}
    s_and_b32 s{sT1}, s{sKT}, 4096
    v_xor_b32 v{vVo}, s{sT1}, v{vVo}
    s_andn2_b32 s{sVG}, s{sKT}, 4096
    s_xor_b32 s{sVG+1}, s{sVG}, 8192
    """)
    for idx in range(NPRE): vload(idx)
    a(f"""
    s_mov_b32 s{sC}, {f32(1.4426950408889634/16)}
    s_movk_i32 s{s3584}, 3584
    s_lshr_b32 s{sRole}, s{sW}, 2
    s_lshl_b32 s{sT0}, s{sH}, 3
    s_add_u32 s{sT0}, s{sT0}, s{sS}
    s_mul_i32 s{sT0}, s{sT0}, {32*896}
    s_lshl_b32 s{sT1}, s{sHF}, 3
    s_add_u32 s{sT1}, s{sT1}, s{sS}
    s_mul_i32 s{sT1}, s{sT1}, {16*896}
    s_mul_i32 s{sT1}, s{sT1}, s{sFF}
    s_cmp_eq_u32 s{sRole}, 1
    s_cselect_b32 s{sT0}, s{sT0}, s{sT1}
    s_cselect_b32 s{sT2}, s24, s32
    s_cselect_b32 s{sT3}, s25, s33
    s_add_u32 s{sWB}, s{sT2}, s{sT0}
    s_addc_u32 s{sWB+1}, s{sT3}, 0
    s_mov_b32 s{sWB+2}, 28672
    s_mov_b32 s{sWB+3}, 0x00020000
    s_lshl_b32 s{sT0}, s{sFF}, 1
    s_cmp_eq_u32 s{sRole}, 2
    s_cselect_b32 s{sRole}, s{sT0}, s{sRole}
    v_and_b32 v{vT}, 8, v{vL}
    v_lshlrev_b32 v{vT}, 3, v{vT}
    v_lshl_add_u32 v{vT}, v{g}, 4, v{vT}
    v_mul_u32_u24 v{vKo}, 7168, v{g}
    v_lshl_add_u32 v{vKo}, v{n}, 4, v{vKo}
    s_and_b32 s{sT0}, s{sW}, 3
    s_lshl_b32 s{sT1}, s{sT0}, 8
    v_add_u32 v{vKo}, s{sT1}, v{vKo}
    s_cmp_eq_u32 s{sT0}, 3
    s_cselect_b32 s{sT0}, 8, 0
    v_and_b32 v{vS}, s{sT0}, v{vL}
    v_lshl_or_b32 v{vKo}, v{vS}, 27, v{vKo}
    """)
    a(f"""
    s_lshl_b32 s{sRed}, s{sH}, 2
    s_lshr_b32 s{sT0}, s{sS}, 1
    s_add_u32 s{sRed}, s{sRed}, s{sT0}
    s_bitcmp1_b32 s{sS}, 0
    s_cselect_b32 s{sRed}, s{sRed}, 99
    s_cmp_lg_u32 s{sW}, 2
    s_cbranch_scc1 L_noz
    v_mov_b32 v{vS}, 0
    v_mov_b32 v{vS+1}, 0
    v_mov_b32 v{vS+2}, 0
    v_mov_b32 v{vS+3}, 0
    v_lshlrev_b32 v{vS+4}, 4, v{vL}
    ds_write_b128 v{vS+4}, {R(vS)} offset:{L_YP}
    ds_write_b32 v{vS}, v{vS} offset:{L_CNT}
    """)
    a.label("L_noz")
    if stamps:
        a(f"""
        s_lshl_b32 s{sTSo}, s2, 4
        s_add_u32 s{sTSo}, s{sTSo}, s{sW}
        s_lshl_b32 s{sTSo}, s{sTSo}, 6
        s_add_u32 s{sTSo}, s{sTSo}, {TS_OFF}
        """)
    stamp(0)
    a("s_waitcnt lgkmcnt(0)")
    a("s_barrier")
    assert NPRE <= 4
    qb = [80, 84, 88, 92]
    for i in range(4): a(f"ds_read_b128 {R(qb[i])}, v{vT} offset:{L_Q+128*i}")
    a(f"s_sub_u32 s{sT0}, s{sRole}, 1")
    a(f"s_waitcnt vmcnt({NPRE})")
    stamp(1)
    acc = [vS, vS + 4, vQ, vQ + 4]
    for i in range(4):
        a(f"s_waitcnt lgkmcnt({3-i})")
        for u in range(4):
            c = "0" if i == 0 else R(acc[u])
            a(f"v_mfma_f32_16x16x32_bf16 {R(acc[u])}, {R(4*(4*u+i))}, {R(qb[i])}, {c}")
    a(f"""
    s_cmp_gt_u32 s{sT0}, 1
    s_cbranch_scc1 L_now
    """)
    for t in range(8):
        so_ = "0" if t < 4 else f"s{s3584}"
        a(f"buffer_load_dwordx4 {R(32+4*t)}, v{vKo}, {S(sWB)}, {so_} offen offset:{896*(t%4)}{WP}")
    a.label("L_now")
    NB2 = NPRE + NMID
    for idx in range(NPRE, NB2): vload(idx)
    a(f"""
    s_cmp_eq_u32 s{sW}, 3
    s_cbranch_scc1 L_ldgate
    """)
    a.label("L_sm")
    a("s_nop 1")
    for r in range(4): a(f"v_permlane32_swap_b32 v{acc[0]+r}, v{acc[1]+r}")
    for r in range(4): a(f"v_permlane32_swap_b32 v{acc[2]+r}, v{acc[3]+r}")
    for r in range(4): a(f"v_add_f32_dpp v{vS+r}, v{acc[1]+r}, v{acc[0]+r} row_ror:8 {DPPF}")
    for r in range(4): a(f"v_add_f32_dpp v{vS+4+r}, v{acc[3]+r}, v{acc[2]+r} row_ror:8 {DPPF}")
    for k in range(0, 8, 2): a(f"v_cvt_pk_bf16_f32 v{vA+k//2}, v{vS+k}, v{vS+k+1}")
    for k in range(4): a(f"v_mov_b32_dpp v{vA+k}, v{vA+k} row_ror:8 row_mask:0xf bank_mask:0xc")
    for k in range(0, 8, 2):
        a(f"v_lshlrev_b32 v{vS+k}, 16, v{vA+k//2}")
        a(f"v_and_b32 v{vS+k+1}, s{sHI}, v{vA+k//2}")
    m, t1, l, mc = vA, vA + 1, vA + 2, vA + 3
    a(f"""
    v_max3_f32 v{m}, v{vS}, v{vS+1}, v{vS+2}
    v_max3_f32 v{t1}, v{vS+3}, v{vS+4}, v{vS+5}
    v_max3_f32 v{m}, v{m}, v{vS+6}, v{vS+7}
    v_max_f32 v{m}, v{m}, v{t1}
    v_mov_b32 v{t1}, v{m}
    v_permlane16_swap_b32 v{m}, v{t1}
    v_max_f32 v{m}, v{m}, v{t1}
    v_mov_b32 v{t1}, v{m}
    v_permlane32_swap_b32 v{m}, v{t1}
    v_max_f32 v{m}, v{m}, v{t1}
    v_mul_f32 v{mc}, s{sC}, v{m}
    """)
    for k in range(8): a(f"v_fma_f32 v{vS+k}, v{vS+k}, s{sC}, -v{mc}")
    for k in range(8): a(f"v_exp_f32 v{vS+k}, v{vS+k}")
    a(f"""
    v_add_f32 v{l}, v{vS}, v{vS+1}
    v_add_f32 v{t1}, v{vS+2}, v{vS+3}
    v_add_f32 v{l}, v{l}, v{vS+4}
    v_add_f32 v{t1}, v{t1}, v{vS+5}
    v_add_f32 v{l}, v{l}, v{vS+6}
    v_add_f32 v{t1}, v{t1}, v{vS+7}
    v_add_f32 v{l}, v{l}, v{t1}
    v_mov_b32 v{t1}, v{l}
    v_permlane16_swap_b32 v{l}, v{t1}
    v_add_f32 v{l}, v{l}, v{t1}
    v_mov_b32 v{t1}, v{l}
    v_permlane32_swap_b32 v{l}, v{t1}
    v_add_f32 v{t1}, v{l}, v{t1}
    s_lshl_b32 s{sT0}, s{sW}, 3
    v_mov_b32 v{vT}, s{sT0}
    ds_write_b64 v{vT}, {R(m,2)} offset:{L_ML}
    v_and_b32 v{vT}, 15, v{vL}
    v_lshlrev_b32 v{vT}, 3, v{vT}
    v_mov_b32 v{l}, 0
    s_waitcnt lgkmcnt(0)
    s_barrier
    ds_read_b64 {R(vO+4,2)}, v{vT} offset:{L_ML}
    ds_read_b32 v{vKo}, v{l} offset:{L_TAG}
    """)
    for idx in range(NB2, 16): vload(idx)
    a("s_waitcnt lgkmcnt(0)")
    a(f"v_readfirstlane_b32 s{sTag}, v{vKo}")
    stamp(2)
    mi, li, M, L = vO + 4, vO + 5, vO, vO + 2
    a(f"v_mov_b32 v{M}, v{mi}")
    for k in (8, 4, 2, 1): a(f"v_max_f32_dpp v{M}, v{M}, v{M} row_ror:{k} {DPPF}")
    a(f"""
    v_sub_f32 v{m}, v{m}, v{M}
    v_mul_f32 v{m}, s{sC}, v{m}
    v_exp_f32 v{m}, v{m}
    s_cmp_eq_u32 s{sW}, 2
    s_cbranch_scc1 L_stat
    """)
    a.label("L_nostat")
    a(f"""
    v_and_b32 v{t1}, 8, v{vL}
    v_cmp_ne_u32 vcc, 0, v{t1}
    v_mov_b32 v{t1}, s{sHI}
    v_cndmask_b32 v{t1}, 0, v{t1}, vcc
    """)
    for k in range(8): a(f"v_mul_f32 v{vS+k}, v{vS+k}, v{m}")
    for k in range(8):
        tt = vA + 4 + (k & 3)
        a(f"v_cvt_pk_bf16_f32 v{tt}, v{vS+k}, v{vS+k}")
        a(f"v_and_b32 v{tt}, v{t1}, v{tt}")
        a(f"v_sub_f32 v{vS+k}, v{vS+k}, v{tt}")
        a(f"v_cvt_pk_bf16_f32 v{vS+k}, v{vS+k}, v{vS+k}")
    for t in range(4):
        ab = vA + 4 * (t & 1)
        for r in range(4): a(f"v_and_b32 v{ab+r}, v{vS+t}, v{vMask+r}")
        a(f"s_waitcnt vmcnt({14-2*t})")
        for hf in range(2):
            c = "0" if t == 0 else R(vO + 4 * hf)
            a(f"v_mfma_f32_16x16x32_bf16 {R(vO+4*hf)}, {R(ab)}, {R(64+4*(2*t+hf))}, {c}")
    stamp(3)
    for t in range(4):
        for r in range(4): a(f"v_and_b32 v{64+4*t+r}, v{vS+4+t}, v{vMask+r}")
    g, n = vA, vA + 1
    vTag = vKo; vSel = vVo
    a(f"""
    v_lshrrev_b32 v{g}, 4, v{vL}
    v_and_b32 v{n}, 15, v{vL}
    s_lshl_b32 s{sT0}, s{sW}, 10
    v_lshrrev_b32 v83, 5, v{vL}
    v_lshlrev_b32 v83, 9, v83
    v_lshl_add_u32 v83, v{n}, 5, v83
    v_and_b32 v{vT}, 16, v{vL}
    v_add3_u32 v83, v83, v{vT}, s{sT0}
    v_and_b32 v82, 31, v{vL}
    v_lshlrev_b32 v82, 2, v82
    v_lshrrev_b32 v81, 5, v{vL}
    v_lshl_add_u32 v81, v81, 13, v82
    s_and_b32 s{sT1}, s{sW}, 7
    s_lshl_b32 s{sT0}, s{sT1}, 7
    v_add_u32 v81, s{sT0}, v81
    v_and_b32 v{vSel}, 3, v{vL}
    v_add_u32 v{vSel}, 0x07060500, v{vSel}
    v_mov_b32 v80, 0
    s_lshl_b32 s{sP0}, s{sBH}, 3
    s_add_u32 s{sP0}, s{sP0}, s{sT1}
    s_lshl_b32 s{sP0}, s{sP0}, 3
    s_add_u32 s{sP0}, s{sP0}, s{sS}
    s_lshl_b32 s{sP0}, s{sP0}, 7
    s_add_u32 s{sP0}, s{sP0}, {OB_OFF}
    s_cmp_eq_u32 s{sRole}, 1
    s_cbranch_scc1 L_mid1
    s_cmp_eq_u32 s{sRole}, 2
    s_cbranch_scc1 L_mid2
    s_cmp_ge_u32 s{sW}, 8
    s_cbranch_scc1 L_mid3
    s_cmp_eq_u32 s{sW}, 3
    s_cbranch_scc1 L_gate
    """)
    a.label("L_pv2"); a.forget()
    for t in range(4):
        a(f"s_waitcnt vmcnt({6-2*t})")
        for hf in range(2):
            a(f"v_mfma_f32_16x16x32_bf16 {R(vO+4*hf)}, {R(64+4*t)}, {R(4*(2*t+hf))}, {R(vO+4*hf)}")
    if ack: stamp(0)
    a(f"s_cmp_lt_u32 s{sW}, 8")
    for r in range(4): a(f"v_permlane32_swap_b32 v{vO+r}, v{vO+4+r}")
    for r in range(4): a(f"v_add_f32 v{vO+r}, v{vO+r}, v{vO+4+r}")
    a(f"""
    ds_write_b128 v83, {R(vO)} offset:{L_OW}
    s_cbranch_scc1 L_low
    s_waitcnt lgkmcnt(0)
    s_barrier
    """)
    for i in range(4): a(f"ds_read2st64_b32 {R(2*i,2)}, v81 offset0:{L_OW//256+8*i} offset1:{L_OW//256+8*i+4}")
    a(f"""
    s_waitcnt lgkmcnt(2)
    v_add_f32 v0, v0, v1
    v_add_f32 v2, v2, v3
    s_waitcnt lgkmcnt(0)
    v_add_f32 v4, v4, v5
    v_add_f32 v6, v6, v7
    v_add_f32 v0, v0, v2
    v_add_f32 v4, v4, v6
    v_add_f32 v0, v0, v4
    v_mov_b32 v1, v0
    v_permlane32_swap_b32 v0, v1
    v_add_f32 v0, v0, v1
    v_perm_b32 v0, v0, v{vTag}, v{vSel}
    s_mov_b32 exec_hi, 0
    buffer_store_dword v0, v82, {S(sWS)}, s{sP0} offen sc1
    """)
    stamp(4)
    a(f"""
    s_cmp_lt_u32 s{sRed}, 28
    s_cbranch_scc1 L_reduce
    """)
    endpgm()
    a.label("L_low"); a.forget()
    a(f"""
    s_cmp_eq_u32 s{sRole}, 1
    s_cbranch_scc1 L_gemv1
    s_waitcnt lgkmcnt(0)
    s_barrier
    """)
    if xs: endpgm()
    a(f"""
    s_add_u32 s{sT0}, s{sRed}, s{sB}
    s_add_u32 s{sT0}, s{sT0}, s{sW}
    s_max_u32 s{sT1}, s{sRed}, 28
    s_cmp_lg_u32 s{sT1}, s{sRed}
    s_cselect_b32 s{sT0}, 99, s{sT0}
    s_cmp_eq_u32 s{sT0}, 28
    s_cbranch_scc1 L_epoch
    """)
    endpgm()

    a.label("L_gemv1"); a.forget()
    cf = 123
    def oload(): a(f"buffer_load_dwordx4 {R(0)}, v122, {S(sWS)}, s{sP1} offen sc1")
    a(f"s_mov_b32 s{sCnt}, 0")
    a.label("L_stchk")
    a(f"""
    v_cmp_ne_u32 vcc, s{sTag}, v85
    v_cmp_ne_u32 {S(sM,2)}, s{sTag}, v87
    s_or_b64 vcc, vcc, {S(sM,2)}
    s_cbranch_vccz L_stok
    s_add_u32 s{sCnt}, s{sCnt}, 1
    s_cmp_gt_u32 s{sCnt}, {LIM}
    s_cbranch_scc1 L_stok
    buffer_load_dwordx4 {R(84)}, v89, {S(sWS)}, s{sT3} offen sc1
    s_waitcnt vmcnt(0)
    s_branch L_stchk
    """)
    a.label("L_stok"); a.forget()
    M = vA
    a(f"v_mov_b32 v{M}, v84")
    for d in Q8: a(f"v_max_f32_dpp v{M}, v{M}, v{M} {d} {DPPF}")
    a(f"""
    v_sub_f32 v{cf}, v84, v{M}
    v_mul_f32 v{cf}, s{sC}, v{cf}
    v_exp_f32 v{cf}, v{cf}
    v_mul_f32 v{M}, v{cf}, v86
    """)
    for d in Q8: a(f"v_add_f32_dpp v{M}, v{M}, v{M} {d} {DPPF}")
    a(f"""
    v_rcp_f32 v{M}, v{M}
    v_mul_f32 v{cf}, v{cf}, v{M}
    s_mov_b32 s{sCnt}, 0
    s_cmp_eq_u32 s{sFF}, 0
    s_waitcnt lgkmcnt(0)
    s_barrier
    """)
    if xs: endpgm()
    oload()
    a(f"""
    ds_read_b64 {R(90,2)}, v80 offset:{L_GG}
    s_cbranch_scc1 L_nof
    ds_read_b128 {R(92)}, v120 offset:{L_F}
    """)
    a.label("L_nof")
    a("s_waitcnt lgkmcnt(0)")
    for r in range(4): a(f"v_mul_f32 v{92+r}, v{92+r}, v91")
    a("s_waitcnt vmcnt(0)")
    a.label("L_ochk"); a.forget()
    tag_chk(0, 4, 5)
    a(f"""
    s_cbranch_vccz L_ook
    s_mov_b64 exec, vcc
    """)
    oload()
    a(f"""
    s_mov_b64 exec, -1
    s_add_u32 s{sCnt}, s{sCnt}, 1
    s_waitcnt vmcnt({pipe})
    s_cmp_gt_u32 s{sCnt}, {LIM}
    s_cbranch_scc0 L_ochk
    """)
    a.label("L_ook"); a.forget()
    stamp(5)
    for r in range(4): a(f"v_mul_f32 v{24+r}, v{r}, v{cf}")
    for d in Q8:
        for r in range(4): a(f"v_add_f32_dpp v{24+r}, v{24+r}, v{24+r} {d} {DPPF}")
    for r in range(4): a(f"v_cvt_pk_bf16_f32 v{24+r}, v{24+r}, v{24+r}")
    for r in range(4): a(f"v_mov_b32_dpp v{28+r}, v{24+r} row_ror:8 {DPPF}")
    for t in range(8):
        ab = 8 + 4 * (t % 4)
        for r in range(4): a(f"v_and_b32 v{ab+r}, v{24+t}, v{vMask+r}")
        c = "0" if t == 0 else R(vO)
        a(f"v_mfma_f32_16x16x32_bf16 {R(vO)}, {R(ab)}, {R(32+4*t)}, {c}")
    a("s_mov_b32 exec_hi, 0")
    for r in range(4): a(f"v_fma_f32 v{vO+r}, v{vO+r}, v90, v{92+r}")
    tag_put(vO, vTag)
    a(f"buffer_store_dwordx4 {R(vO)}, v88, {S(sWS)}, s{sP2} offen sc1")
    stamp(6)
    if ack:
        a("s_waitcnt vmcnt(0)")
        stamp(9)
    endpgm()

    a.label("L_reduce"); a.forget()
    def yload(base=8): a(f"buffer_load_dwordx4 {R(base)}, v84, {S(sWS)}, s{sP1} offen sc1")
    a("s_mov_b64 exec, -1")
    yload()
    a(f"s_mov_b32 s{sCnt}, 0")
    a.label("L_ypoll"); a.forget()
    a("s_waitcnt vmcnt(0)")
    tag_chk(8, 4, 5)
    a(f"""
    s_cbranch_vccz L_yok
    s_mov_b64 exec, vcc
    """)
    yload()
    a(f"""
    s_mov_b64 exec, -1
    s_add_u32 s{sCnt}, s{sCnt}, 1
    s_cmp_gt_u32 s{sCnt}, {LIM}
    s_cbranch_scc0 L_ypoll
    s_waitcnt vmcnt(0)
    """)
    a.label("L_yok"); a.forget()
    stamp(7)
    allred4(8, 0, ROW16)
    a(f"""
    s_mov_b64 exec, {S(sM,2)}
    ds_write_b128 v85, {R(8)} offset:{L_YP}
    s_mov_b64 exec, 1
    ds_add_rtn_u32 v4, v80, v86 offset:{L_CNT}
    s_mov_b64 exec, -1
    ds_read_b128 {R(12)}, v84 offset:{L_YP}
    s_waitcnt lgkmcnt(1)
    v_readfirstlane_b32 s{sT0}, v4
    s_cmp_lg_u32 s{sT0}, 7
    s_cbranch_scc1 L_yend
    s_waitcnt lgkmcnt(0)
    """)
    allred4(12, 0, ROW16)
    a(f"""
    v_cvt_pk_bf16_f32 v12, v12, v13
    v_cvt_pk_bf16_f32 v13, v14, v15
    s_mov_b64 exec, {S(sM,2)}
    global_store_dwordx2 v90, {R(12,2)}, s[38:39]
    """)
    stamp(8)
    a.label("L_yend")
    endpgm()
    a.label("L_epoch"); a.forget()
    a(f"""
    s_mov_b32 s{sCnt}, 0
    v_lshlrev_b32 v84, 4, v{vL}
    s_movk_i32 s{sT3}, {ST_OFF}
    """)
    a.label("L_fchk")
    for i in range(4):
        a(f"buffer_load_dwordx4 {R(32+4*i)}, v84, {S(sWS)}, s{sT3} offen offset:{1024*i} sc1")
    a("s_waitcnt vmcnt(0)")
    for i in range(4): a(f"v_xor_b32 v{33+4*i}, s{sTag}, v{33+4*i}")
    a(f"""
    v_or3_b32 v33, v33, v37, v41
    v_or_b32 v33, v33, v45
    v_cmp_ne_u32 vcc, 0, v33
    s_cbranch_vccz L_fok
    s_add_u32 s{sCnt}, s{sCnt}, 1
    s_cmp_gt_u32 s{sCnt}, {LIM}
    s_cbranch_scc0 L_fchk
    """)
    a.label("L_fok"); a.forget()
    a(f"""
    s_mov_b64 exec, 1
    buffer_store_dword v{vTag}, off, {S(sWS)}, 0 offset:{EP_OFF} sc1
    """)
    endpgm()

    a.label("L_stat"); a.forget()
    mi, li, M, L = vO + 4, vO + 5, vO, vO + 2
    a(f"""
    v_sub_f32 v{mi}, v{mi}, v{M}
    v_mul_f32 v{mi}, s{sC}, v{mi}
    v_exp_f32 v{mi}, v{mi}
    v_mul_f32 v{L}, v{li}, v{mi}
    """)
    for k in (8, 4, 2, 1): a(f"v_add_f32_dpp v{L}, v{L}, v{L} row_ror:{k} {DPPF}")
    a(f"""
    v_mov_b32 v{M+1}, s{sTag}
    v_mov_b32 v{L+1}, s{sTag}
    s_lshl_b32 s{sT0}, s{sBH}, 3
    s_add_u32 s{sT0}, s{sT0}, s{sS}
    s_lshl_b32 s{sT0}, s{sT0}, 4
    s_add_u32 s{sT0}, s{sT0}, {ST_OFF}
    s_mov_b64 exec, 1
    buffer_store_dwordx4 {R(M)}, off, {S(sWS)}, s{sT0} sc1
    s_mov_b64 exec, -1
    s_branch L_nostat
    """)
    a.label("L_mid1"); a.forget()
    a(f"""
    v_and_b32 v{vT}, 7, v{vL}
    v_lshlrev_b32 v89, 4, v{vT}
    s_lshl_b32 s{sT3}, s{sBH}, 7
    s_add_u32 s{sT3}, s{sT3}, {ST_OFF}
    v_lshlrev_b32 v122, 7, v{vT}
    v_lshl_add_u32 v122, v{g}, 5, v122
    v_bfe_u32 v{vT}, v{vL}, 3, 1
    v_lshl_add_u32 v122, v{vT}, 4, v122
    s_lshl_b32 s{sP1}, s{sBH}, 3
    s_add_u32 s{sP1}, s{sP1}, s{sS}
    s_lshl_b32 s{sP1}, s{sP1}, 10
    s_add_u32 s{sP1}, s{sP1}, {OB_OFF}
    buffer_load_dwordx4 {R(84)}, v89, {S(sWS)}, s{sT3} offen sc1
    s_and_b32 s{sT0}, s{sW}, 3
    s_cmp_lg_u32 s{sT0}, 0
    s_cbranch_scc1 L_mid1b
    buffer_load_dwordx4 {R(vS)}, v122, {S(sWS)}, s{sP1} offen sc1
    """)
    a.label("L_mid1b")
    a(f"""
    s_lshl_b32 s{sT1}, s{sT0}, 10
    v_lshlrev_b32 v120, 4, v{vL}
    v_add_u32 v120, s{sT1}, v120
    v_lshrrev_b32 v88, 1, v{n}
    v_mul_u32_u24 v88, {YST}, v88
    v_and_b32 v{vT}, 1, v{n}
    v_lshl_add_u32 v88, v{vT}, 5, v88
    v_and_b32 v{vT}, 16, v{vL}
    v_add_u32 v88, v88, v{vT}
    s_mul_i32 s{sP2}, s{sB}, 28
    s_lshl_b32 s{sT1}, s{sT0}, 3
    s_add_u32 s{sP2}, s{sP2}, s{sT1}
    s_mul_i32 s{sP2}, s{sP2}, {YST}
    s_lshl_b32 s{sT1}, s{sH}, 3
    s_add_u32 s{sT1}, s{sT1}, s{sS}
    s_lshl_b32 s{sT1}, s{sT1}, {YSH}
    s_add_u32 s{sP2}, s{sP2}, s{sT1}
    s_add_u32 s{sP2}, s{sP2}, {YB_OFF}
    s_cmp_eq_u32 s{sT0}, 3
    s_cselect_b32 s{sT0}, 8, 0
    v_and_b32 v{vT}, s{sT0}, v{vL}
    v_lshl_or_b32 v88, v{vT}, 27, v88
    v_mov_b32 v92, 0
    v_mov_b32 v93, 0
    v_mov_b32 v94, 0
    v_mov_b32 v95, 0
    s_branch L_pv2
    """)
    a.label("L_mid2"); a.forget()
    a(f"""
    v_lshlrev_b32 v{vT}, 5, v{g}
    ds_read_b128 {R(84)}, v{vT} offset:{L_R2}
    ds_read_b128 {R(88)}, v{vT} offset:{L_R2+16}
    s_waitcnt lgkmcnt(0)
    """)
    for t in range(8): a(f"v_cvt_pk_bf16_f32 v{84+t}, v{84+t}, v{84+t}")
    for t in range(8):
        ab = vA + 4 * (t & 1)
        for r in range(4): a(f"v_and_b32 v{ab+r}, v{84+t}, v{vMask+r}")
        c = "0" if t == 0 else R(92)
        a(f"v_mfma_f32_16x16x32_bf16 {R(92)}, {R(ab)}, {R(32+4*t)}, {c}")
    a(f"""
    s_and_b32 s{sT0}, s{sW}, 3
    s_lshl_b32 s{sT1}, s{sT0}, 10
    v_lshlrev_b32 v{vT}, 4, v{vL}
    v_add_u32 v{vT}, s{sT1}, v{vT}
    ds_write_b128 v{vT}, {R(92)} offset:{L_F}
    s_branch L_pv2
    """)
    a.label("L_mid3"); a.forget()
    assert YS == 64
    a(f"""
    s_cmp_ge_u32 s{sRed}, 28
    s_cbranch_scc1 L_pv2
    v_lshlrev_b32 v84, 6, v{n}
    v_lshl_add_u32 v84, v{g}, 4, v84
    s_mov_b32 s{sM}, 0x00010001
    s_mov_b32 s{sM+1}, 0x00010001
    s_and_b32 s{sT1}, s{sW}, 7
    s_lshl_b32 s{sT0}, s{sT1}, 6
    v_lshlrev_b32 v85, 4, v{g}
    v_add_u32 v85, s{sT0}, v85
    v_mov_b32 v86, 1
    s_lshl_b32 s{sT0}, s{sRed}, 5
    s_mul_i32 s{sT2}, s{sB}, 896
    s_add_u32 s{sT0}, s{sT0}, s{sT2}
    v_lshlrev_b32 v90, 3, v{g}
    v_add_u32 v90, s{sT0}, v90
    s_mul_i32 s{sP1}, s{sB}, 28
    s_add_u32 s{sP1}, s{sP1}, s{sRed}
    s_mul_i32 s{sP1}, s{sP1}, {YST}
    s_lshl_b32 s{sT1}, s{sT1}, 10
    s_add_u32 s{sP1}, s{sP1}, s{sT1}
    s_add_u32 s{sP1}, s{sP1}, {YB_OFF}
    """)
    if ywarm: yload(32)
    a("s_branch L_pv2")
    a.label("L_gate"); a.forget()
    xa, ga = 32, 36
    a("v_mov_b32 v44, 0")
    for r in range(4):
        a(f"""
        v_lshlrev_b32 v40, 16, v{xa+r}
        v_and_b32 v41, s{sHI}, v{xa+r}
        v_lshlrev_b32 v42, 16, v{ga+r}
        v_and_b32 v43, s{sHI}, v{ga+r}
        v_mul_f32 v40, v40, v42
        v_mul_f32 v41, v41, v43
        v_cvt_pk_bf16_f32 v40, v40, v41
        v_lshlrev_b32 v41, 16, v40
        v_and_b32 v40, s{sHI}, v40
        v_add_f32 v44, v44, v41
        v_add_f32 v44, v44, v40
        """)
    for k in (8, 4, 2, 1): a(f"v_add_f32_dpp v44, v44, v44 row_ror:{k} {DPPF}")
    a(f"""
    v_mov_b32 v45, v44
    v_permlane16_swap_b32 v44, v45
    v_add_f32 v44, v44, v45
    v_mov_b32 v45, v44
    v_permlane32_swap_b32 v44, v45
    v_add_f32 v44, v44, v45
    v_cvt_pk_bf16_f32 v44, v44, v44
    v_and_b32 v44, s{sHI}, v44
    v_mul_f32 v44, {f32(-1.4426950408889634)}, v44
    v_exp_f32 v44, v44
    v_add_f32 v44, 1.0, v44
    v_rcp_f32 v44, v44
    v_cvt_pk_bf16_f32 v44, v44, v44
    v_and_b32 v44, s{sHI}, v44
    v_sub_f32 v45, 1.0, v44
    v_cvt_pk_bf16_f32 v45, v45, v45
    v_and_b32 v45, s{sHI}, v45
    ds_write_b64 v80, {R(44,2)} offset:{L_GG}
    s_cmp_ge_u32 s{sRed}, 28
    s_cbranch_scc1 L_pv2
    v_lshlrev_b32 v40, 16, v46
    v_and_b32 v41, s{sHI}, v46
    v_lshlrev_b32 v42, 16, v47
    v_and_b32 v43, s{sHI}, v47
    v_mul_f32 v40, v40, v45
    v_mul_f32 v41, v41, v45
    v_mul_f32 v42, v42, v45
    v_mul_f32 v43, v43, v45
    v_lshlrev_b32 v{vT}, 4, v{g}
    ds_write_b128 v{vT}, {R(40)} offset:{L_YP+512}
    s_branch L_pv2
    """)
    a.label("L_ldgate"); a.forget()
    for r in range(8): a(f"v_mov_b32 v{32+r}, 0")
    a(f"""
    v_lshlrev_b32 v{vA+1}, 4, v{vL}
    s_mul_i32 s{sT0}, s{sB}, 896
    v_add_u32 v{vA}, s{sT0}, v{vA+1}
    s_min_u32 s{sT0}, s{sRed}, 27
    s_lshl_b32 s{sT0}, s{sT0}, 5
    v_lshrrev_b32 v{vA+2}, 4, v{vL}
    v_lshlrev_b32 v{vA+2}, 3, v{vA+2}
    v_add_u32 v{vA+2}, s{sT0}, v{vA+2}
    s_mov_b32 exec_hi, 0x00ffffff
    global_load_dwordx4 {R(32)}, v{vA}, s[16:17]
    global_load_dwordx4 {R(36)}, v{vA+1}, s[36:37]
    s_mov_b64 exec, -1
    global_load_dwordx2 {R(46,2)}, v{vA+2}, s[34:35]
    s_branch L_sm
    """)

    n, g = 120, 121
    a.label("L_stage1"); a.forget()
    SO = [None, 60, 61, 62, 64, 65, 66, 67, 69, 70, 71, 76, 77, 78]
    sStr = sP1
    a(f"""
    s_movk_i32 s{sStr}, 3584
    s_mov_b32 s{sP0}, {SH_OFF}
    s_cmp_eq_u32 s{sW}, 0
    s_cselect_b32 s{sStr}, 8192, s{sStr}
    s_cselect_b32 s{sP2}, 9, 8
    s_cselect_b32 s{sT3}, s{sH}, s{sHF}
    s_cselect_b32 s{sP0}, {SQ_OFF}, s{sP0}
    s_mul_i32 s{sCnt}, s{sStr}, 448
    s_lshr_b32 s{sT1}, s{sJJ}, 1
    s_mul_i32 s{sT2}, s{sT1}, 56
    s_mul_i32 s{sT2}, s{sT2}, s{sStr}
    s_lshl_b32 s{sT3}, s{sT3}, s{sP2}
    s_add_u32 s{sT2}, s{sT2}, s{sT3}
    s_and_b32 s{sT3}, s{sJJ}, 1
    s_lshl_b32 s{sT0}, s{sT3}, 8
    s_add_u32 s{sT2}, s{sT2}, s{sT0}
    s_sub_u32 s{sWA+2}, s{sCnt}, s{sT2}
    s_mul_i32 s{sT0}, s{sStr}, 14
    v_mul_u32_u24 v{vT}, s{sT0}, v{g}
    v_lshl_add_u32 v{vT}, v{n}, 4, v{vT}
    s_mov_b32 s{SO[1]}, s{sStr}
    """)
    for t in range(2, 14): a(f"s_add_u32 s{SO[t]}, s{SO[t-1]}, s{sStr}")
    a(f"""
    v_lshrrev_b32 v{vS}, 3, v{n}
    v_mul_u32_u24 v{vS}, 896, v{vS}
    v_mad_u32_u24 v{vS}, v{g}, 28, v{vS}
    s_mul_i32 s{sT0}, s{sT1}, 112
    v_add_u32 v{vS}, s{sT0}, v{vS}
    v_mov_b32 v{vS+1}, 0
    s_cmp_eq_u32 s{sW}, 0
    s_waitcnt lgkmcnt(0)
    s_cselect_b32 s{sWA}, s22, s28
    s_cselect_b32 s{sWA+1}, s23, s29
    s_add_u32 s{sWA}, s{sWA}, s{sT2}
    s_addc_u32 s{sWA+1}, s{sWA+1}, 0
    """)
    for t in range(14):
        a(f"buffer_load_dwordx4 {R(4*t)}, v{vT}, {S(sWA)}, {('s%d' % SO[t]) if t else '0'} offen{WQP}")
    a(f"""
    global_load_dwordx4 {R(56)}, v{vS}, s[16:17]
    global_load_dwordx3 {R(60,3)}, v{vS}, s[16:17] offset:16
    global_load_dword v63, v{vS+1}, s[42:43] offset:{EP_OFF} sc1
    {"s_barrier" if b0 else "s_nop 0"}
    s_add_u32 s{sK}, s18, s{sKV}
    s_addc_u32 s{sK+1}, s19, 0
    """)
    setup2()
    a(f"""
    v_lshrrev_b32 v{vT}, 1, v{g}
    v_lshlrev_b32 v{vT}, 13, v{vT}
    v_lshl_add_u32 v{vT}, v{n}, 5, v{vT}
    v_and_b32 v{vS}, 16, v{vL}
    v_add_u32 v{vT}, v{vT}, v{vS}
    s_lshl_b32 s{sT0}, s{sH}, 14
    s_add_u32 s{sP0}, s{sP0}, s{sT0}
    s_lshl_b32 s{sT0}, s{sB}, 13
    s_add_u32 s{sP1}, s{sP0}, s{sT0}
    s_lshl_b32 s{sT2}, s{sT1}, 10
    s_add_u32 s{sP0}, s{sP0}, s{sT2}
    s_lshl_b32 s{sT2}, s{sT3}, 9
    s_add_u32 s{sP0}, s{sP0}, s{sT2}
    s_mov_b32 s{sT2}, 0x01000100
    s_mov_b32 s{sT3}, 0x03020302
    v_lshlrev_b32 v{vQ+1}, 4, v{vL}
    s_add_u32 s{sP2}, s{sP1}, 4096
    s_waitcnt vmcnt(0)
    v_and_b32 v{vQ}, 0x7f7f7f7f, v63
    v_add_u32 v{vQ}, 0x671b3501, v{vQ}
    v_xor_b32 v63, 0xe79b3501, v63
    v_and_b32 v63, 0x80808080, v63
    v_xor_b32 v{vQ}, v{vQ}, v63
    v_mov_b32 v63, 0
    v_readfirstlane_b32 s{sTag}, v{vQ}
    ds_write_b32 v63, v{vQ} offset:{L_TAG}
    """)
    stamp(5)
    for t in range(14):
        ab = 112 if t & 1 else vA
        a(f"v_perm_b32 v{vS+4}, v{56+t//2}, v{56+t//2}, s{sT3 if t & 1 else sT2}")
        for r in range(4): a(f"v_and_b32 v{ab+r}, v{vS+4}, v{vMask+r}")
        c = "0" if t == 0 else R(vS)
        a(f"v_mfma_f32_16x16x32_bf16 {R(vS)}, {R(ab)}, {R(4*t)}, {c}")
    a(f"s_cmp_eq_u32 s{sW}, 1")
    tag_put(vS, vQ)
    a(f"buffer_store_dwordx4 {R(vS)}, v{vT}, {S(sWS)}, s{sP0} offen sc1")
    stamp(6)
    a("s_cbranch_scc1 L_hgather")
    def qload(i): a(f"buffer_load_dwordx4 {R(64+4*i)}, v{vQ+1}, {S(sWS)}, s{sP1 if i < 4 else sP2} offen offset:{1024*(i%4)} sc1")
    for f in range(KS): kload(f)
    for i in range(8): qload(i)
    poll_many("L_qp", [(64+4*i, (lambda i=i: qload(i))) for i in range(8)], vQ + 4, vQ + 5)
    for f in range(KS, 16): kload(f)
    for i in range(1, 8):
        for r in range(4): a(f"v_add_f32 v{64+r}, v{64+r}, v{64+4*i+r}")
    a(f"""
    v_cvt_pk_bf16_f32 v{vQ}, v64, v65
    v_cvt_pk_bf16_f32 v{vQ+1}, v66, v67
    v_lshlrev_b32 v{vT}, 3, v{vL}
    ds_write_b64 v{vT}, {R(vQ,2)} offset:{L_Q}
    """)
    stamp(10)
    a("s_branch L_kdone")
    a.label("L_hgather"); a.forget()
    for f in range(16): kload(f)
    h = vS
    a(f"""
    v_and_b32 v{vA}, 7, v{vL}
    v_lshrrev_b32 v{vQ}, 3, v{vL}
    v_lshlrev_b32 v{vQ}, 10, v{vQ}
    v_lshl_add_u32 v{vQ}, v{vA}, 4, v{vQ}
    s_lshl_b32 s{sT0}, s{sS}, 6
    s_add_u32 s{sP1}, s{sP1}, s{sT0}
    s_lshl_b32 s{sT1}, s{sHF}, 8
    s_lshl_b32 s{sT0}, s{sS}, 5
    s_add_u32 s{sT1}, s{sT1}, s{sT0}
    v_lshlrev_b32 v{vT}, 3, v{vA}
    v_add_u32 v{vT}, s{sT1}, v{vT}
    global_load_dwordx2 {R(118,2)}, v{vT}, s[30:31]
    """)
    def hload(): a(f"buffer_load_dwordx4 {R(h)}, v{vQ}, {S(sWS)}, s{sP1} offen sc1")
    hload()
    poll_many("L_hp", [(h, hload)], vQ + 4, vQ + 5)
    allred4(h, h + 4, ['ror:8', 'p16', 'p32'])
    rnd2(h, h + 1, vQ + 4); rnd2(h + 2, h + 3, vQ + 5)
    a(f"""
    v_lshlrev_b32 v{h+4}, 16, v118
    v_and_b32 v{h+5}, s{sHI}, v118
    v_lshlrev_b32 v{h+6}, 16, v119
    v_and_b32 v{h+7}, s{sHI}, v119
    """)
    for r in range(4): a(f"v_add_f32 v{h+r}, v{h+r}, v{h+4+r}")
    rnd2(h, h + 1, vQ + 4); rnd2(h + 2, h + 3, vQ + 5)
    for r in range(4): a(f"v_max_f32 v{h+r}, 0, v{h+r}")
    for r in range(4): a(f"v_mul_f32 v{h+r}, v{h+r}, v{h+r}")
    a(f"""
    v_lshlrev_b32 v{vT}, 4, v{vA}
    ds_write_b128 v{vT}, {R(h)} offset:{L_R2}
    s_nop 1
    s_branch L_kdone
    """)
    if stamps:
        a.label("L_stampout"); a.forget()
        if amp >= 0:
            if amp == 99: a("s_movk_i32 s11, 10000")
            else:
                a("s_cmp_eq_u32 s%d, 0" % STR[amp])
                a("s_cbranch_scc1 L_end")
                a("s_sub_u32 s11, s%d, s15" % STR[amp])
                a("s_min_u32 s11, s11, 20000")
                a("s_lshl_b32 s11, s11, 3")
            a.label("L_amp")
            a("s_sleep 8")
            a("s_memrealtime s[%d:%d]" % (sTS, sTS + 1))
            a("s_waitcnt lgkmcnt(0)")
            a("s_sub_u32 s12, s%d, s15" % sTS)
            a("s_cmp_lt_u32 s12, s11")
            a("s_cbranch_scc1 L_amp")
        else:
            a("s_mov_b64 exec, -1")
            a("s_waitcnt vmcnt(0)")
            for i, r in enumerate(STR): a("v_writelane_b32 v0, s%d, %d" % (r, i))
            a(f"v_lshlrev_b32 v1, 2, v{vL}")
            a("s_mov_b64 exec, 0xfff")
            a("buffer_store_dword v0, v1, %s, s%d offen" % (S(sWS), sTSo))
    a.label("L_end")
    a("s_endpgm")
    if 2 <= lst <= 6:
        a.raw(".globl tiny_kernel\n.p2align 8\n.type tiny_kernel,@function\ntiny_kernel:\n    s_endpgm")
    a.raw('.section .rodata,"a"')
    if 2 <= lst <= 6:
        a.raw(".p2align 6\n.amdhsa_kernel tiny_kernel\n  .amdhsa_next_free_vgpr NV\n  .amdhsa_next_free_sgpr 16\n  .amdhsa_accum_offset NV\n  .amdhsa_group_segment_fixed_size 0\n  .amdhsa_kernarg_size 112\n  .amdhsa_user_sgpr_count 2\n  .amdhsa_user_sgpr_kernarg_segment_ptr 1\n  .amdhsa_system_sgpr_workgroup_id_x 1\n.end_amdhsa_kernel".replace("NV", {4: "128", 5: "256"}.get(lst, "8")))
    a.raw(".p2align 6")
    a.raw(".amdhsa_kernel %s_kernel" % NAME)
    a.raw("  .amdhsa_next_free_vgpr 128")
    a.raw("  .amdhsa_next_free_sgpr 102")
    a.raw("  .amdhsa_accum_offset 128")
    a.raw("  .amdhsa_group_segment_fixed_size 0")
    a.raw("  .amdhsa_kernarg_size 112")
    a.raw("  .amdhsa_user_sgpr_count 2")
    a.raw("  .amdhsa_user_sgpr_kernarg_segment_ptr 1")
    a.raw("  .amdhsa_system_sgpr_workgroup_id_x 1")
    a.raw("  .amdhsa_float_denorm_mode_32 3")
    a.raw(".end_amdhsa_kernel")
    return a.text()

if __name__ == "__main__":
    import argparse, inspect
    ap = argparse.ArgumentParser()
    ap.add_argument("-o", default="cdna_kernels/%s.s" % NAME)
    sig = inspect.signature(gen)
    for k, p in sig.parameters.items():
        if isinstance(p.default, bool): ap.add_argument("--" + k, action="store_true")
        elif isinstance(p.default, int): ap.add_argument("--" + k, type=int, default=p.default)
        else: ap.add_argument("--" + k, default=p.default)
    x = vars(ap.parse_args()); o = x.pop("o")
    x = {k: ("" if v == "none" else v) for k, v in x.items()}
    open(o, "w").write(gen(**x))
```

```python
import sys, struct
from asmlib import Asm

NAME = "gated_mix__mha_block_cached__dense_activation_squared_relu__decode"
def f32(x): return "0x%08x" % struct.unpack('<I', struct.pack('<f', x))[0]

def gen(kv="nt", wq="nt", w2="nt", stamps=False, NPRE=2, NMID=2, swz=1, amp=-1, xs=0, wmap=4, pipe=0, fpar=0, red=2, ypad=0, yskew=256, KS=16, early=0, pf=0, cpf=0, lst=0, BL=0, b0=0, ack=0, psl=0, ywarm=1, hx=0, tp=1, osl=0, opol=""):
    stamps = stamps or amp >= 0
    a = Asm()
    KV = (" " + kv) if kv else ""
    WQP = (" " + wq) if wq else ""
    WP = (" " + w2) if w2 else ""
    YS = 128 if ypad else 64
    YSH = 7 if ypad else 6
    YST = 128 * YS + yskew
    EP_OFF = 0; ST_OFF = 4096; OB_OFF = 8192; SQ_OFF = OB_OFF + 262144; SH_OFF = SQ_OFF + 262144
    YB_OFF = SH_OFF + 262144; TS_OFF = 1835008; WS_USED = 2097152
    assert YB_OFF + 56 * YST <= TS_OFF
    L_Q = 0; L_ML = 512; L_R2 = 640; L_GG = 768; L_TAG = 776; L_CNT = 780; L_YP = 1024; L_F = 1024; L_OW = 5120; OWS = 1024; LDS = L_OW + 16 * OWS
    sCk0, sCk1, sH, sB, sS, sJJ, sBH, sW = 3, 4, 5, 6, 7, 8, 9, 10
    sT0, sT1, sT2, sT3 = 11, 12, 13, 14
    sK, sV, sWS, sWA, sWB = 44, 48, 52, 56, 64
    sSel = [40, 41, 60, 61]; sE = 62; sFF = 63; sHF = 1
    sKV = 68
    sKT = 72; sVG = 76; sC = 78; sHI = 79; sM = 80
    sP0, sP1, sP2 = 82, 83, 84
    sRole = 85; sRed = 86; sCnt = 87
    sTS = 88; sTSo = 90; s3584 = 91; sTag = 92
    vMask = 96; vS = 100; vQ = 108; vO = 108; vA = 116; vKo = 124; vVo = 125; vL = 126; vT = 127
    LIM = 1 << 23
    def R(b, n=4): return "v[%d:%d]" % (b, b + n - 1)
    def S(b, n=4): return "s[%d:%d]" % (b, b + n - 1)
    STR = [26, 27, 93, 94, 95, 96, 97, 98, 99, 100, 101, 15]
    def stamp(idx):
        if not stamps: return
        a("s_memrealtime s[%d:%d]" % (sTS, sTS + 1))
        a("s_waitcnt lgkmcnt(0)")
        a("s_mov_b32 s%d, s%d" % (STR[idx], sTS))
    def endpgm():
        if stamps: a("s_branch L_stampout")
        else: a("s_endpgm")
    DPPF = "row_mask:0xf bank_mask:0xf"
    ROW16 = ['ror:8', 'ror:4', 'ror:2', 'ror:1']
    Q8 = ("quad_perm:[1,0,3,2]", "quad_perm:[2,3,0,1]", "row_half_mirror")
    def kload(f):
        u, i = f >> 2, f & 3
        a(f"buffer_load_dwordx4 {R(4*f)}, v{vKo}, {S(sK)}, s{sKT+u} offen offset:{128*i}{KV}")
    def vload(idx):
        G, t, hf = idx >> 3, (idx >> 1) & 3, idx & 1
        base = 64 if G == 0 else 0
        a(f"buffer_load_dwordx4 {R(base+4*(2*t+hf))}, v{vVo}, {S(sV)}, s{sVG+G} offen offset:{512*t+256*hf}{KV}")
    def allred4(base, tmp, steps, op="add"):
        for st in steps:
            if st.startswith('ror'):
                for r in range(4): a(f"v_{op}_f32_dpp v{base+r}, v{base+r}, v{base+r} row_{st} {DPPF}")
            else:
                sw = "v_permlane16_swap_b32" if st == 'p16' else "v_permlane32_swap_b32"
                for r in range(4): a(f"v_mov_b32 v{tmp+r}, v{base+r}")
                for r in range(4): a(f"{sw} v{base+r}, v{tmp+r}")
                for r in range(4): a(f"v_{op}_f32 v{base+r}, v{base+r}, v{tmp+r}")
    def rnd2(x, y, tmp):
        a(f"v_cvt_pk_bf16_f32 v{tmp}, v{x}, v{y}")
        a(f"v_lshlrev_b32 v{x}, 16, v{tmp}")
        a(f"v_and_b32 v{y}, s{sHI}, v{tmp}")
    def tag_put(base, vtag):
        for r in range(4): a(f"v_perm_b32 v{base+r}, v{base+r}, v{vtag}, s{sSel[r]}")
    def tag_chk(base, t0, t1):
        a(f"v_perm_b32 v{t0}, v{base+1}, v{base}, s{sCk0}")
        a(f"v_perm_b32 v{t1}, v{base+3}, v{base+2}, s{sCk1}")
        a(f"v_or_b32 v{t0}, v{t0}, v{t1}")
        a(f"v_cmp_ne_u32 vcc, s{sTag}, v{t0}")
    def poll_many(lbl, loads, t0, t1):
        a(f"s_mov_b32 s{sCnt}, 0")
        a.label(lbl); a.forget()
        a("s_waitcnt vmcnt(0)")
        a(f"s_mov_b32 s{sE}, 0")
        for i, (base, fn) in enumerate(loads):
            tag_chk(base, t0, t1)
            a(f"s_cbranch_vccz {lbl}_s{i}")
            a("s_mov_b64 exec, vcc")
            fn()
            a("s_mov_b64 exec, -1")
            a(f"s_mov_b32 s{sE}, 1")
            a.label(f"{lbl}_s{i}")
        a(f"""
        s_cmp_eq_u32 s{sE}, 0
        s_cbranch_scc1 {lbl}_ok
        s_add_u32 s{sCnt}, s{sCnt}, 1
        s_cmp_gt_u32 s{sCnt}, {LIM}
        s_cbranch_scc0 {lbl}
        s_waitcnt vmcnt(0)
        """)
        a.label(lbl + "_ok"); a.forget()
    def setup2():
        a(f"""
        s_add_u32 s{sV}, s20, s{sKV}
        s_addc_u32 s{sV+1}, s21, 0
        s_mov_b32 s{sWS}, s42
        s_mov_b32 s{sWS+1}, s43
        """)
        if stamps:
            for r in STR[:11]: a("s_mov_b32 s%d, 0" % r)
        tmp = vS
        a(f"""
        v_and_b32 v{tmp}, 1, v{vL}
        v_lshlrev_b32 v{tmp}, 4, v{tmp}
        v_mov_b32 v{tmp+1}, 0xffff
        v_lshlrev_b32 v{tmp+1}, v{tmp}, v{tmp+1}
        v_bfe_u32 v{tmp+2}, v{vL}, 1, 2
        """)
        for r in range(4):
            a(f"v_cmp_eq_u32 vcc, {r}, v{tmp+2}")
            a(f"s_mov_b32 s{sSel[r]}, {0x07060500 + r}")
            a(f"v_cndmask_b32 v{vMask+r}, 0, v{tmp+1}, vcc")
        a(f"""
        s_mov_b32 s{sCk0}, 0x0c0c0400
        s_mov_b32 s{sCk1}, 0x04000c0c
        """)

    if lst == 2: a.raw("; @launch kernel=tiny_kernel grid=(1,1,1) block=(64,1,1) lds=0")
    if lst: a.raw("; @launch kernel=%s_kernel grid=(256,1,1) block=(1024,1,1) lds=%d" % (NAME, LDS))
    else: a.raw("; @launch grid=(256,1,1) block=(1024,1,1) lds=%d" % LDS)
    if lst == 3: a.raw("; @launch kernel=tiny_kernel grid=(1,1,1) block=(64,1,1) lds=0")
    if lst == 4: a.raw("; @launch kernel=tiny_kernel grid=(256,1,1) block=(1024,1,1) lds=21504")
    if lst == 5: a.raw("; @launch kernel=tiny_kernel grid=(256,1,1) block=(512,1,1) lds=21504")
    if lst == 6: a.raw("; @launch kernel=tiny_kernel grid=(256,1,1) block=(64,1,1) lds=0")
    if lst == 7: a.raw("; @launch kernel=%s_kernel grid=(256,1,1) block=(1024,1,1) lds=%d" % (NAME, LDS))
    a.raw('.amdgcn_target "amdgcn-amd-amdhsa--gfx950"')
    a.raw(".text")
    a.raw(".globl %s_kernel" % NAME)
    a.raw(".p2align 8")
    a.raw(".type %s_kernel,@function" % NAME)
    a.raw("%s_kernel:" % NAME)
    a("s_cmp_ge_u32 s2, 256")
    a("s_cbranch_scc1 L_end")
    stamp(11)
    a("s_load_dwordx16 s[16:31], s[0:1], 0")
    a("s_load_dwordx8 s[32:39], s[0:1], 64")
    a("s_load_dwordx2 s[42:43], s[0:1], 104")
    n, g = 120, 121
    sX, sJ = sCk0, sCk1
    a(f"""
    v_lshrrev_b32 v{vT}, 6, v0
    v_and_b32 v{vL}, 63, v0
    s_and_b32 s{sX}, s2, 7
    v_readfirstlane_b32 s{sW}, v{vT}
    s_lshr_b32 s{sJ}, s2, 3
    """)
    if wmap == 1: a(f"""
    s_lshr_b32 s{sT0}, s{sJ}, 4
    s_lshl_b32 s{sH}, s{sX}, 1
    s_add_u32 s{sH}, s{sH}, s{sT0}
    s_lshr_b32 s{sB}, s{sJ}, 3
    s_and_b32 s{sB}, s{sB}, 1
    s_and_b32 s{sS}, s{sJ}, 7
    """)
    elif wmap == 0: a(f"""
    s_and_b32 s{sH}, s{sJ}, 15
    s_lshr_b32 s{sB}, s{sJ}, 4
    s_xor_b32 s{sS}, s{sX}, {fpar}
    """)
    elif wmap == 4: a(f"""
    s_and_b32 s{sT0}, s{sJ}, 3
    s_lshr_b32 s{sH}, s{sX}, 1
    s_lshl_b32 s{sH}, s{sH}, 2
    s_add_u32 s{sH}, s{sH}, s{sT0}
    s_lshr_b32 s{sB}, s{sJ}, 4
    s_lshr_b32 s{sS}, s{sJ}, 1
    s_and_b32 s{sS}, s{sS}, 6
    s_and_b32 s{sT0}, s{sX}, 1
    s_xor_b32 s{sT0}, s{sT0}, {fpar}
    s_or_b32 s{sS}, s{sS}, s{sT0}
    """)
    a(f"""
    s_lshl_b32 s{sJJ}, s{sB}, 3
    s_add_u32 s{sJJ}, s{sJJ}, s{sS}
    s_lshl_b32 s{sBH}, s{sB}, 4
    s_add_u32 s{sBH}, s{sBH}, s{sH}
    s_and_b32 s{sT0}, s{sS}, 1
    s_lshl_b32 s{sT0}, s{sT0}, 4
    s_xor_b32 s{sHF}, s{sH}, {hx}
    s_or_b32 s{sT0}, s{sT0}, s{sHF}
    s_cmp_lt_u32 s{sT0}, 14
    s_cselect_b32 s{sFF}, 1, 0
    v_and_b32 v{n}, 15, v{vL}
    v_lshrrev_b32 v{g}, 4, v{vL}
    v_and_b32 v{vT}, 7, v{vL}
    v_lshlrev_b32 v{vKo}, 9, v{vT}
    v_lshl_add_u32 v{vKo}, v{g}, 4, v{vKo}
    v_and_b32 v{vT}, 8, v{vL}
    v_lshl_add_u32 v{vKo}, v{vT}, 3, v{vKo}
    s_lshl_b32 s{sT2}, s{sW}, 14
    s_and_b32 s{sT3}, s{sW}, {3 if swz else 0}
    s_lshl_b32 s{sT1}, s{sT3}, 12
    s_or_b32 s{sKT}, s{sT2}, s{sT1}
    s_xor_b32 s{sKT+1}, s{sKT}, 4096
    s_xor_b32 s{sKT+2}, s{sKT}, 8192
    s_xor_b32 s{sKT+3}, s{sKT}, 12288
    s_lshl_b32 s{sKV}, s{sBH}, 21
    s_lshl_b32 s{sT1}, s{sS}, 18
    s_add_u32 s{sKV}, s{sKV}, s{sT1}
    s_mov_b32 s{sK+2}, 262144
    s_mov_b32 s{sK+3}, 0x00020000
    s_mov_b32 s{sV+2}, 262144
    s_mov_b32 s{sV+3}, 0x00020000
    s_mov_b32 s{sWS+2}, {WS_USED}
    s_mov_b32 s{sWS+3}, 0x00020000
    s_mov_b32 s{sWA+3}, 0x00020000
    s_mov_b32 s{sHI}, 0xffff0000
    s_cmp_le_u32 s{sW}, s{sFF}
    s_cbranch_scc1 L_stage1
    s_waitcnt lgkmcnt(0)
    s_add_u32 s{sK}, s18, s{sKV}
    s_addc_u32 s{sK+1}, s19, 0
    """)
    if early: a("s_memrealtime s[70:71]")
    if pf:
        a(f"""
        s_cmp_lg_u32 s{sW}, 3
        s_cbranch_scc1 L_nopf
        s_lshl_b32 s{sT0}, s{sH}, 3
        s_add_u32 s{sT0}, s{sT0}, s{sS}
        s_mul_i32 s{sT0}, s{sT0}, {16*896}
        s_mul_i32 s{sT1}, s{sT0}, s{sFF}
        s_lshl_b32 s{sT0}, s{sT0}, 1
        v_mov_b32 v64, s{sKV}
        v_mov_b32 v65, s{sT0}
        v_mov_b32 v66, s{sT1}
        v_mov_b32 v67, {OB_OFF}
        s_mov_b64 exec, 1
        global_load_dword v68, v64, s[20:21] nt
        global_load_dword v69, v65, s[24:25] nt
        global_load_dword v70, v66, s[32:33] nt
        global_load_dword v71, v67, s[42:43] nt
        s_mov_b64 exec, -1
        """)
        a.label("L_nopf")
    if b0: a("s_barrier")
    for f in range(16):
        kload(f)
        if BL and f % BL == BL - 1 and f < 15: a("s_nop 0")
    if cpf:
        a(f"""
        s_cmp_lg_u32 s{sW}, 2
        s_cbranch_scc1 L_nocpf
        s_cmp_ge_u32 s2, {8*cpf}
        s_cbranch_scc1 L_nocpf
        s_getpc_b64 s[70:71]
        v_lshlrev_b32 v64, 7, v{vL}
        s_mov_b32 exec_hi, 0xfff
        global_load_dword v65, v64, s[70:71]
        s_mov_b64 exec, -1
        """)
        a.label("L_nocpf")
    setup2()
    if early:
        a("s_mov_b32 s%d, s70" % STR[9])
        stamp(7)
        a("s_waitcnt vmcnt(15)")
        stamp(10)
    a.label("L_kdone"); a.forget()
    a(f"""
    v_lshlrev_b32 v{vVo}, 11, v{g}
    v_lshl_add_u32 v{vVo}, v{n}, 4, v{vVo}
    s_and_b32 s{sT1}, s{sKT}, 4096
    v_xor_b32 v{vVo}, s{sT1}, v{vVo}
    s_andn2_b32 s{sVG}, s{sKT}, 4096
    s_xor_b32 s{sVG+1}, s{sVG}, 8192
    """)
    for idx in range(NPRE): vload(idx)
    a(f"""
    s_mov_b32 s{sC}, {f32(1.4426950408889634/16)}
    s_movk_i32 s{s3584}, 3584
    s_lshr_b32 s{sRole}, s{sW}, 2
    s_lshl_b32 s{sT0}, s{sH}, 3
    s_add_u32 s{sT0}, s{sT0}, s{sS}
    s_mul_i32 s{sT0}, s{sT0}, {32*896}
    s_lshl_b32 s{sT1}, s{sHF}, 3
    s_add_u32 s{sT1}, s{sT1}, s{sS}
    s_mul_i32 s{sT1}, s{sT1}, {16*896}
    s_mul_i32 s{sT1}, s{sT1}, s{sFF}
    s_cmp_eq_u32 s{sRole}, 1
    s_cselect_b32 s{sT0}, s{sT0}, s{sT1}
    s_cselect_b32 s{sT2}, s24, s32
    s_cselect_b32 s{sT3}, s25, s33
    s_add_u32 s{sWB}, s{sT2}, s{sT0}
    s_addc_u32 s{sWB+1}, s{sT3}, 0
    s_mov_b32 s{sWB+2}, 28672
    s_mov_b32 s{sWB+3}, 0x00020000
    s_lshl_b32 s{sT0}, s{sFF}, 1
    s_cmp_eq_u32 s{sRole}, 2
    s_cselect_b32 s{sRole}, s{sT0}, s{sRole}
    v_and_b32 v{vT}, 8, v{vL}
    v_lshlrev_b32 v{vT}, 3, v{vT}
    v_lshl_add_u32 v{vT}, v{g}, 4, v{vT}
    v_mul_u32_u24 v{vKo}, 7168, v{g}
    v_lshl_add_u32 v{vKo}, v{n}, 4, v{vKo}
    s_and_b32 s{sT0}, s{sW}, 3
    s_lshl_b32 s{sT1}, s{sT0}, 8
    v_add_u32 v{vKo}, s{sT1}, v{vKo}
    s_cmp_eq_u32 s{sT0}, 3
    s_cselect_b32 s{sT0}, 8, 0
    v_and_b32 v{vS}, s{sT0}, v{vL}
    v_lshl_or_b32 v{vKo}, v{vS}, 27, v{vKo}
    """)
    a(f"""
    s_lshl_b32 s{sRed}, s{sH}, 2
    s_lshr_b32 s{sT0}, s{sS}, 1
    s_add_u32 s{sRed}, s{sRed}, s{sT0}
    s_bitcmp1_b32 s{sS}, 0
    s_cselect_b32 s{sRed}, s{sRed}, 99
    s_cmp_lg_u32 s{sW}, 2
    s_cbranch_scc1 L_noz
    v_mov_b32 v{vS}, 0
    v_mov_b32 v{vS+1}, 0
    v_mov_b32 v{vS+2}, 0
    v_mov_b32 v{vS+3}, 0
    v_lshlrev_b32 v{vS+4}, 4, v{vL}
    ds_write_b128 v{vS+4}, {R(vS)} offset:{L_YP}
    ds_write_b32 v{vS}, v{vS} offset:{L_CNT}
    """)
    a.label("L_noz")
    if stamps:
        a(f"""
        s_lshl_b32 s{sTSo}, s2, 4
        s_add_u32 s{sTSo}, s{sTSo}, s{sW}
        s_lshl_b32 s{sTSo}, s{sTSo}, 6
        s_add_u32 s{sTSo}, s{sTSo}, {TS_OFF}
        """)
    if amp >= 200:
        a(f"""
        s_lshl_b32 s11, s2, 4
        s_add_u32 s11, s11, s{sW}
        s_cmp_lg_u32 s11, 1
        s_cbranch_scc1 L_nts
        v_mov_b32 v{vQ}, s15
        s_mov_b32 s12, {TS_OFF}
        buffer_store_dword v{vQ}, off, {S(sWS)}, s12 sc1
        """)
        a.label("L_nts")
    stamp(0)
    a("s_waitcnt lgkmcnt(0)")
    a("s_barrier")
    assert NPRE <= 4
    qb = [80, 84, 88, 92]
    for i in range(4): a(f"ds_read_b128 {R(qb[i])}, v{vT} offset:{L_Q+128*i}")
    a(f"s_sub_u32 s{sT0}, s{sRole}, 1")
    a(f"s_waitcnt vmcnt({NPRE})")
    stamp(1)
    acc = [vS, vS + 4, vQ, vQ + 4]
    for i in range(4):
        a(f"s_waitcnt lgkmcnt({3-i})")
        for u in range(4):
            c = "0" if i == 0 else R(acc[u])
            a(f"v_mfma_f32_16x16x32_bf16 {R(acc[u])}, {R(4*(4*u+i))}, {R(qb[i])}, {c}")
    a(f"""
    s_cmp_gt_u32 s{sT0}, 1
    s_cbranch_scc1 L_now
    """)
    for t in range(8):
        so_ = "0" if t < 4 else f"s{s3584}"
        a(f"buffer_load_dwordx4 {R(32+4*t)}, v{vKo}, {S(sWB)}, {so_} offen offset:{896*(t%4)}{WP}")
    a.label("L_now")
    NB2 = NPRE + NMID
    for idx in range(NPRE, NB2): vload(idx)
    a(f"""
    s_cmp_eq_u32 s{sW}, 3
    s_cbranch_scc1 L_ldgate
    """)
    a.label("L_sm")
    a("s_nop 1")
    for r in range(4): a(f"v_permlane32_swap_b32 v{acc[0]+r}, v{acc[1]+r}")
    for r in range(4): a(f"v_permlane32_swap_b32 v{acc[2]+r}, v{acc[3]+r}")
    for r in range(4): a(f"v_add_f32_dpp v{vS+r}, v{acc[1]+r}, v{acc[0]+r} row_ror:8 {DPPF}")
    for r in range(4): a(f"v_add_f32_dpp v{vS+4+r}, v{acc[3]+r}, v{acc[2]+r} row_ror:8 {DPPF}")
    for k in range(0, 8, 2): a(f"v_cvt_pk_bf16_f32 v{vA+k//2}, v{vS+k}, v{vS+k+1}")
    for k in range(4): a(f"v_mov_b32_dpp v{vA+k}, v{vA+k} row_ror:8 row_mask:0xf bank_mask:0xc")
    for k in range(0, 8, 2):
        a(f"v_lshlrev_b32 v{vS+k}, 16, v{vA+k//2}")
        a(f"v_and_b32 v{vS+k+1}, s{sHI}, v{vA+k//2}")
    m, t1, l, mc = vA, vA + 1, vA + 2, vA + 3
    a(f"""
    v_max3_f32 v{m}, v{vS}, v{vS+1}, v{vS+2}
    v_max3_f32 v{t1}, v{vS+3}, v{vS+4}, v{vS+5}
    v_max3_f32 v{m}, v{m}, v{vS+6}, v{vS+7}
    v_max_f32 v{m}, v{m}, v{t1}
    v_mov_b32 v{t1}, v{m}
    v_permlane16_swap_b32 v{m}, v{t1}
    v_max_f32 v{m}, v{m}, v{t1}
    v_mov_b32 v{t1}, v{m}
    v_permlane32_swap_b32 v{m}, v{t1}
    v_max_f32 v{m}, v{m}, v{t1}
    v_mul_f32 v{mc}, s{sC}, v{m}
    """)
    for k in range(8): a(f"v_fma_f32 v{vS+k}, v{vS+k}, s{sC}, -v{mc}")
    for k in range(8): a(f"v_exp_f32 v{vS+k}, v{vS+k}")
    a(f"""
    v_add_f32 v{l}, v{vS}, v{vS+1}
    v_add_f32 v{t1}, v{vS+2}, v{vS+3}
    v_add_f32 v{l}, v{l}, v{vS+4}
    v_add_f32 v{t1}, v{t1}, v{vS+5}
    v_add_f32 v{l}, v{l}, v{vS+6}
    v_add_f32 v{t1}, v{t1}, v{vS+7}
    v_add_f32 v{l}, v{l}, v{t1}
    v_mov_b32 v{t1}, v{l}
    v_permlane16_swap_b32 v{l}, v{t1}
    v_add_f32 v{l}, v{l}, v{t1}
    v_mov_b32 v{t1}, v{l}
    v_permlane32_swap_b32 v{l}, v{t1}
    v_add_f32 v{t1}, v{l}, v{t1}
    s_lshl_b32 s{sT0}, s{sW}, 3
    v_mov_b32 v{vT}, s{sT0}
    ds_write_b64 v{vT}, {R(m,2)} offset:{L_ML}
    v_and_b32 v{vT}, 15, v{vL}
    v_lshlrev_b32 v{vT}, 3, v{vT}
    v_mov_b32 v{l}, 0
    s_waitcnt lgkmcnt(0)
    s_barrier
    ds_read_b64 {R(vO+4,2)}, v{vT} offset:{L_ML}
    ds_read_b32 v{vKo}, v{l} offset:{L_TAG}
    """)
    for idx in range(NB2, 16): vload(idx)
    a("s_waitcnt lgkmcnt(0)")
    a(f"v_readfirstlane_b32 s{sTag}, v{vKo}")
    stamp(2)
    mi, li, M, L = vO + 4, vO + 5, vO, vO + 2
    a(f"v_mov_b32 v{M}, v{mi}")
    for k in (8, 4, 2, 1): a(f"v_max_f32_dpp v{M}, v{M}, v{M} row_ror:{k} {DPPF}")
    a(f"""
    v_sub_f32 v{m}, v{m}, v{M}
    v_mul_f32 v{m}, s{sC}, v{m}
    v_exp_f32 v{m}, v{m}
    s_cmp_eq_u32 s{sW}, 2
    s_cbranch_scc1 L_stat
    """)
    a.label("L_nostat")
    a(f"""
    v_and_b32 v{t1}, 8, v{vL}
    v_cmp_ne_u32 vcc, 0, v{t1}
    v_mov_b32 v{t1}, s{sHI}
    v_cndmask_b32 v{t1}, 0, v{t1}, vcc
    """)
    for k in range(8): a(f"v_mul_f32 v{vS+k}, v{vS+k}, v{m}")
    for k in range(8):
        tt = vA + 4 + (k & 3)
        a(f"v_cvt_pk_bf16_f32 v{tt}, v{vS+k}, v{vS+k}")
        a(f"v_and_b32 v{tt}, v{t1}, v{tt}")
        a(f"v_sub_f32 v{vS+k}, v{vS+k}, v{tt}")
        a(f"v_cvt_pk_bf16_f32 v{vS+k}, v{vS+k}, v{vS+k}")
    for t in range(4):
        ab = vA + 4 * (t & 1)
        for r in range(4): a(f"v_and_b32 v{ab+r}, v{vS+t}, v{vMask+r}")
        a(f"s_waitcnt vmcnt({14-2*t})")
        for hf in range(2):
            c = "0" if t == 0 else R(vO + 4 * hf)
            a(f"v_mfma_f32_16x16x32_bf16 {R(vO+4*hf)}, {R(ab)}, {R(64+4*(2*t+hf))}, {c}")
    stamp(3)
    for t in range(4):
        for r in range(4): a(f"v_and_b32 v{64+4*t+r}, v{vS+4+t}, v{vMask+r}")
    g, n = vA, vA + 1
    vTag = vKo; vSel = vVo
    a(f"""
    v_lshrrev_b32 v{g}, 4, v{vL}
    v_and_b32 v{n}, 15, v{vL}
    s_lshl_b32 s{sT0}, s{sW}, 10
    v_lshrrev_b32 v83, 5, v{vL}
    v_lshlrev_b32 v83, 9, v83
    v_lshl_add_u32 v83, v{n}, 5, v83
    v_and_b32 v{vT}, 16, v{vL}
    v_add3_u32 v83, v83, v{vT}, s{sT0}
    v_and_b32 v82, 31, v{vL}
    v_lshlrev_b32 v82, 2, v82
    v_lshrrev_b32 v81, 5, v{vL}
    v_lshl_add_u32 v81, v81, 13, v82
    s_and_b32 s{sT1}, s{sW}, 7
    s_lshl_b32 s{sT0}, s{sT1}, 7
    v_add_u32 v81, s{sT0}, v81
    v_and_b32 v{vSel}, 3, v{vL}
    v_add_u32 v{vSel}, 0x07060500, v{vSel}
    v_mov_b32 v80, 0
    s_lshl_b32 s{sP0}, s{sBH}, 3
    s_add_u32 s{sP0}, s{sP0}, s{sT1}
    s_lshl_b32 s{sP0}, s{sP0}, 3
    s_add_u32 s{sP0}, s{sP0}, s{sS}
    s_lshl_b32 s{sP0}, s{sP0}, 7
    s_add_u32 s{sP0}, s{sP0}, {OB_OFF}
    s_cmp_eq_u32 s{sRole}, 1
    s_cbranch_scc1 L_mid1
    s_cmp_eq_u32 s{sRole}, 2
    s_cbranch_scc1 L_mid2
    s_cmp_ge_u32 s{sW}, 8
    s_cbranch_scc1 L_mid3
    s_cmp_eq_u32 s{sW}, 3
    s_cbranch_scc1 L_gate
    """)
    a.label("L_pv2"); a.forget()
    for t in range(4):
        a(f"s_waitcnt vmcnt({6-2*t})")
        for hf in range(2):
            a(f"v_mfma_f32_16x16x32_bf16 {R(vO+4*hf)}, {R(64+4*t)}, {R(4*(2*t+hf))}, {R(vO+4*hf)}")
    if ack: stamp(0)
    a(f"s_cmp_lt_u32 s{sW}, 8")
    for r in range(4): a(f"v_permlane32_swap_b32 v{vO+r}, v{vO+4+r}")
    for r in range(4): a(f"v_add_f32 v{vO+r}, v{vO+r}, v{vO+4+r}")
    a(f"""
    ds_write_b128 v83, {R(vO)} offset:{L_OW}
    s_cbranch_scc1 L_low
    {"s_setprio 3" if tp else "s_nop 0"}
    s_waitcnt lgkmcnt(0)
    s_barrier
    """)
    for i in range(4): a(f"ds_read2st64_b32 {R(2*i,2)}, v81 offset0:{L_OW//256+8*i} offset1:{L_OW//256+8*i+4}")
    a(f"""
    s_waitcnt lgkmcnt(2)
    v_add_f32 v0, v0, v1
    v_add_f32 v2, v2, v3
    s_waitcnt lgkmcnt(0)
    v_add_f32 v4, v4, v5
    v_add_f32 v6, v6, v7
    v_add_f32 v0, v0, v2
    v_add_f32 v4, v4, v6
    v_add_f32 v0, v0, v4
    v_mov_b32 v1, v0
    v_permlane32_swap_b32 v0, v1
    v_add_f32 v0, v0, v1
    v_perm_b32 v0, v0, v{vTag}, v{vSel}
    s_mov_b32 exec_hi, 0
    buffer_store_dword v0, v82, {S(sWS)}, s{sP0} offen sc1
    """)
    stamp(4)
    a(f"""
    s_cmp_lt_u32 s{sRed}, 28
    s_cbranch_scc1 L_reduce
    """)
    endpgm()
    a.label("L_low"); a.forget()
    a(f"""
    s_cmp_eq_u32 s{sRole}, 1
    s_cbranch_scc1 L_gemv1
    s_waitcnt lgkmcnt(0)
    s_barrier
    """)
    if xs: endpgm()
    a(f"""
    s_add_u32 s{sT0}, s{sRed}, s{sB}
    s_add_u32 s{sT0}, s{sT0}, s{sW}
    s_max_u32 s{sT1}, s{sRed}, 28
    s_cmp_lg_u32 s{sT1}, s{sRed}
    s_cselect_b32 s{sT0}, 99, s{sT0}
    s_cmp_eq_u32 s{sT0}, 28
    s_cbranch_scc1 L_epoch
    """)
    endpgm()

    a.label("L_gemv1"); a.forget()
    cf = 123
    def oload(): a(f"buffer_load_dwordx4 {R(0)}, v122, {S(sWS)}, s{sP1} offen sc1")
    a(f"s_mov_b32 s{sCnt}, 0")
    a.label("L_stchk")
    a(f"""
    v_cmp_ne_u32 vcc, s{sTag}, v85
    v_cmp_ne_u32 {S(sM,2)}, s{sTag}, v87
    s_or_b64 vcc, vcc, {S(sM,2)}
    s_cbranch_vccz L_stok
    s_add_u32 s{sCnt}, s{sCnt}, 1
    s_cmp_gt_u32 s{sCnt}, {LIM}
    s_cbranch_scc1 L_stok
    buffer_load_dwordx4 {R(84)}, v89, {S(sWS)}, s{sT3} offen sc1
    s_waitcnt vmcnt(0)
    s_branch L_stchk
    """)
    a.label("L_stok"); a.forget()
    M = vA
    a(f"v_mov_b32 v{M}, v84")
    for d in Q8: a(f"v_max_f32_dpp v{M}, v{M}, v{M} {d} {DPPF}")
    a(f"""
    v_sub_f32 v{cf}, v84, v{M}
    v_mul_f32 v{cf}, s{sC}, v{cf}
    v_exp_f32 v{cf}, v{cf}
    v_mul_f32 v{M}, v{cf}, v86
    """)
    for d in Q8: a(f"v_add_f32_dpp v{M}, v{M}, v{M} {d} {DPPF}")
    a(f"""
    v_rcp_f32 v{M}, v{M}
    v_mul_f32 v{cf}, v{cf}, v{M}
    s_mov_b32 s{sCnt}, 0
    s_cmp_eq_u32 s{sFF}, 0
    s_waitcnt lgkmcnt(0)
    s_barrier
    """)
    if xs: endpgm()
    oload()
    a(f"""
    ds_read_b64 {R(90,2)}, v80 offset:{L_GG}
    s_cbranch_scc1 L_nof
    ds_read_b128 {R(92)}, v120 offset:{L_F}
    """)
    a.label("L_nof")
    a("s_waitcnt lgkmcnt(0)")
    for r in range(4): a(f"v_mul_f32 v{92+r}, v{92+r}, v91")
    a("s_waitcnt vmcnt(0)")
    a.label("L_ochk"); a.forget()
    tag_chk(0, 4, 5)
    a(f"""
    s_cbranch_vccz L_ook
    s_mov_b64 exec, vcc
    """)
    if osl: a(f"s_sleep {osl}")
    oload()
    a(f"""
    s_mov_b64 exec, -1
    s_add_u32 s{sCnt}, s{sCnt}, 1
    s_waitcnt vmcnt({pipe})
    s_cmp_gt_u32 s{sCnt}, {LIM}
    s_cbranch_scc0 L_ochk
    """)
    a.label("L_ook"); a.forget()
    stamp(5)
    for r in range(4): a(f"v_mul_f32 v{24+r}, v{r}, v{cf}")
    for d in Q8:
        for r in range(4): a(f"v_add_f32_dpp v{24+r}, v{24+r}, v{24+r} {d} {DPPF}")
    for r in range(4): a(f"v_cvt_pk_bf16_f32 v{24+r}, v{24+r}, v{24+r}")
    for r in range(4): a(f"v_mov_b32_dpp v{28+r}, v{24+r} row_ror:8 {DPPF}")
    for t in range(8):
        ab = 8 + 4 * (t % 4)
        for r in range(4): a(f"v_and_b32 v{ab+r}, v{24+t}, v{vMask+r}")
        c = "0" if t == 0 else R(vO)
        a(f"v_mfma_f32_16x16x32_bf16 {R(vO)}, {R(ab)}, {R(32+4*t)}, {c}")
    a("s_mov_b32 exec_hi, 0")
    for r in range(4): a(f"v_fma_f32 v{vO+r}, v{vO+r}, v90, v{92+r}")
    tag_put(vO, vTag)
    a(f"buffer_store_dwordx4 {R(vO)}, v88, {S(sWS)}, s{sP2} offen sc1")
    stamp(6)
    if ack:
        a("s_waitcnt vmcnt(0)")
        stamp(9)
    endpgm()

    a.label("L_reduce"); a.forget()
    def yload(base=8): a(f"buffer_load_dwordx4 {R(base)}, v84, {S(sWS)}, s{sP1} offen sc1")
    a("s_mov_b64 exec, -1")
    if tp: a("s_setprio 0")
    yload()
    a(f"s_mov_b32 s{sCnt}, 0")
    a.label("L_ypoll"); a.forget()
    a("s_waitcnt vmcnt(0)")
    tag_chk(8, 4, 5)
    a(f"""
    s_cbranch_vccz L_yok
    s_mov_b64 exec, vcc
    """)
    if psl: a(f"s_sleep {psl}")
    yload()
    a(f"""
    s_mov_b64 exec, -1
    s_add_u32 s{sCnt}, s{sCnt}, 1
    s_cmp_gt_u32 s{sCnt}, {LIM}
    s_cbranch_scc0 L_ypoll
    s_waitcnt vmcnt(0)
    """)
    a.label("L_yok"); a.forget()
    stamp(7)
    allred4(8, 0, ROW16)
    a(f"""
    s_mov_b64 exec, {S(sM,2)}
    ds_write_b128 v85, {R(8)} offset:{L_YP}
    s_mov_b64 exec, 1
    ds_add_rtn_u32 v4, v80, v86 offset:{L_CNT}
    s_mov_b64 exec, -1
    ds_read_b128 {R(12)}, v84 offset:{L_YP}
    s_waitcnt lgkmcnt(1)
    v_readfirstlane_b32 s{sT0}, v4
    s_cmp_lg_u32 s{sT0}, 7
    s_cbranch_scc1 L_yend
    s_waitcnt lgkmcnt(0)
    """)
    allred4(12, 0, ROW16)
    a(f"""
    v_cvt_pk_bf16_f32 v12, v12, v13
    v_cvt_pk_bf16_f32 v13, v14, v15
    s_mov_b64 exec, {S(sM,2)}
    global_store_dwordx2 v90, {R(12,2)}, s[38:39] {opol}
    """)
    stamp(8)
    a.label("L_yend")
    endpgm()
    a.label("L_epoch"); a.forget()
    a(f"""
    s_mov_b32 s{sCnt}, 0
    v_lshlrev_b32 v84, 4, v{vL}
    s_movk_i32 s{sT3}, {ST_OFF}
    """)
    a.label("L_fchk")
    for i in range(4):
        a(f"buffer_load_dwordx4 {R(32+4*i)}, v84, {S(sWS)}, s{sT3} offen offset:{1024*i} sc1")
    a("s_waitcnt vmcnt(0)")
    for i in range(4): a(f"v_xor_b32 v{33+4*i}, s{sTag}, v{33+4*i}")
    a(f"""
    v_or3_b32 v33, v33, v37, v41
    v_or_b32 v33, v33, v45
    v_cmp_ne_u32 vcc, 0, v33
    s_cbranch_vccz L_fok
    s_add_u32 s{sCnt}, s{sCnt}, 1
    s_cmp_gt_u32 s{sCnt}, {LIM}
    s_cbranch_scc0 L_fchk
    """)
    a.label("L_fok"); a.forget()
    a(f"""
    s_mov_b64 exec, 1
    buffer_store_dword v{vTag}, off, {S(sWS)}, 0 offset:{EP_OFF} sc1
    """)
    endpgm()

    a.label("L_stat"); a.forget()
    mi, li, M, L = vO + 4, vO + 5, vO, vO + 2
    a(f"""
    v_sub_f32 v{mi}, v{mi}, v{M}
    v_mul_f32 v{mi}, s{sC}, v{mi}
    v_exp_f32 v{mi}, v{mi}
    v_mul_f32 v{L}, v{li}, v{mi}
    """)
    for k in (8, 4, 2, 1): a(f"v_add_f32_dpp v{L}, v{L}, v{L} row_ror:{k} {DPPF}")
    a(f"""
    v_mov_b32 v{M+1}, s{sTag}
    v_mov_b32 v{L+1}, s{sTag}
    s_lshl_b32 s{sT0}, s{sBH}, 3
    s_add_u32 s{sT0}, s{sT0}, s{sS}
    s_lshl_b32 s{sT0}, s{sT0}, 4
    s_add_u32 s{sT0}, s{sT0}, {ST_OFF}
    s_mov_b64 exec, 1
    buffer_store_dwordx4 {R(M)}, off, {S(sWS)}, s{sT0} sc1
    s_mov_b64 exec, -1
    s_branch L_nostat
    """)
    a.label("L_mid1"); a.forget()
    a(f"""
    v_and_b32 v{vT}, 7, v{vL}
    v_lshlrev_b32 v89, 4, v{vT}
    s_lshl_b32 s{sT3}, s{sBH}, 7
    s_add_u32 s{sT3}, s{sT3}, {ST_OFF}
    v_lshlrev_b32 v122, 7, v{vT}
    v_lshl_add_u32 v122, v{g}, 5, v122
    v_bfe_u32 v{vT}, v{vL}, 3, 1
    v_lshl_add_u32 v122, v{vT}, 4, v122
    s_lshl_b32 s{sP1}, s{sBH}, 3
    s_add_u32 s{sP1}, s{sP1}, s{sS}
    s_lshl_b32 s{sP1}, s{sP1}, 10
    s_add_u32 s{sP1}, s{sP1}, {OB_OFF}
    buffer_load_dwordx4 {R(84)}, v89, {S(sWS)}, s{sT3} offen sc1
    s_and_b32 s{sT0}, s{sW}, 3
    s_cmp_lg_u32 s{sT0}, 0
    s_cbranch_scc1 L_mid1b
    buffer_load_dwordx4 {R(vS)}, v122, {S(sWS)}, s{sP1} offen sc1
    """)
    a.label("L_mid1b")
    a(f"""
    s_lshl_b32 s{sT1}, s{sT0}, 10
    v_lshlrev_b32 v120, 4, v{vL}
    v_add_u32 v120, s{sT1}, v120
    v_lshrrev_b32 v88, 1, v{n}
    v_mul_u32_u24 v88, {YST}, v88
    v_and_b32 v{vT}, 1, v{n}
    v_lshl_add_u32 v88, v{vT}, 5, v88
    v_and_b32 v{vT}, 16, v{vL}
    v_add_u32 v88, v88, v{vT}
    s_mul_i32 s{sP2}, s{sB}, 28
    s_lshl_b32 s{sT1}, s{sT0}, 3
    s_add_u32 s{sP2}, s{sP2}, s{sT1}
    s_mul_i32 s{sP2}, s{sP2}, {YST}
    s_lshl_b32 s{sT1}, s{sH}, 3
    s_add_u32 s{sT1}, s{sT1}, s{sS}
    s_lshl_b32 s{sT1}, s{sT1}, {YSH}
    s_add_u32 s{sP2}, s{sP2}, s{sT1}
    s_add_u32 s{sP2}, s{sP2}, {YB_OFF}
    s_cmp_eq_u32 s{sT0}, 3
    s_cselect_b32 s{sT0}, 8, 0
    v_and_b32 v{vT}, s{sT0}, v{vL}
    v_lshl_or_b32 v88, v{vT}, 27, v88
    v_mov_b32 v92, 0
    v_mov_b32 v93, 0
    v_mov_b32 v94, 0
    v_mov_b32 v95, 0
    s_branch L_pv2
    """)
    a.label("L_mid2"); a.forget()
    a(f"""
    v_lshlrev_b32 v{vT}, 5, v{g}
    ds_read_b128 {R(84)}, v{vT} offset:{L_R2}
    ds_read_b128 {R(88)}, v{vT} offset:{L_R2+16}
    s_waitcnt lgkmcnt(0)
    """)
    for t in range(8): a(f"v_cvt_pk_bf16_f32 v{84+t}, v{84+t}, v{84+t}")
    for t in range(8):
        ab = vA + 4 * (t & 1)
        for r in range(4): a(f"v_and_b32 v{ab+r}, v{84+t}, v{vMask+r}")
        c = "0" if t == 0 else R(92)
        a(f"v_mfma_f32_16x16x32_bf16 {R(92)}, {R(ab)}, {R(32+4*t)}, {c}")
    a(f"""
    s_and_b32 s{sT0}, s{sW}, 3
    s_lshl_b32 s{sT1}, s{sT0}, 10
    v_lshlrev_b32 v{vT}, 4, v{vL}
    v_add_u32 v{vT}, s{sT1}, v{vT}
    ds_write_b128 v{vT}, {R(92)} offset:{L_F}
    s_branch L_pv2
    """)
    a.label("L_mid3"); a.forget()
    assert YS == 64
    a(f"""
    s_cmp_ge_u32 s{sRed}, 28
    s_cbranch_scc1 L_pv2
    v_lshlrev_b32 v84, 6, v{n}
    v_lshl_add_u32 v84, v{g}, 4, v84
    s_mov_b32 s{sM}, 0x00010001
    s_mov_b32 s{sM+1}, 0x00010001
    s_and_b32 s{sT1}, s{sW}, 7
    s_lshl_b32 s{sT0}, s{sT1}, 6
    v_lshlrev_b32 v85, 4, v{g}
    v_add_u32 v85, s{sT0}, v85
    v_mov_b32 v86, 1
    s_lshl_b32 s{sT0}, s{sRed}, 5
    s_mul_i32 s{sT2}, s{sB}, 896
    s_add_u32 s{sT0}, s{sT0}, s{sT2}
    v_lshlrev_b32 v90, 3, v{g}
    v_add_u32 v90, s{sT0}, v90
    s_mul_i32 s{sP1}, s{sB}, 28
    s_add_u32 s{sP1}, s{sP1}, s{sRed}
    s_mul_i32 s{sP1}, s{sP1}, {YST}
    s_lshl_b32 s{sT1}, s{sT1}, 10
    s_add_u32 s{sP1}, s{sP1}, s{sT1}
    s_add_u32 s{sP1}, s{sP1}, {YB_OFF}
    """)
    if ywarm: yload(32)
    a("s_branch L_pv2")
    a.label("L_gate"); a.forget()
    xa, ga = 32, 36
    a("v_mov_b32 v44, 0")
    for r in range(4):
        a(f"""
        v_lshlrev_b32 v40, 16, v{xa+r}
        v_and_b32 v41, s{sHI}, v{xa+r}
        v_lshlrev_b32 v42, 16, v{ga+r}
        v_and_b32 v43, s{sHI}, v{ga+r}
        v_mul_f32 v40, v40, v42
        v_mul_f32 v41, v41, v43
        v_cvt_pk_bf16_f32 v40, v40, v41
        v_lshlrev_b32 v41, 16, v40
        v_and_b32 v40, s{sHI}, v40
        v_add_f32 v44, v44, v41
        v_add_f32 v44, v44, v40
        """)
    for k in (8, 4, 2, 1): a(f"v_add_f32_dpp v44, v44, v44 row_ror:{k} {DPPF}")
    a(f"""
    v_mov_b32 v45, v44
    v_permlane16_swap_b32 v44, v45
    v_add_f32 v44, v44, v45
    v_mov_b32 v45, v44
    v_permlane32_swap_b32 v44, v45
    v_add_f32 v44, v44, v45
    v_cvt_pk_bf16_f32 v44, v44, v44
    v_and_b32 v44, s{sHI}, v44
    v_mul_f32 v44, {f32(-1.4426950408889634)}, v44
    v_exp_f32 v44, v44
    v_add_f32 v44, 1.0, v44
    v_rcp_f32 v44, v44
    v_cvt_pk_bf16_f32 v44, v44, v44
    v_and_b32 v44, s{sHI}, v44
    v_sub_f32 v45, 1.0, v44
    v_cvt_pk_bf16_f32 v45, v45, v45
    v_and_b32 v45, s{sHI}, v45
    ds_write_b64 v80, {R(44,2)} offset:{L_GG}
    s_cmp_ge_u32 s{sRed}, 28
    s_cbranch_scc1 L_pv2
    v_lshlrev_b32 v40, 16, v46
    v_and_b32 v41, s{sHI}, v46
    v_lshlrev_b32 v42, 16, v47
    v_and_b32 v43, s{sHI}, v47
    v_mul_f32 v40, v40, v45
    v_mul_f32 v41, v41, v45
    v_mul_f32 v42, v42, v45
    v_mul_f32 v43, v43, v45
    v_lshlrev_b32 v{vT}, 4, v{g}
    ds_write_b128 v{vT}, {R(40)} offset:{L_YP+512}
    s_branch L_pv2
    """)
    a.label("L_ldgate"); a.forget()
    for r in range(8): a(f"v_mov_b32 v{32+r}, 0")
    a(f"""
    v_lshlrev_b32 v{vA+1}, 4, v{vL}
    s_mul_i32 s{sT0}, s{sB}, 896
    v_add_u32 v{vA}, s{sT0}, v{vA+1}
    s_min_u32 s{sT0}, s{sRed}, 27
    s_lshl_b32 s{sT0}, s{sT0}, 5
    v_lshrrev_b32 v{vA+2}, 4, v{vL}
    v_lshlrev_b32 v{vA+2}, 3, v{vA+2}
    v_add_u32 v{vA+2}, s{sT0}, v{vA+2}
    s_mov_b32 exec_hi, 0x00ffffff
    global_load_dwordx4 {R(32)}, v{vA}, s[16:17]
    global_load_dwordx4 {R(36)}, v{vA+1}, s[36:37]
    s_mov_b64 exec, -1
    global_load_dwordx2 {R(46,2)}, v{vA+2}, s[34:35]
    s_branch L_sm
    """)

    n, g = 120, 121
    a.label("L_stage1"); a.forget()
    SO = [None, 60, 61, 62, 64, 65, 66, 67, 69, 70, 71, 76, 77, 78]
    sStr = sP1
    a(f"""
    s_movk_i32 s{sStr}, 3584
    s_mov_b32 s{sP0}, {SH_OFF}
    s_cmp_eq_u32 s{sW}, 0
    s_cselect_b32 s{sStr}, 8192, s{sStr}
    s_cselect_b32 s{sP2}, 9, 8
    s_cselect_b32 s{sT3}, s{sH}, s{sHF}
    s_cselect_b32 s{sP0}, {SQ_OFF}, s{sP0}
    s_mul_i32 s{sCnt}, s{sStr}, 448
    s_lshr_b32 s{sT1}, s{sJJ}, 1
    s_mul_i32 s{sT2}, s{sT1}, 56
    s_mul_i32 s{sT2}, s{sT2}, s{sStr}
    s_lshl_b32 s{sT3}, s{sT3}, s{sP2}
    s_add_u32 s{sT2}, s{sT2}, s{sT3}
    s_and_b32 s{sT3}, s{sJJ}, 1
    s_lshl_b32 s{sT0}, s{sT3}, 8
    s_add_u32 s{sT2}, s{sT2}, s{sT0}
    s_sub_u32 s{sWA+2}, s{sCnt}, s{sT2}
    s_mul_i32 s{sT0}, s{sStr}, 14
    v_mul_u32_u24 v{vT}, s{sT0}, v{g}
    v_lshl_add_u32 v{vT}, v{n}, 4, v{vT}
    s_mov_b32 s{SO[1]}, s{sStr}
    """)
    for t in range(2, 14): a(f"s_add_u32 s{SO[t]}, s{SO[t-1]}, s{sStr}")
    a(f"""
    v_lshrrev_b32 v{vS}, 3, v{n}
    v_mul_u32_u24 v{vS}, 896, v{vS}
    v_mad_u32_u24 v{vS}, v{g}, 28, v{vS}
    s_mul_i32 s{sT0}, s{sT1}, 112
    v_add_u32 v{vS}, s{sT0}, v{vS}
    v_mov_b32 v{vS+1}, 0
    s_cmp_eq_u32 s{sW}, 0
    s_waitcnt lgkmcnt(0)
    s_cselect_b32 s{sWA}, s22, s28
    s_cselect_b32 s{sWA+1}, s23, s29
    s_add_u32 s{sWA}, s{sWA}, s{sT2}
    s_addc_u32 s{sWA+1}, s{sWA+1}, 0
    """)
    for t in range(14):
        a(f"buffer_load_dwordx4 {R(4*t)}, v{vT}, {S(sWA)}, {('s%d' % SO[t]) if t else '0'} offen{WQP}")
    a(f"""
    global_load_dwordx4 {R(56)}, v{vS}, s[16:17]
    global_load_dwordx3 {R(60,3)}, v{vS}, s[16:17] offset:16
    global_load_dword v63, v{vS+1}, s[42:43] offset:{EP_OFF} sc1
    {"s_barrier" if b0 else "s_nop 0"}
    s_add_u32 s{sK}, s18, s{sKV}
    s_addc_u32 s{sK+1}, s19, 0
    """)
    setup2()
    a(f"""
    v_lshrrev_b32 v{vT}, 1, v{g}
    v_lshlrev_b32 v{vT}, 13, v{vT}
    v_lshl_add_u32 v{vT}, v{n}, 5, v{vT}
    v_and_b32 v{vS}, 16, v{vL}
    v_add_u32 v{vT}, v{vT}, v{vS}
    s_lshl_b32 s{sT0}, s{sH}, 14
    s_add_u32 s{sP0}, s{sP0}, s{sT0}
    s_lshl_b32 s{sT0}, s{sB}, 13
    s_add_u32 s{sP1}, s{sP0}, s{sT0}
    s_lshl_b32 s{sT2}, s{sT1}, 10
    s_add_u32 s{sP0}, s{sP0}, s{sT2}
    s_lshl_b32 s{sT2}, s{sT3}, 9
    s_add_u32 s{sP0}, s{sP0}, s{sT2}
    s_mov_b32 s{sT2}, 0x01000100
    s_mov_b32 s{sT3}, 0x03020302
    v_lshlrev_b32 v{vQ+1}, 4, v{vL}
    s_add_u32 s{sP2}, s{sP1}, 4096
    s_waitcnt vmcnt(0)
    v_and_b32 v{vQ}, 0x7f7f7f7f, v63
    v_add_u32 v{vQ}, 0x671b3501, v{vQ}
    v_xor_b32 v63, 0xe79b3501, v63
    v_and_b32 v63, 0x80808080, v63
    v_xor_b32 v{vQ}, v{vQ}, v63
    v_mov_b32 v63, 0
    v_readfirstlane_b32 s{sTag}, v{vQ}
    ds_write_b32 v63, v{vQ} offset:{L_TAG}
    """)
    stamp(5)
    for t in range(14):
        ab = 112 if t & 1 else vA
        a(f"v_perm_b32 v{vS+4}, v{56+t//2}, v{56+t//2}, s{sT3 if t & 1 else sT2}")
        for r in range(4): a(f"v_and_b32 v{ab+r}, v{vS+4}, v{vMask+r}")
        c = "0" if t == 0 else R(vS)
        a(f"v_mfma_f32_16x16x32_bf16 {R(vS)}, {R(ab)}, {R(4*t)}, {c}")
    a(f"s_cmp_eq_u32 s{sW}, 1")
    tag_put(vS, vQ)
    a(f"buffer_store_dwordx4 {R(vS)}, v{vT}, {S(sWS)}, s{sP0} offen sc1")
    stamp(6)
    a("s_cbranch_scc1 L_hgather")
    def qload(i): a(f"buffer_load_dwordx4 {R(64+4*i)}, v{vQ+1}, {S(sWS)}, s{sP1 if i < 4 else sP2} offen offset:{1024*(i%4)} sc1")
    for f in range(KS): kload(f)
    for i in range(8): qload(i)
    poll_many("L_qp", [(64+4*i, (lambda i=i: qload(i))) for i in range(8)], vQ + 4, vQ + 5)
    for f in range(KS, 16): kload(f)
    for i in range(1, 8):
        for r in range(4): a(f"v_add_f32 v{64+r}, v{64+r}, v{64+4*i+r}")
    a(f"""
    v_cvt_pk_bf16_f32 v{vQ}, v64, v65
    v_cvt_pk_bf16_f32 v{vQ+1}, v66, v67
    v_lshlrev_b32 v{vT}, 3, v{vL}
    ds_write_b64 v{vT}, {R(vQ,2)} offset:{L_Q}
    """)
    stamp(10)
    a("s_branch L_kdone")
    a.label("L_hgather"); a.forget()
    for f in range(16): kload(f)
    h = vS
    a(f"""
    v_and_b32 v{vA}, 7, v{vL}
    v_lshrrev_b32 v{vQ}, 3, v{vL}
    v_lshlrev_b32 v{vQ}, 10, v{vQ}
    v_lshl_add_u32 v{vQ}, v{vA}, 4, v{vQ}
    s_lshl_b32 s{sT0}, s{sS}, 6
    s_add_u32 s{sP1}, s{sP1}, s{sT0}
    s_lshl_b32 s{sT1}, s{sHF}, 8
    s_lshl_b32 s{sT0}, s{sS}, 5
    s_add_u32 s{sT1}, s{sT1}, s{sT0}
    v_lshlrev_b32 v{vT}, 3, v{vA}
    v_add_u32 v{vT}, s{sT1}, v{vT}
    global_load_dwordx2 {R(118,2)}, v{vT}, s[30:31]
    """)
    def hload(): a(f"buffer_load_dwordx4 {R(h)}, v{vQ}, {S(sWS)}, s{sP1} offen sc1")
    hload()
    poll_many("L_hp", [(h, hload)], vQ + 4, vQ + 5)
    allred4(h, h + 4, ['ror:8', 'p16', 'p32'])
    rnd2(h, h + 1, vQ + 4); rnd2(h + 2, h + 3, vQ + 5)
    a(f"""
    v_lshlrev_b32 v{h+4}, 16, v118
    v_and_b32 v{h+5}, s{sHI}, v118
    v_lshlrev_b32 v{h+6}, 16, v119
    v_and_b32 v{h+7}, s{sHI}, v119
    """)
    for r in range(4): a(f"v_add_f32 v{h+r}, v{h+r}, v{h+4+r}")
    rnd2(h, h + 1, vQ + 4); rnd2(h + 2, h + 3, vQ + 5)
    for r in range(4): a(f"v_max_f32 v{h+r}, 0, v{h+r}")
    for r in range(4): a(f"v_mul_f32 v{h+r}, v{h+r}, v{h+r}")
    a(f"""
    v_lshlrev_b32 v{vT}, 4, v{vA}
    ds_write_b128 v{vT}, {R(h)} offset:{L_R2}
    s_nop 1
    s_branch L_kdone
    """)
    if stamps:
        a.label("L_stampout"); a.forget()
        if amp >= 0:
            if amp == 99: a("s_movk_i32 s11, 10000")
            elif amp >= 200:
                a(f"""
                s_cmp_lg_u32 s2, {amp-200}
                s_cbranch_scc1 L_end
                s_cmp_lg_u32 s{sW}, 1
                s_cbranch_scc1 L_end
                s_mov_b64 exec, -1
                s_mov_b32 s12, {TS_OFF}
                buffer_load_dword v0, off, {S(sWS)}, s12 sc1
                s_waitcnt vmcnt(0)
                v_readfirstlane_b32 s11, v0
                s_sub_u32 s11, s15, s11
                s_add_u32 s11, s11, 100
                s_min_u32 s11, s11, 1000
                s_mul_i32 s11, s11, 50
                """)
            else:
                a("s_cmp_eq_u32 s%d, 0" % STR[amp])
                a("s_cbranch_scc1 L_end")
                a("s_sub_u32 s11, s%d, s15" % STR[amp])
                a("s_min_u32 s11, s11, 20000")
                a("s_lshl_b32 s11, s11, 3")
            a.label("L_amp")
            a("s_sleep 8")
            a("s_memrealtime s[%d:%d]" % (sTS, sTS + 1))
            a("s_waitcnt lgkmcnt(0)")
            a("s_sub_u32 s12, s%d, s15" % sTS)
            a("s_cmp_lt_u32 s12, s11")
            a("s_cbranch_scc1 L_amp")
        else:
            a("s_mov_b64 exec, -1")
            a("s_waitcnt vmcnt(0)")
            for i, r in enumerate(STR): a("v_writelane_b32 v0, s%d, %d" % (r, i))
            a(f"v_lshlrev_b32 v1, 2, v{vL}")
            a("s_mov_b64 exec, 0xfff")
            a("buffer_store_dword v0, v1, %s, s%d offen" % (S(sWS), sTSo))
    a.label("L_end")
    a("s_endpgm")
    if 2 <= lst <= 6:
        a.raw(".globl tiny_kernel\n.p2align 8\n.type tiny_kernel,@function\ntiny_kernel:\n    s_endpgm")
    a.raw('.section .rodata,"a"')
    if 2 <= lst <= 6:
        a.raw(".p2align 6\n.amdhsa_kernel tiny_kernel\n  .amdhsa_next_free_vgpr NV\n  .amdhsa_next_free_sgpr 16\n  .amdhsa_accum_offset NV\n  .amdhsa_group_segment_fixed_size 0\n  .amdhsa_kernarg_size 112\n  .amdhsa_user_sgpr_count 2\n  .amdhsa_user_sgpr_kernarg_segment_ptr 1\n  .amdhsa_system_sgpr_workgroup_id_x 1\n.end_amdhsa_kernel".replace("NV", {4: "128", 5: "256"}.get(lst, "8")))
    a.raw(".p2align 6")
    a.raw(".amdhsa_kernel %s_kernel" % NAME)
    a.raw("  .amdhsa_next_free_vgpr 128")
    a.raw("  .amdhsa_next_free_sgpr 102")
    a.raw("  .amdhsa_accum_offset 128")
    a.raw("  .amdhsa_group_segment_fixed_size 0")
    a.raw("  .amdhsa_kernarg_size 112")
    a.raw("  .amdhsa_user_sgpr_count 2")
    a.raw("  .amdhsa_user_sgpr_kernarg_segment_ptr 1")
    a.raw("  .amdhsa_system_sgpr_workgroup_id_x 1")
    a.raw("  .amdhsa_float_denorm_mode_32 3")
    a.raw(".end_amdhsa_kernel")
    return a.text()

if __name__ == "__main__":
    import argparse, inspect
    ap = argparse.ArgumentParser()
    ap.add_argument("-o", default="cdna_kernels/%s.s" % NAME)
    sig = inspect.signature(gen)
    for k, p in sig.parameters.items():
        if isinstance(p.default, bool): ap.add_argument("--" + k, action="store_true")
        elif isinstance(p.default, int): ap.add_argument("--" + k, type=int, default=p.default)
        else: ap.add_argument("--" + k, default=p.default)
    x = vars(ap.parse_args()); o = x.pop("o")
    x = {k: ("" if v == "none" else v) for k, v in x.items()}
    open(o, "w").write(gen(**x))
```

```python
import sys, struct
from asmlib import Asm

NAME = "gated_mix__mha_block_cached__dense_activation_squared_relu__decode"
def f32(x): return "0x%08x" % struct.unpack('<I', struct.pack('<f', x))[0]

def gen(kv="nt", wq="", w2="", stamps=False, NPRE=2, NMID=2, swz=1, amp=-1, xs=0, wmap=4, pipe=0, fpar=0, red=2, ypad=0, yskew=256, KS=16, early=0, pf=0, cpf=0, lst=0, BL=0, b0=0, ack=0, psl=0, ywarm=1, hx=0, tp=1, osl=0, opol=""):
    stamps = stamps or amp >= 0
    a = Asm()
    KV = (" " + kv) if kv else ""
    WQP = (" " + wq) if wq else ""
    WP = (" " + w2) if w2 else ""
    YS = 128 if ypad else 64
    YSH = 7 if ypad else 6
    YST = 128 * YS + yskew
    EP_OFF = 0; ST_OFF = 4096; OB_OFF = 8192; SQ_OFF = OB_OFF + 262144; SH_OFF = SQ_OFF + 262144
    YB_OFF = SH_OFF + 262144; TS_OFF = 1835008; WS_USED = 2097152
    assert YB_OFF + 56 * YST <= TS_OFF
    L_Q = 0; L_ML = 512; L_R2 = 640; L_GG = 768; L_TAG = 776; L_CNT = 780; L_YP = 1024; L_F = 1024; L_OW = 5120; OWS = 1024; LDS = L_OW + 16 * OWS
    sCk0, sCk1, sH, sB, sS, sJJ, sBH, sW = 3, 4, 5, 6, 7, 8, 9, 10
    sT0, sT1, sT2, sT3 = 11, 12, 13, 14
    sK, sV, sWS, sWA, sWB = 44, 48, 52, 56, 64
    sSel = [40, 41, 60, 61]; sE = 62; sFF = 63; sHF = 1
    sKV = 68
    sKT = 72; sVG = 76; sC = 78; sHI = 79; sM = 80
    sP0, sP1, sP2 = 82, 83, 84
    sRole = 85; sRed = 86; sCnt = 87
    sTS = 88; sTSo = 90; s3584 = 91; sTag = 92
    vMask = 96; vS = 100; vQ = 108; vO = 108; vA = 116; vKo = 124; vVo = 125; vL = 126; vT = 127
    LIM = 1 << 23
    def R(b, n=4): return "v[%d:%d]" % (b, b + n - 1)
    def S(b, n=4): return "s[%d:%d]" % (b, b + n - 1)
    STR = [26, 27, 93, 94, 95, 96, 97, 98, 99, 100, 101, 15]
    def stamp(idx):
        if not stamps: return
        a("s_memrealtime s[%d:%d]" % (sTS, sTS + 1))
        a("s_waitcnt lgkmcnt(0)")
        a("s_mov_b32 s%d, s%d" % (STR[idx], sTS))
    def endpgm():
        if stamps: a("s_branch L_stampout")
        else: a("s_endpgm")
    DPPF = "row_mask:0xf bank_mask:0xf"
    ROW16 = ['ror:8', 'ror:4', 'ror:2', 'ror:1']
    Q8 = ("quad_perm:[1,0,3,2]", "quad_perm:[2,3,0,1]", "row_half_mirror")
    def kload(f):
        u, i = f >> 2, f & 3
        a(f"buffer_load_dwordx4 {R(4*f)}, v{vKo}, {S(sK)}, s{sKT+u} offen offset:{128*i}{KV}")
    def vload(idx):
        G, t, hf = idx >> 3, (idx >> 1) & 3, idx & 1
        base = 64 if G == 0 else 0
        a(f"buffer_load_dwordx4 {R(base+4*(2*t+hf))}, v{vVo}, {S(sV)}, s{sVG+G} offen offset:{512*t+256*hf}{KV}")
    def allred4(base, tmp, steps, op="add"):
        for st in steps:
            if st.startswith('ror'):
                for r in range(4): a(f"v_{op}_f32_dpp v{base+r}, v{base+r}, v{base+r} row_{st} {DPPF}")
            else:
                sw = "v_permlane16_swap_b32" if st == 'p16' else "v_permlane32_swap_b32"
                for r in range(4): a(f"v_mov_b32 v{tmp+r}, v{base+r}")
                for r in range(4): a(f"{sw} v{base+r}, v{tmp+r}")
                for r in range(4): a(f"v_{op}_f32 v{base+r}, v{base+r}, v{tmp+r}")
    def rnd2(x, y, tmp):
        a(f"v_cvt_pk_bf16_f32 v{tmp}, v{x}, v{y}")
        a(f"v_lshlrev_b32 v{x}, 16, v{tmp}")
        a(f"v_and_b32 v{y}, s{sHI}, v{tmp}")
    def tag_put(base, vtag):
        for r in range(4): a(f"v_perm_b32 v{base+r}, v{base+r}, v{vtag}, s{sSel[r]}")
    def tag_chk(base, t0, t1):
        a(f"v_perm_b32 v{t0}, v{base+1}, v{base}, s{sCk0}")
        a(f"v_perm_b32 v{t1}, v{base+3}, v{base+2}, s{sCk1}")
        a(f"v_or_b32 v{t0}, v{t0}, v{t1}")
        a(f"v_cmp_ne_u32 vcc, s{sTag}, v{t0}")
    def poll_many(lbl, loads, t0, t1):
        a(f"s_mov_b32 s{sCnt}, 0")
        a.label(lbl); a.forget()
        a("s_waitcnt vmcnt(0)")
        a(f"s_mov_b32 s{sE}, 0")
        for i, (base, fn) in enumerate(loads):
            tag_chk(base, t0, t1)
            a(f"s_cbranch_vccz {lbl}_s{i}")
            a("s_mov_b64 exec, vcc")
            fn()
            a("s_mov_b64 exec, -1")
            a(f"s_mov_b32 s{sE}, 1")
            a.label(f"{lbl}_s{i}")
        a(f"""
        s_cmp_eq_u32 s{sE}, 0
        s_cbranch_scc1 {lbl}_ok
        s_add_u32 s{sCnt}, s{sCnt}, 1
        s_cmp_gt_u32 s{sCnt}, {LIM}
        s_cbranch_scc0 {lbl}
        s_waitcnt vmcnt(0)
        """)
        a.label(lbl + "_ok"); a.forget()
    def setup2():
        a(f"""
        s_add_u32 s{sV}, s20, s{sKV}
        s_addc_u32 s{sV+1}, s21, 0
        s_mov_b32 s{sWS}, s42
        s_mov_b32 s{sWS+1}, s43
        """)
        if stamps:
            for r in STR[:11]: a("s_mov_b32 s%d, 0" % r)
        tmp = vS
        a(f"""
        v_and_b32 v{tmp}, 1, v{vL}
        v_lshlrev_b32 v{tmp}, 4, v{tmp}
        v_mov_b32 v{tmp+1}, 0xffff
        v_lshlrev_b32 v{tmp+1}, v{tmp}, v{tmp+1}
        v_bfe_u32 v{tmp+2}, v{vL}, 1, 2
        """)
        for r in range(4):
            a(f"v_cmp_eq_u32 vcc, {r}, v{tmp+2}")
            a(f"s_mov_b32 s{sSel[r]}, {0x07060500 + r}")
            a(f"v_cndmask_b32 v{vMask+r}, 0, v{tmp+1}, vcc")
        a(f"""
        s_mov_b32 s{sCk0}, 0x0c0c0400
        s_mov_b32 s{sCk1}, 0x04000c0c
        """)

    if lst == 2: a.raw("; @launch kernel=tiny_kernel grid=(1,1,1) block=(64,1,1) lds=0")
    if lst: a.raw("; @launch kernel=%s_kernel grid=(256,1,1) block=(1024,1,1) lds=%d" % (NAME, LDS))
    else: a.raw("; @launch grid=(256,1,1) block=(1024,1,1) lds=%d" % LDS)
    if lst == 3: a.raw("; @launch kernel=tiny_kernel grid=(1,1,1) block=(64,1,1) lds=0")
    if lst == 4: a.raw("; @launch kernel=tiny_kernel grid=(256,1,1) block=(1024,1,1) lds=21504")
    if lst == 5: a.raw("; @launch kernel=tiny_kernel grid=(256,1,1) block=(512,1,1) lds=21504")
    if lst == 6: a.raw("; @launch kernel=tiny_kernel grid=(256,1,1) block=(64,1,1) lds=0")
    if lst == 7: a.raw("; @launch kernel=%s_kernel grid=(256,1,1) block=(1024,1,1) lds=%d" % (NAME, LDS))
    a.raw('.amdgcn_target "amdgcn-amd-amdhsa--gfx950"')
    a.raw(".text")
    a.raw(".globl %s_kernel" % NAME)
    a.raw(".p2align 8")
    a.raw(".type %s_kernel,@function" % NAME)
    a.raw("%s_kernel:" % NAME)
    a("s_cmp_ge_u32 s2, 256")
    a("s_cbranch_scc1 L_end")
    stamp(11)
    a("s_load_dwordx16 s[16:31], s[0:1], 0")
    a("s_load_dwordx8 s[32:39], s[0:1], 64")
    a("s_load_dwordx2 s[42:43], s[0:1], 104")
    n, g = 120, 121
    SWZ = {0: f"s_mov_b32 s{sT3}, 0", 1: f"s_mov_b32 s{sT3}, s{sW}", 2: f"s_lshr_b32 s{sT3}, s{sW}, 2",
           3: f"s_lshr_b32 s{sT3}, s{sW}, 2\n s_xor_b32 s{sT3}, s{sT3}, s{sW}", 4: f"s_add_u32 s{sT3}, s{sW}, s{sS}",
           5: f"s_xor_b32 s{sT3}, s{sW}, s{sH}", 6: f"s_lshr_b32 s{sT3}, s{sW}, 1", 7: f"s_lshr_b32 s{sT3}, s{sS}, 1\n s_add_u32 s{sT3}, s{sT3}, s{sW}"}[swz]
    sX, sJ = sCk0, sCk1
    a(f"""
    v_lshrrev_b32 v{vT}, 6, v0
    v_and_b32 v{vL}, 63, v0
    s_and_b32 s{sX}, s2, 7
    v_readfirstlane_b32 s{sW}, v{vT}
    s_lshr_b32 s{sJ}, s2, 3
    """)
    if wmap == 1: a(f"""
    s_lshr_b32 s{sT0}, s{sJ}, 4
    s_lshl_b32 s{sH}, s{sX}, 1
    s_add_u32 s{sH}, s{sH}, s{sT0}
    s_lshr_b32 s{sB}, s{sJ}, 3
    s_and_b32 s{sB}, s{sB}, 1
    s_and_b32 s{sS}, s{sJ}, 7
    """)
    elif wmap == 0: a(f"""
    s_and_b32 s{sH}, s{sJ}, 15
    s_lshr_b32 s{sB}, s{sJ}, 4
    s_xor_b32 s{sS}, s{sX}, {fpar}
    """)
    elif wmap == 4: a(f"""
    s_and_b32 s{sT0}, s{sJ}, 3
    s_lshr_b32 s{sH}, s{sX}, 1
    s_lshl_b32 s{sH}, s{sH}, 2
    s_add_u32 s{sH}, s{sH}, s{sT0}
    s_lshr_b32 s{sB}, s{sJ}, 4
    s_lshr_b32 s{sS}, s{sJ}, 1
    s_and_b32 s{sS}, s{sS}, 6
    s_and_b32 s{sT0}, s{sX}, 1
    s_xor_b32 s{sT0}, s{sT0}, {fpar}
    s_or_b32 s{sS}, s{sS}, s{sT0}
    """)
    a(f"""
    s_lshl_b32 s{sJJ}, s{sB}, 3
    s_add_u32 s{sJJ}, s{sJJ}, s{sS}
    s_lshl_b32 s{sBH}, s{sB}, 4
    s_add_u32 s{sBH}, s{sBH}, s{sH}
    s_and_b32 s{sT0}, s{sS}, 1
    s_lshl_b32 s{sT0}, s{sT0}, 4
    s_xor_b32 s{sHF}, s{sH}, {hx}
    s_or_b32 s{sT0}, s{sT0}, s{sHF}
    s_cmp_lt_u32 s{sT0}, 14
    s_cselect_b32 s{sFF}, 1, 0
    v_and_b32 v{n}, 15, v{vL}
    v_lshrrev_b32 v{g}, 4, v{vL}
    v_and_b32 v{vT}, 7, v{vL}
    v_lshlrev_b32 v{vKo}, 9, v{vT}
    v_lshl_add_u32 v{vKo}, v{g}, 4, v{vKo}
    v_and_b32 v{vT}, 8, v{vL}
    v_lshl_add_u32 v{vKo}, v{vT}, 3, v{vKo}
    s_lshl_b32 s{sT2}, s{sW}, 14
    {SWZ}
    s_and_b32 s{sT3}, s{sT3}, 3
    s_lshl_b32 s{sT1}, s{sT3}, 12
    s_or_b32 s{sKT}, s{sT2}, s{sT1}
    s_xor_b32 s{sKT+1}, s{sKT}, 4096
    s_xor_b32 s{sKT+2}, s{sKT}, 8192
    s_xor_b32 s{sKT+3}, s{sKT}, 12288
    s_lshl_b32 s{sKV}, s{sBH}, 21
    s_lshl_b32 s{sT1}, s{sS}, 18
    s_add_u32 s{sKV}, s{sKV}, s{sT1}
    s_mov_b32 s{sK+2}, 262144
    s_mov_b32 s{sK+3}, 0x00020000
    s_mov_b32 s{sV+2}, 262144
    s_mov_b32 s{sV+3}, 0x00020000
    s_mov_b32 s{sWS+2}, {WS_USED}
    s_mov_b32 s{sWS+3}, 0x00020000
    s_mov_b32 s{sWA+3}, 0x00020000
    s_mov_b32 s{sHI}, 0xffff0000
    s_cmp_le_u32 s{sW}, s{sFF}
    s_cbranch_scc1 L_stage1
    s_waitcnt lgkmcnt(0)
    s_add_u32 s{sK}, s18, s{sKV}
    s_addc_u32 s{sK+1}, s19, 0
    """)
    if early: a("s_memrealtime s[70:71]")
    if pf:
        a(f"""
        s_cmp_lg_u32 s{sW}, 3
        s_cbranch_scc1 L_nopf
        s_lshl_b32 s{sT0}, s{sH}, 3
        s_add_u32 s{sT0}, s{sT0}, s{sS}
        s_mul_i32 s{sT0}, s{sT0}, {16*896}
        s_mul_i32 s{sT1}, s{sT0}, s{sFF}
        s_lshl_b32 s{sT0}, s{sT0}, 1
        v_mov_b32 v64, s{sKV}
        v_mov_b32 v65, s{sT0}
        v_mov_b32 v66, s{sT1}
        v_mov_b32 v67, {OB_OFF}
        s_mov_b64 exec, 1
        global_load_dword v68, v64, s[20:21] nt
        global_load_dword v69, v65, s[24:25] nt
        global_load_dword v70, v66, s[32:33] nt
        global_load_dword v71, v67, s[42:43] nt
        s_mov_b64 exec, -1
        """)
        a.label("L_nopf")
    if b0: a("s_barrier")
    for f in range(16):
        kload(f)
        if BL and f % BL == BL - 1 and f < 15: a("s_nop 0")
    if cpf:
        a(f"""
        s_cmp_lg_u32 s{sW}, 2
        s_cbranch_scc1 L_nocpf
        s_cmp_ge_u32 s2, {8*cpf}
        s_cbranch_scc1 L_nocpf
        s_getpc_b64 s[70:71]
        v_lshlrev_b32 v64, 7, v{vL}
        s_mov_b32 exec_hi, 0xfff
        global_load_dword v65, v64, s[70:71]
        s_mov_b64 exec, -1
        """)
        a.label("L_nocpf")
    setup2()
    if early:
        a("s_mov_b32 s%d, s70" % STR[9])
        stamp(7)
        a("s_waitcnt vmcnt(15)")
        stamp(10)
    a.label("L_kdone"); a.forget()
    a(f"""
    v_lshlrev_b32 v{vVo}, 11, v{g}
    v_lshl_add_u32 v{vVo}, v{n}, 4, v{vVo}
    s_and_b32 s{sT1}, s{sKT}, 4096
    v_xor_b32 v{vVo}, s{sT1}, v{vVo}
    s_andn2_b32 s{sVG}, s{sKT}, 4096
    s_xor_b32 s{sVG+1}, s{sVG}, 8192
    """)
    for idx in range(NPRE): vload(idx)
    a(f"""
    s_mov_b32 s{sC}, {f32(1.4426950408889634/16)}
    s_movk_i32 s{s3584}, 3584
    s_lshr_b32 s{sRole}, s{sW}, 2
    s_lshl_b32 s{sT0}, s{sH}, 3
    s_add_u32 s{sT0}, s{sT0}, s{sS}
    s_mul_i32 s{sT0}, s{sT0}, {32*896}
    s_lshl_b32 s{sT1}, s{sHF}, 3
    s_add_u32 s{sT1}, s{sT1}, s{sS}
    s_mul_i32 s{sT1}, s{sT1}, {16*896}
    s_mul_i32 s{sT1}, s{sT1}, s{sFF}
    s_cmp_eq_u32 s{sRole}, 1
    s_cselect_b32 s{sT0}, s{sT0}, s{sT1}
    s_cselect_b32 s{sT2}, s24, s32
    s_cselect_b32 s{sT3}, s25, s33
    s_add_u32 s{sWB}, s{sT2}, s{sT0}
    s_addc_u32 s{sWB+1}, s{sT3}, 0
    s_mov_b32 s{sWB+2}, 28672
    s_mov_b32 s{sWB+3}, 0x00020000
    s_lshl_b32 s{sT0}, s{sFF}, 1
    s_cmp_eq_u32 s{sRole}, 2
    s_cselect_b32 s{sRole}, s{sT0}, s{sRole}
    v_and_b32 v{vT}, 8, v{vL}
    v_lshlrev_b32 v{vT}, 3, v{vT}
    v_lshl_add_u32 v{vT}, v{g}, 4, v{vT}
    v_mul_u32_u24 v{vKo}, 7168, v{g}
    v_lshl_add_u32 v{vKo}, v{n}, 4, v{vKo}
    s_and_b32 s{sT0}, s{sW}, 3
    s_lshl_b32 s{sT1}, s{sT0}, 8
    v_add_u32 v{vKo}, s{sT1}, v{vKo}
    s_cmp_eq_u32 s{sT0}, 3
    s_cselect_b32 s{sT0}, 8, 0
    v_and_b32 v{vS}, s{sT0}, v{vL}
    v_lshl_or_b32 v{vKo}, v{vS}, 27, v{vKo}
    """)
    a(f"""
    s_lshl_b32 s{sRed}, s{sH}, 2
    s_lshr_b32 s{sT0}, s{sS}, 1
    s_add_u32 s{sRed}, s{sRed}, s{sT0}
    s_bitcmp1_b32 s{sS}, 0
    s_cselect_b32 s{sRed}, s{sRed}, 99
    s_cmp_lg_u32 s{sW}, 2
    s_cbranch_scc1 L_noz
    v_mov_b32 v{vS}, 0
    v_mov_b32 v{vS+1}, 0
    v_mov_b32 v{vS+2}, 0
    v_mov_b32 v{vS+3}, 0
    v_lshlrev_b32 v{vS+4}, 4, v{vL}
    ds_write_b128 v{vS+4}, {R(vS)} offset:{L_YP}
    ds_write_b32 v{vS}, v{vS} offset:{L_CNT}
    """)
    a.label("L_noz")
    if stamps:
        a(f"""
        s_lshl_b32 s{sTSo}, s2, 4
        s_add_u32 s{sTSo}, s{sTSo}, s{sW}
        s_lshl_b32 s{sTSo}, s{sTSo}, 6
        s_add_u32 s{sTSo}, s{sTSo}, {TS_OFF}
        """)
    if amp >= 200:
        a(f"""
        s_lshl_b32 s11, s2, 4
        s_add_u32 s11, s11, s{sW}
        s_cmp_lg_u32 s11, 1
        s_cbranch_scc1 L_nts
        v_mov_b32 v{vQ}, s15
        s_mov_b32 s12, {TS_OFF}
        buffer_store_dword v{vQ}, off, {S(sWS)}, s12 sc1
        """)
        a.label("L_nts")
    stamp(0)
    a("s_waitcnt lgkmcnt(0)")
    a("s_barrier")
    assert NPRE <= 4
    qb = [80, 84, 88, 92]
    for i in range(4): a(f"ds_read_b128 {R(qb[i])}, v{vT} offset:{L_Q+128*i}")
    a(f"s_sub_u32 s{sT0}, s{sRole}, 1")
    a(f"s_waitcnt vmcnt({NPRE})")
    stamp(1)
    acc = [vS, vS + 4, vQ, vQ + 4]
    for i in range(4):
        a(f"s_waitcnt lgkmcnt({3-i})")
        for u in range(4):
            c = "0" if i == 0 else R(acc[u])
            a(f"v_mfma_f32_16x16x32_bf16 {R(acc[u])}, {R(4*(4*u+i))}, {R(qb[i])}, {c}")
    a(f"""
    s_cmp_gt_u32 s{sT0}, 1
    s_cbranch_scc1 L_now
    """)
    for t in range(8):
        so_ = "0" if t < 4 else f"s{s3584}"
        a(f"buffer_load_dwordx4 {R(32+4*t)}, v{vKo}, {S(sWB)}, {so_} offen offset:{896*(t%4)}{WP}")
    a.label("L_now")
    NB2 = NPRE + NMID
    for idx in range(NPRE, NB2): vload(idx)
    a(f"""
    s_cmp_eq_u32 s{sW}, 3
    s_cbranch_scc1 L_ldgate
    """)
    a.label("L_sm")
    a("s_nop 1")
    for r in range(4): a(f"v_permlane32_swap_b32 v{acc[0]+r}, v{acc[1]+r}")
    for r in range(4): a(f"v_permlane32_swap_b32 v{acc[2]+r}, v{acc[3]+r}")
    for r in range(4): a(f"v_add_f32_dpp v{vS+r}, v{acc[1]+r}, v{acc[0]+r} row_ror:8 {DPPF}")
    for r in range(4): a(f"v_add_f32_dpp v{vS+4+r}, v{acc[3]+r}, v{acc[2]+r} row_ror:8 {DPPF}")
    for k in range(0, 8, 2): a(f"v_cvt_pk_bf16_f32 v{vA+k//2}, v{vS+k}, v{vS+k+1}")
    for k in range(4): a(f"v_mov_b32_dpp v{vA+k}, v{vA+k} row_ror:8 row_mask:0xf bank_mask:0xc")
    for k in range(0, 8, 2):
        a(f"v_lshlrev_b32 v{vS+k}, 16, v{vA+k//2}")
        a(f"v_and_b32 v{vS+k+1}, s{sHI}, v{vA+k//2}")
    m, t1, l, mc = vA, vA + 1, vA + 2, vA + 3
    a(f"""
    v_max3_f32 v{m}, v{vS}, v{vS+1}, v{vS+2}
    v_max3_f32 v{t1}, v{vS+3}, v{vS+4}, v{vS+5}
    v_max3_f32 v{m}, v{m}, v{vS+6}, v{vS+7}
    v_max_f32 v{m}, v{m}, v{t1}
    v_mov_b32 v{t1}, v{m}
    v_permlane16_swap_b32 v{m}, v{t1}
    v_max_f32 v{m}, v{m}, v{t1}
    v_mov_b32 v{t1}, v{m}
    v_permlane32_swap_b32 v{m}, v{t1}
    v_max_f32 v{m}, v{m}, v{t1}
    v_mul_f32 v{mc}, s{sC}, v{m}
    """)
    for k in range(8): a(f"v_fma_f32 v{vS+k}, v{vS+k}, s{sC}, -v{mc}")
    for k in range(8): a(f"v_exp_f32 v{vS+k}, v{vS+k}")
    a(f"""
    v_add_f32 v{l}, v{vS}, v{vS+1}
    v_add_f32 v{t1}, v{vS+2}, v{vS+3}
    v_add_f32 v{l}, v{l}, v{vS+4}
    v_add_f32 v{t1}, v{t1}, v{vS+5}
    v_add_f32 v{l}, v{l}, v{vS+6}
    v_add_f32 v{t1}, v{t1}, v{vS+7}
    v_add_f32 v{l}, v{l}, v{t1}
    v_mov_b32 v{t1}, v{l}
    v_permlane16_swap_b32 v{l}, v{t1}
    v_add_f32 v{l}, v{l}, v{t1}
    v_mov_b32 v{t1}, v{l}
    v_permlane32_swap_b32 v{l}, v{t1}
    v_add_f32 v{t1}, v{l}, v{t1}
    s_lshl_b32 s{sT0}, s{sW}, 3
    v_mov_b32 v{vT}, s{sT0}
    ds_write_b64 v{vT}, {R(m,2)} offset:{L_ML}
    v_and_b32 v{vT}, 15, v{vL}
    v_lshlrev_b32 v{vT}, 3, v{vT}
    v_mov_b32 v{l}, 0
    s_waitcnt lgkmcnt(0)
    s_barrier
    ds_read_b64 {R(vO+4,2)}, v{vT} offset:{L_ML}
    ds_read_b32 v{vKo}, v{l} offset:{L_TAG}
    """)
    for idx in range(NB2, 16): vload(idx)
    a("s_waitcnt lgkmcnt(0)")
    a(f"v_readfirstlane_b32 s{sTag}, v{vKo}")
    stamp(2)
    mi, li, M, L = vO + 4, vO + 5, vO, vO + 2
    a(f"v_mov_b32 v{M}, v{mi}")
    for k in (8, 4, 2, 1): a(f"v_max_f32_dpp v{M}, v{M}, v{M} row_ror:{k} {DPPF}")
    a(f"""
    v_sub_f32 v{m}, v{m}, v{M}
    v_mul_f32 v{m}, s{sC}, v{m}
    v_exp_f32 v{m}, v{m}
    s_cmp_eq_u32 s{sW}, 2
    s_cbranch_scc1 L_stat
    """)
    a.label("L_nostat")
    a(f"""
    v_and_b32 v{t1}, 8, v{vL}
    v_cmp_ne_u32 vcc, 0, v{t1}
    v_mov_b32 v{t1}, s{sHI}
    v_cndmask_b32 v{t1}, 0, v{t1}, vcc
    """)
    for k in range(8): a(f"v_mul_f32 v{vS+k}, v{vS+k}, v{m}")
    for k in range(8):
        tt = vA + 4 + (k & 3)
        a(f"v_cvt_pk_bf16_f32 v{tt}, v{vS+k}, v{vS+k}")
        a(f"v_and_b32 v{tt}, v{t1}, v{tt}")
        a(f"v_sub_f32 v{vS+k}, v{vS+k}, v{tt}")
        a(f"v_cvt_pk_bf16_f32 v{vS+k}, v{vS+k}, v{vS+k}")
    for t in range(4):
        ab = vA + 4 * (t & 1)
        for r in range(4): a(f"v_and_b32 v{ab+r}, v{vS+t}, v{vMask+r}")
        a(f"s_waitcnt vmcnt({14-2*t})")
        for hf in range(2):
            c = "0" if t == 0 else R(vO + 4 * hf)
            a(f"v_mfma_f32_16x16x32_bf16 {R(vO+4*hf)}, {R(ab)}, {R(64+4*(2*t+hf))}, {c}")
    stamp(3)
    for t in range(4):
        for r in range(4): a(f"v_and_b32 v{64+4*t+r}, v{vS+4+t}, v{vMask+r}")
    g, n = vA, vA + 1
    vTag = vKo; vSel = vVo
    a(f"""
    v_lshrrev_b32 v{g}, 4, v{vL}
    v_and_b32 v{n}, 15, v{vL}
    s_lshl_b32 s{sT0}, s{sW}, 10
    v_lshrrev_b32 v83, 5, v{vL}
    v_lshlrev_b32 v83, 9, v83
    v_lshl_add_u32 v83, v{n}, 5, v83
    v_and_b32 v{vT}, 16, v{vL}
    v_add3_u32 v83, v83, v{vT}, s{sT0}
    v_and_b32 v82, 31, v{vL}
    v_lshlrev_b32 v82, 2, v82
    v_lshrrev_b32 v81, 5, v{vL}
    v_lshl_add_u32 v81, v81, 13, v82
    s_and_b32 s{sT1}, s{sW}, 7
    s_lshl_b32 s{sT0}, s{sT1}, 7
    v_add_u32 v81, s{sT0}, v81
    v_and_b32 v{vSel}, 3, v{vL}
    v_add_u32 v{vSel}, 0x07060500, v{vSel}
    v_mov_b32 v80, 0
    s_lshl_b32 s{sP0}, s{sBH}, 3
    s_add_u32 s{sP0}, s{sP0}, s{sT1}
    s_lshl_b32 s{sP0}, s{sP0}, 3
    s_add_u32 s{sP0}, s{sP0}, s{sS}
    s_lshl_b32 s{sP0}, s{sP0}, 7
    s_add_u32 s{sP0}, s{sP0}, {OB_OFF}
    s_cmp_eq_u32 s{sRole}, 1
    s_cbranch_scc1 L_mid1
    s_cmp_eq_u32 s{sRole}, 2
    s_cbranch_scc1 L_mid2
    s_cmp_ge_u32 s{sW}, 8
    s_cbranch_scc1 L_mid3
    s_cmp_eq_u32 s{sW}, 3
    s_cbranch_scc1 L_gate
    """)
    a.label("L_pv2"); a.forget()
    for t in range(4):
        a(f"s_waitcnt vmcnt({6-2*t})")
        for hf in range(2):
            a(f"v_mfma_f32_16x16x32_bf16 {R(vO+4*hf)}, {R(64+4*t)}, {R(4*(2*t+hf))}, {R(vO+4*hf)}")
    if ack: stamp(0)
    a(f"s_cmp_lt_u32 s{sW}, 8")
    for r in range(4): a(f"v_permlane32_swap_b32 v{vO+r}, v{vO+4+r}")
    for r in range(4): a(f"v_add_f32 v{vO+r}, v{vO+r}, v{vO+4+r}")
    a(f"""
    ds_write_b128 v83, {R(vO)} offset:{L_OW}
    s_cbranch_scc1 L_low
    {"s_setprio 3" if tp else "s_nop 0"}
    s_waitcnt lgkmcnt(0)
    s_barrier
    """)
    for i in range(4): a(f"ds_read2st64_b32 {R(2*i,2)}, v81 offset0:{L_OW//256+8*i} offset1:{L_OW//256+8*i+4}")
    a(f"""
    s_waitcnt lgkmcnt(2)
    v_add_f32 v0, v0, v1
    v_add_f32 v2, v2, v3
    s_waitcnt lgkmcnt(0)
    v_add_f32 v4, v4, v5
    v_add_f32 v6, v6, v7
    v_add_f32 v0, v0, v2
    v_add_f32 v4, v4, v6
    v_add_f32 v0, v0, v4
    v_mov_b32 v1, v0
    v_permlane32_swap_b32 v0, v1
    v_add_f32 v0, v0, v1
    v_perm_b32 v0, v0, v{vTag}, v{vSel}
    s_mov_b32 exec_hi, 0
    buffer_store_dword v0, v82, {S(sWS)}, s{sP0} offen sc1
    """)
    stamp(4)
    a(f"""
    s_cmp_lt_u32 s{sRed}, 28
    s_cbranch_scc1 L_reduce
    """)
    endpgm()
    a.label("L_low"); a.forget()
    a(f"""
    s_cmp_eq_u32 s{sRole}, 1
    s_cbranch_scc1 L_gemv1
    s_waitcnt lgkmcnt(0)
    s_barrier
    """)
    if xs: endpgm()
    a(f"""
    s_add_u32 s{sT0}, s{sRed}, s{sB}
    s_add_u32 s{sT0}, s{sT0}, s{sW}
    s_max_u32 s{sT1}, s{sRed}, 28
    s_cmp_lg_u32 s{sT1}, s{sRed}
    s_cselect_b32 s{sT0}, 99, s{sT0}
    s_cmp_eq_u32 s{sT0}, 28
    s_cbranch_scc1 L_epoch
    """)
    endpgm()

    a.label("L_gemv1"); a.forget()
    cf = 123
    def oload(): a(f"buffer_load_dwordx4 {R(0)}, v122, {S(sWS)}, s{sP1} offen sc1")
    a(f"s_mov_b32 s{sCnt}, 0")
    a.label("L_stchk")
    a(f"""
    v_cmp_ne_u32 vcc, s{sTag}, v85
    v_cmp_ne_u32 {S(sM,2)}, s{sTag}, v87
    s_or_b64 vcc, vcc, {S(sM,2)}
    s_cbranch_vccz L_stok
    s_add_u32 s{sCnt}, s{sCnt}, 1
    s_cmp_gt_u32 s{sCnt}, {LIM}
    s_cbranch_scc1 L_stok
    buffer_load_dwordx4 {R(84)}, v89, {S(sWS)}, s{sT3} offen sc1
    s_waitcnt vmcnt(0)
    s_branch L_stchk
    """)
    a.label("L_stok"); a.forget()
    M = vA
    a(f"v_mov_b32 v{M}, v84")
    for d in Q8: a(f"v_max_f32_dpp v{M}, v{M}, v{M} {d} {DPPF}")
    a(f"""
    v_sub_f32 v{cf}, v84, v{M}
    v_mul_f32 v{cf}, s{sC}, v{cf}
    v_exp_f32 v{cf}, v{cf}
    v_mul_f32 v{M}, v{cf}, v86
    """)
    for d in Q8: a(f"v_add_f32_dpp v{M}, v{M}, v{M} {d} {DPPF}")
    a(f"""
    v_rcp_f32 v{M}, v{M}
    v_mul_f32 v{cf}, v{cf}, v{M}
    s_mov_b32 s{sCnt}, 0
    s_cmp_eq_u32 s{sFF}, 0
    s_waitcnt lgkmcnt(0)
    s_barrier
    """)
    if xs: endpgm()
    oload()
    a(f"""
    ds_read_b64 {R(90,2)}, v80 offset:{L_GG}
    s_cbranch_scc1 L_nof
    ds_read_b128 {R(92)}, v120 offset:{L_F}
    """)
    a.label("L_nof")
    a("s_waitcnt lgkmcnt(0)")
    for r in range(4): a(f"v_mul_f32 v{92+r}, v{92+r}, v91")
    a("s_waitcnt vmcnt(0)")
    a.label("L_ochk"); a.forget()
    tag_chk(0, 4, 5)
    a(f"""
    s_cbranch_vccz L_ook
    s_mov_b64 exec, vcc
    """)
    if osl: a(f"s_sleep {osl}")
    oload()
    a(f"""
    s_mov_b64 exec, -1
    s_add_u32 s{sCnt}, s{sCnt}, 1
    s_waitcnt vmcnt({pipe})
    s_cmp_gt_u32 s{sCnt}, {LIM}
    s_cbranch_scc0 L_ochk
    """)
    a.label("L_ook"); a.forget()
    stamp(5)
    for r in range(4): a(f"v_mul_f32 v{24+r}, v{r}, v{cf}")
    for d in Q8:
        for r in range(4): a(f"v_add_f32_dpp v{24+r}, v{24+r}, v{24+r} {d} {DPPF}")
    for r in range(4): a(f"v_cvt_pk_bf16_f32 v{24+r}, v{24+r}, v{24+r}")
    for r in range(4): a(f"v_mov_b32_dpp v{28+r}, v{24+r} row_ror:8 {DPPF}")
    for t in range(8):
        ab = 8 + 4 * (t % 4)
        for r in range(4): a(f"v_and_b32 v{ab+r}, v{24+t}, v{vMask+r}")
        c = "0" if t == 0 else R(vO)
        a(f"v_mfma_f32_16x16x32_bf16 {R(vO)}, {R(ab)}, {R(32+4*t)}, {c}")
    a("s_mov_b32 exec_hi, 0")
    for r in range(4): a(f"v_fma_f32 v{vO+r}, v{vO+r}, v90, v{92+r}")
    tag_put(vO, vTag)
    a(f"buffer_store_dwordx4 {R(vO)}, v88, {S(sWS)}, s{sP2} offen sc1")
    stamp(6)
    if ack:
        a("s_waitcnt vmcnt(0)")
        stamp(9)
    endpgm()

    a.label("L_reduce"); a.forget()
    def yload(base=8): a(f"buffer_load_dwordx4 {R(base)}, v84, {S(sWS)}, s{sP1} offen sc1")
    a("s_mov_b64 exec, -1")
    if tp: a("s_setprio 0")
    yload()
    a(f"s_mov_b32 s{sCnt}, 0")
    a.label("L_ypoll"); a.forget()
    a("s_waitcnt vmcnt(0)")
    tag_chk(8, 4, 5)
    a(f"""
    s_cbranch_vccz L_yok
    s_mov_b64 exec, vcc
    """)
    if psl: a(f"s_sleep {psl}")
    yload()
    a(f"""
    s_mov_b64 exec, -1
    s_add_u32 s{sCnt}, s{sCnt}, 1
    s_cmp_gt_u32 s{sCnt}, {LIM}
    s_cbranch_scc0 L_ypoll
    s_waitcnt vmcnt(0)
    """)
    a.label("L_yok"); a.forget()
    stamp(7)
    allred4(8, 0, ROW16)
    a(f"""
    s_mov_b64 exec, {S(sM,2)}
    ds_write_b128 v85, {R(8)} offset:{L_YP}
    s_mov_b64 exec, 1
    ds_add_rtn_u32 v4, v80, v86 offset:{L_CNT}
    s_mov_b64 exec, -1
    ds_read_b128 {R(12)}, v84 offset:{L_YP}
    s_waitcnt lgkmcnt(1)
    v_readfirstlane_b32 s{sT0}, v4
    s_cmp_lg_u32 s{sT0}, 7
    s_cbranch_scc1 L_yend
    s_waitcnt lgkmcnt(0)
    """)
    allred4(12, 0, ROW16)
    a(f"""
    v_cvt_pk_bf16_f32 v12, v12, v13
    v_cvt_pk_bf16_f32 v13, v14, v15
    s_mov_b64 exec, {S(sM,2)}
    global_store_dwordx2 v90, {R(12,2)}, s[38:39] {opol}
    """)
    stamp(8)
    a.label("L_yend")
    endpgm()
    a.label("L_epoch"); a.forget()
    a(f"""
    s_mov_b32 s{sCnt}, 0
    v_lshlrev_b32 v84, 4, v{vL}
    s_movk_i32 s{sT3}, {ST_OFF}
    """)
    a.label("L_fchk")
    for i in range(4):
        a(f"buffer_load_dwordx4 {R(32+4*i)}, v84, {S(sWS)}, s{sT3} offen offset:{1024*i} sc1")
    a("s_waitcnt vmcnt(0)")
    for i in range(4): a(f"v_xor_b32 v{33+4*i}, s{sTag}, v{33+4*i}")
    a(f"""
    v_or3_b32 v33, v33, v37, v41
    v_or_b32 v33, v33, v45
    v_cmp_ne_u32 vcc, 0, v33
    s_cbranch_vccz L_fok
    s_add_u32 s{sCnt}, s{sCnt}, 1
    s_cmp_gt_u32 s{sCnt}, {LIM}
    s_cbranch_scc0 L_fchk
    """)
    a.label("L_fok"); a.forget()
    a(f"""
    s_mov_b64 exec, 1
    buffer_store_dword v{vTag}, off, {S(sWS)}, 0 offset:{EP_OFF} sc1
    """)
    endpgm()

    a.label("L_stat"); a.forget()
    mi, li, M, L = vO + 4, vO + 5, vO, vO + 2
    a(f"""
    v_sub_f32 v{mi}, v{mi}, v{M}
    v_mul_f32 v{mi}, s{sC}, v{mi}
    v_exp_f32 v{mi}, v{mi}
    v_mul_f32 v{L}, v{li}, v{mi}
    """)
    for k in (8, 4, 2, 1): a(f"v_add_f32_dpp v{L}, v{L}, v{L} row_ror:{k} {DPPF}")
    a(f"""
    v_mov_b32 v{M+1}, s{sTag}
    v_mov_b32 v{L+1}, s{sTag}
    s_lshl_b32 s{sT0}, s{sBH}, 3
    s_add_u32 s{sT0}, s{sT0}, s{sS}
    s_lshl_b32 s{sT0}, s{sT0}, 4
    s_add_u32 s{sT0}, s{sT0}, {ST_OFF}
    s_mov_b64 exec, 1
    buffer_store_dwordx4 {R(M)}, off, {S(sWS)}, s{sT0} sc1
    s_mov_b64 exec, -1
    s_branch L_nostat
    """)
    a.label("L_mid1"); a.forget()
    a(f"""
    v_and_b32 v{vT}, 7, v{vL}
    v_lshlrev_b32 v89, 4, v{vT}
    s_lshl_b32 s{sT3}, s{sBH}, 7
    s_add_u32 s{sT3}, s{sT3}, {ST_OFF}
    v_lshlrev_b32 v122, 7, v{vT}
    v_lshl_add_u32 v122, v{g}, 5, v122
    v_bfe_u32 v{vT}, v{vL}, 3, 1
    v_lshl_add_u32 v122, v{vT}, 4, v122
    s_lshl_b32 s{sP1}, s{sBH}, 3
    s_add_u32 s{sP1}, s{sP1}, s{sS}
    s_lshl_b32 s{sP1}, s{sP1}, 10
    s_add_u32 s{sP1}, s{sP1}, {OB_OFF}
    buffer_load_dwordx4 {R(84)}, v89, {S(sWS)}, s{sT3} offen sc1
    s_and_b32 s{sT0}, s{sW}, 3
    s_cmp_lg_u32 s{sT0}, 0
    s_cbranch_scc1 L_mid1b
    buffer_load_dwordx4 {R(vS)}, v122, {S(sWS)}, s{sP1} offen sc1
    """)
    a.label("L_mid1b")
    a(f"""
    s_lshl_b32 s{sT1}, s{sT0}, 10
    v_lshlrev_b32 v120, 4, v{vL}
    v_add_u32 v120, s{sT1}, v120
    v_lshrrev_b32 v88, 1, v{n}
    v_mul_u32_u24 v88, {YST}, v88
    v_and_b32 v{vT}, 1, v{n}
    v_lshl_add_u32 v88, v{vT}, 5, v88
    v_and_b32 v{vT}, 16, v{vL}
    v_add_u32 v88, v88, v{vT}
    s_mul_i32 s{sP2}, s{sB}, 28
    s_lshl_b32 s{sT1}, s{sT0}, 3
    s_add_u32 s{sP2}, s{sP2}, s{sT1}
    s_mul_i32 s{sP2}, s{sP2}, {YST}
    s_lshl_b32 s{sT1}, s{sH}, 3
    s_add_u32 s{sT1}, s{sT1}, s{sS}
    s_lshl_b32 s{sT1}, s{sT1}, {YSH}
    s_add_u32 s{sP2}, s{sP2}, s{sT1}
    s_add_u32 s{sP2}, s{sP2}, {YB_OFF}
    s_cmp_eq_u32 s{sT0}, 3
    s_cselect_b32 s{sT0}, 8, 0
    v_and_b32 v{vT}, s{sT0}, v{vL}
    v_lshl_or_b32 v88, v{vT}, 27, v88
    v_mov_b32 v92, 0
    v_mov_b32 v93, 0
    v_mov_b32 v94, 0
    v_mov_b32 v95, 0
    s_branch L_pv2
    """)
    a.label("L_mid2"); a.forget()
    a(f"""
    v_lshlrev_b32 v{vT}, 5, v{g}
    ds_read_b128 {R(84)}, v{vT} offset:{L_R2}
    ds_read_b128 {R(88)}, v{vT} offset:{L_R2+16}
    s_waitcnt lgkmcnt(0)
    """)
    for t in range(8): a(f"v_cvt_pk_bf16_f32 v{84+t}, v{84+t}, v{84+t}")
    for t in range(8):
        ab = vA + 4 * (t & 1)
        for r in range(4): a(f"v_and_b32 v{ab+r}, v{84+t}, v{vMask+r}")
        c = "0" if t == 0 else R(92)
        a(f"v_mfma_f32_16x16x32_bf16 {R(92)}, {R(ab)}, {R(32+4*t)}, {c}")
    a(f"""
    s_and_b32 s{sT0}, s{sW}, 3
    s_lshl_b32 s{sT1}, s{sT0}, 10
    v_lshlrev_b32 v{vT}, 4, v{vL}
    v_add_u32 v{vT}, s{sT1}, v{vT}
    ds_write_b128 v{vT}, {R(92)} offset:{L_F}
    s_branch L_pv2
    """)
    a.label("L_mid3"); a.forget()
    assert YS == 64
    a(f"""
    s_cmp_ge_u32 s{sRed}, 28
    s_cbranch_scc1 L_pv2
    v_lshlrev_b32 v84, 6, v{n}
    v_lshl_add_u32 v84, v{g}, 4, v84
    s_mov_b32 s{sM}, 0x00010001
    s_mov_b32 s{sM+1}, 0x00010001
    s_and_b32 s{sT1}, s{sW}, 7
    s_lshl_b32 s{sT0}, s{sT1}, 6
    v_lshlrev_b32 v85, 4, v{g}
    v_add_u32 v85, s{sT0}, v85
    v_mov_b32 v86, 1
    s_lshl_b32 s{sT0}, s{sRed}, 5
    s_mul_i32 s{sT2}, s{sB}, 896
    s_add_u32 s{sT0}, s{sT0}, s{sT2}
    v_lshlrev_b32 v90, 3, v{g}
    v_add_u32 v90, s{sT0}, v90
    s_mul_i32 s{sP1}, s{sB}, 28
    s_add_u32 s{sP1}, s{sP1}, s{sRed}
    s_mul_i32 s{sP1}, s{sP1}, {YST}
    s_lshl_b32 s{sT1}, s{sT1}, 10
    s_add_u32 s{sP1}, s{sP1}, s{sT1}
    s_add_u32 s{sP1}, s{sP1}, {YB_OFF}
    """)
    if ywarm: yload(32)
    a("s_branch L_pv2")
    a.label("L_gate"); a.forget()
    xa, ga = 32, 36
    a("v_mov_b32 v44, 0")
    for r in range(4):
        a(f"""
        v_lshlrev_b32 v40, 16, v{xa+r}
        v_and_b32 v41, s{sHI}, v{xa+r}
        v_lshlrev_b32 v42, 16, v{ga+r}
        v_and_b32 v43, s{sHI}, v{ga+r}
        v_mul_f32 v40, v40, v42
        v_mul_f32 v41, v41, v43
        v_cvt_pk_bf16_f32 v40, v40, v41
        v_lshlrev_b32 v41, 16, v40
        v_and_b32 v40, s{sHI}, v40
        v_add_f32 v44, v44, v41
        v_add_f32 v44, v44, v40
        """)
    for k in (8, 4, 2, 1): a(f"v_add_f32_dpp v44, v44, v44 row_ror:{k} {DPPF}")
    a(f"""
    v_mov_b32 v45, v44
    v_permlane16_swap_b32 v44, v45
    v_add_f32 v44, v44, v45
    v_mov_b32 v45, v44
    v_permlane32_swap_b32 v44, v45
    v_add_f32 v44, v44, v45
    v_cvt_pk_bf16_f32 v44, v44, v44
    v_and_b32 v44, s{sHI}, v44
    v_mul_f32 v44, {f32(-1.4426950408889634)}, v44
    v_exp_f32 v44, v44
    v_add_f32 v44, 1.0, v44
    v_rcp_f32 v44, v44
    v_cvt_pk_bf16_f32 v44, v44, v44
    v_and_b32 v44, s{sHI}, v44
    v_sub_f32 v45, 1.0, v44
    v_cvt_pk_bf16_f32 v45, v45, v45
    v_and_b32 v45, s{sHI}, v45
    ds_write_b64 v80, {R(44,2)} offset:{L_GG}
    s_cmp_ge_u32 s{sRed}, 28
    s_cbranch_scc1 L_pv2
    v_lshlrev_b32 v40, 16, v46
    v_and_b32 v41, s{sHI}, v46
    v_lshlrev_b32 v42, 16, v47
    v_and_b32 v43, s{sHI}, v47
    v_mul_f32 v40, v40, v45
    v_mul_f32 v41, v41, v45
    v_mul_f32 v42, v42, v45
    v_mul_f32 v43, v43, v45
    v_lshlrev_b32 v{vT}, 4, v{g}
    ds_write_b128 v{vT}, {R(40)} offset:{L_YP+512}
    s_branch L_pv2
    """)
    a.label("L_ldgate"); a.forget()
    for r in range(8): a(f"v_mov_b32 v{32+r}, 0")
    a(f"""
    v_lshlrev_b32 v{vA+1}, 4, v{vL}
    s_mul_i32 s{sT0}, s{sB}, 896
    v_add_u32 v{vA}, s{sT0}, v{vA+1}
    s_min_u32 s{sT0}, s{sRed}, 27
    s_lshl_b32 s{sT0}, s{sT0}, 5
    v_lshrrev_b32 v{vA+2}, 4, v{vL}
    v_lshlrev_b32 v{vA+2}, 3, v{vA+2}
    v_add_u32 v{vA+2}, s{sT0}, v{vA+2}
    s_mov_b32 exec_hi, 0x00ffffff
    global_load_dwordx4 {R(32)}, v{vA}, s[16:17]
    global_load_dwordx4 {R(36)}, v{vA+1}, s[36:37]
    s_mov_b64 exec, -1
    global_load_dwordx2 {R(46,2)}, v{vA+2}, s[34:35]
    s_branch L_sm
    """)

    n, g = 120, 121
    a.label("L_stage1"); a.forget()
    SO = [None, 60, 61, 62, 64, 65, 66, 67, 69, 70, 71, 76, 77, 78]
    sStr = sP1
    a(f"""
    s_movk_i32 s{sStr}, 3584
    s_mov_b32 s{sP0}, {SH_OFF}
    s_cmp_eq_u32 s{sW}, 0
    s_cselect_b32 s{sStr}, 8192, s{sStr}
    s_cselect_b32 s{sP2}, 9, 8
    s_cselect_b32 s{sT3}, s{sH}, s{sHF}
    s_cselect_b32 s{sP0}, {SQ_OFF}, s{sP0}
    s_mul_i32 s{sCnt}, s{sStr}, 448
    s_lshr_b32 s{sT1}, s{sJJ}, 1
    s_mul_i32 s{sT2}, s{sT1}, 56
    s_mul_i32 s{sT2}, s{sT2}, s{sStr}
    s_lshl_b32 s{sT3}, s{sT3}, s{sP2}
    s_add_u32 s{sT2}, s{sT2}, s{sT3}
    s_and_b32 s{sT3}, s{sJJ}, 1
    s_lshl_b32 s{sT0}, s{sT3}, 8
    s_add_u32 s{sT2}, s{sT2}, s{sT0}
    s_sub_u32 s{sWA+2}, s{sCnt}, s{sT2}
    s_mul_i32 s{sT0}, s{sStr}, 14
    v_mul_u32_u24 v{vT}, s{sT0}, v{g}
    v_lshl_add_u32 v{vT}, v{n}, 4, v{vT}
    s_mov_b32 s{SO[1]}, s{sStr}
    """)
    for t in range(2, 14): a(f"s_add_u32 s{SO[t]}, s{SO[t-1]}, s{sStr}")
    a(f"""
    v_lshrrev_b32 v{vS}, 3, v{n}
    v_mul_u32_u24 v{vS}, 896, v{vS}
    v_mad_u32_u24 v{vS}, v{g}, 28, v{vS}
    s_mul_i32 s{sT0}, s{sT1}, 112
    v_add_u32 v{vS}, s{sT0}, v{vS}
    v_mov_b32 v{vS+1}, 0
    s_cmp_eq_u32 s{sW}, 0
    s_waitcnt lgkmcnt(0)
    s_cselect_b32 s{sWA}, s22, s28
    s_cselect_b32 s{sWA+1}, s23, s29
    s_add_u32 s{sWA}, s{sWA}, s{sT2}
    s_addc_u32 s{sWA+1}, s{sWA+1}, 0
    """)
    for t in range(14):
        a(f"buffer_load_dwordx4 {R(4*t)}, v{vT}, {S(sWA)}, {('s%d' % SO[t]) if t else '0'} offen{WQP}")
    a(f"""
    global_load_dwordx4 {R(56)}, v{vS}, s[16:17]
    global_load_dwordx3 {R(60,3)}, v{vS}, s[16:17] offset:16
    global_load_dword v63, v{vS+1}, s[42:43] offset:{EP_OFF} sc1
    {"s_barrier" if b0 else "s_nop 0"}
    s_add_u32 s{sK}, s18, s{sKV}
    s_addc_u32 s{sK+1}, s19, 0
    """)
    setup2()
    a(f"""
    v_lshrrev_b32 v{vT}, 1, v{g}
    v_lshlrev_b32 v{vT}, 13, v{vT}
    v_lshl_add_u32 v{vT}, v{n}, 5, v{vT}
    v_and_b32 v{vS}, 16, v{vL}
    v_add_u32 v{vT}, v{vT}, v{vS}
    s_lshl_b32 s{sT0}, s{sH}, 14
    s_add_u32 s{sP0}, s{sP0}, s{sT0}
    s_lshl_b32 s{sT0}, s{sB}, 13
    s_add_u32 s{sP1}, s{sP0}, s{sT0}
    s_lshl_b32 s{sT2}, s{sT1}, 10
    s_add_u32 s{sP0}, s{sP0}, s{sT2}
    s_lshl_b32 s{sT2}, s{sT3}, 9
    s_add_u32 s{sP0}, s{sP0}, s{sT2}
    s_mov_b32 s{sT2}, 0x01000100
    s_mov_b32 s{sT3}, 0x03020302
    v_lshlrev_b32 v{vQ+1}, 4, v{vL}
    s_add_u32 s{sP2}, s{sP1}, 4096
    s_waitcnt vmcnt(0)
    v_and_b32 v{vQ}, 0x7f7f7f7f, v63
    v_add_u32 v{vQ}, 0x671b3501, v{vQ}
    v_xor_b32 v63, 0xe79b3501, v63
    v_and_b32 v63, 0x80808080, v63
    v_xor_b32 v{vQ}, v{vQ}, v63
    v_mov_b32 v63, 0
    v_readfirstlane_b32 s{sTag}, v{vQ}
    ds_write_b32 v63, v{vQ} offset:{L_TAG}
    """)
    stamp(5)
    for t in range(14):
        ab = 112 if t & 1 else vA
        a(f"v_perm_b32 v{vS+4}, v{56+t//2}, v{56+t//2}, s{sT3 if t & 1 else sT2}")
        for r in range(4): a(f"v_and_b32 v{ab+r}, v{vS+4}, v{vMask+r}")
        c = "0" if t == 0 else R(vS)
        a(f"v_mfma_f32_16x16x32_bf16 {R(vS)}, {R(ab)}, {R(4*t)}, {c}")
    a(f"s_cmp_eq_u32 s{sW}, 1")
    tag_put(vS, vQ)
    a(f"buffer_store_dwordx4 {R(vS)}, v{vT}, {S(sWS)}, s{sP0} offen sc1")
    stamp(6)
    a("s_cbranch_scc1 L_hgather")
    def qload(i): a(f"buffer_load_dwordx4 {R(64+4*i)}, v{vQ+1}, {S(sWS)}, s{sP1 if i < 4 else sP2} offen offset:{1024*(i%4)} sc1")
    for f in range(KS): kload(f)
    for i in range(8): qload(i)
    poll_many("L_qp", [(64+4*i, (lambda i=i: qload(i))) for i in range(8)], vQ + 4, vQ + 5)
    for f in range(KS, 16): kload(f)
    for i in range(1, 8):
        for r in range(4): a(f"v_add_f32 v{64+r}, v{64+r}, v{64+4*i+r}")
    a(f"""
    v_cvt_pk_bf16_f32 v{vQ}, v64, v65
    v_cvt_pk_bf16_f32 v{vQ+1}, v66, v67
    v_lshlrev_b32 v{vT}, 3, v{vL}
    ds_write_b64 v{vT}, {R(vQ,2)} offset:{L_Q}
    """)
    stamp(10)
    a("s_branch L_kdone")
    a.label("L_hgather"); a.forget()
    for f in range(16): kload(f)
    h = vS
    a(f"""
    v_and_b32 v{vA}, 7, v{vL}
    v_lshrrev_b32 v{vQ}, 3, v{vL}
    v_lshlrev_b32 v{vQ}, 10, v{vQ}
    v_lshl_add_u32 v{vQ}, v{vA}, 4, v{vQ}
    s_lshl_b32 s{sT0}, s{sS}, 6
    s_add_u32 s{sP1}, s{sP1}, s{sT0}
    s_lshl_b32 s{sT1}, s{sHF}, 8
    s_lshl_b32 s{sT0}, s{sS}, 5
    s_add_u32 s{sT1}, s{sT1}, s{sT0}
    v_lshlrev_b32 v{vT}, 3, v{vA}
    v_add_u32 v{vT}, s{sT1}, v{vT}
    global_load_dwordx2 {R(118,2)}, v{vT}, s[30:31]
    """)
    def hload(): a(f"buffer_load_dwordx4 {R(h)}, v{vQ}, {S(sWS)}, s{sP1} offen sc1")
    hload()
    poll_many("L_hp", [(h, hload)], vQ + 4, vQ + 5)
    allred4(h, h + 4, ['ror:8', 'p16', 'p32'])
    rnd2(h, h + 1, vQ + 4); rnd2(h + 2, h + 3, vQ + 5)
    a(f"""
    v_lshlrev_b32 v{h+4}, 16, v118
    v_and_b32 v{h+5}, s{sHI}, v118
    v_lshlrev_b32 v{h+6}, 16, v119
    v_and_b32 v{h+7}, s{sHI}, v119
    """)
    for r in range(4): a(f"v_add_f32 v{h+r}, v{h+r}, v{h+4+r}")
    rnd2(h, h + 1, vQ + 4); rnd2(h + 2, h + 3, vQ + 5)
    for r in range(4): a(f"v_max_f32 v{h+r}, 0, v{h+r}")
    for r in range(4): a(f"v_mul_f32 v{h+r}, v{h+r}, v{h+r}")
    a(f"""
    v_lshlrev_b32 v{vT}, 4, v{vA}
    ds_write_b128 v{vT}, {R(h)} offset:{L_R2}
    s_nop 1
    s_branch L_kdone
    """)
    if stamps:
        a.label("L_stampout"); a.forget()
        if amp >= 0:
            if amp == 99: a("s_movk_i32 s11, 10000")
            elif amp >= 200:
                a(f"""
                s_cmp_lg_u32 s2, {amp-200}
                s_cbranch_scc1 L_end
                s_cmp_lg_u32 s{sW}, 1
                s_cbranch_scc1 L_end
                s_mov_b64 exec, -1
                s_mov_b32 s12, {TS_OFF}
                buffer_load_dword v0, off, {S(sWS)}, s12 sc1
                s_waitcnt vmcnt(0)
                v_readfirstlane_b32 s11, v0
                s_sub_u32 s11, s15, s11
                s_add_u32 s11, s11, 100
                s_min_u32 s11, s11, 1000
                s_mul_i32 s11, s11, 50
                """)
            else:
                a("s_cmp_eq_u32 s%d, 0" % STR[amp])
                a("s_cbranch_scc1 L_end")
                a("s_sub_u32 s11, s%d, s15" % STR[amp])
                a("s_min_u32 s11, s11, 20000")
                a("s_lshl_b32 s11, s11, 3")
            a.label("L_amp")
            a("s_sleep 8")
            a("s_memrealtime s[%d:%d]" % (sTS, sTS + 1))
            a("s_waitcnt lgkmcnt(0)")
            a("s_sub_u32 s12, s%d, s15" % sTS)
            a("s_cmp_lt_u32 s12, s11")
            a("s_cbranch_scc1 L_amp")
        else:
            a("s_mov_b64 exec, -1")
            a("s_waitcnt vmcnt(0)")
            for i, r in enumerate(STR): a("v_writelane_b32 v0, s%d, %d" % (r, i))
            a(f"v_lshlrev_b32 v1, 2, v{vL}")
            a("s_mov_b64 exec, 0xfff")
            a("buffer_store_dword v0, v1, %s, s%d offen" % (S(sWS), sTSo))
    a.label("L_end")
    a("s_endpgm")
    if 2 <= lst <= 6:
        a.raw(".globl tiny_kernel\n.p2align 8\n.type tiny_kernel,@function\ntiny_kernel:\n    s_endpgm")
    a.raw('.section .rodata,"a"')
    if 2 <= lst <= 6:
        a.raw(".p2align 6\n.amdhsa_kernel tiny_kernel\n  .amdhsa_next_free_vgpr NV\n  .amdhsa_next_free_sgpr 16\n  .amdhsa_accum_offset NV\n  .amdhsa_group_segment_fixed_size 0\n  .amdhsa_kernarg_size 112\n  .amdhsa_user_sgpr_count 2\n  .amdhsa_user_sgpr_kernarg_segment_ptr 1\n  .amdhsa_system_sgpr_workgroup_id_x 1\n.end_amdhsa_kernel".replace("NV", {4: "128", 5: "256"}.get(lst, "8")))
    a.raw(".p2align 6")
    a.raw(".amdhsa_kernel %s_kernel" % NAME)
    a.raw("  .amdhsa_next_free_vgpr 128")
    a.raw("  .amdhsa_next_free_sgpr 102")
    a.raw("  .amdhsa_accum_offset 128")
    a.raw("  .amdhsa_group_segment_fixed_size 0")
    a.raw("  .amdhsa_kernarg_size 112")
    a.raw("  .amdhsa_user_sgpr_count 2")
    a.raw("  .amdhsa_user_sgpr_kernarg_segment_ptr 1")
    a.raw("  .amdhsa_system_sgpr_workgroup_id_x 1")
    a.raw("  .amdhsa_float_denorm_mode_32 3")
    a.raw(".end_amdhsa_kernel")
    return a.text()

if __name__ == "__main__":
    import argparse, inspect
    ap = argparse.ArgumentParser()
    ap.add_argument("-o", default="cdna_kernels/%s.s" % NAME)
    sig = inspect.signature(gen)
    for k, p in sig.parameters.items():
        if isinstance(p.default, bool): ap.add_argument("--" + k, action="store_true")
        elif isinstance(p.default, int): ap.add_argument("--" + k, type=int, default=p.default)
        else: ap.add_argument("--" + k, default=p.default)
    x = vars(ap.parse_args()); o = x.pop("o")
    x = {k: ("" if v == "none" else v) for k, v in x.items()}
    open(o, "w").write(gen(**x))
```

```python
import sys, struct
from asmlib import Asm

NAME = "gated_mix__mha_block_cached__dense_activation_squared_relu__decode"
def f32(x): return "0x%08x" % struct.unpack('<I', struct.pack('<f', x))[0]

def gen(kv="nt", wq="", w2="", stamps=False, NPRE=2, NMID=2, swz=1, amp=-1, xs=0, wmap=4, pipe=0, fpar=0, red=2, ypad=0, yskew=256, KS=16, early=0, pf=0, cpf=0, lst=0, BL=0, b0=0, ack=0, psl=0, ywarm=1, hx=0, tp=1, osl=0, opol="", hsw=0):
    stamps = stamps or amp >= 0
    a = Asm()
    KV = (" " + kv) if kv else ""
    WQP = (" " + wq) if wq else ""
    WP = (" " + w2) if w2 else ""
    YS = 128 if ypad else 64
    YSH = 7 if ypad else 6
    YST = 128 * YS + yskew
    EP_OFF = 0; ST_OFF = 4096; OB_OFF = 8192; SQ_OFF = OB_OFF + 262144; SH_OFF = SQ_OFF + 262144
    YB_OFF = SH_OFF + 262144; TS_OFF = 1835008; WS_USED = 2097152
    assert YB_OFF + 56 * YST <= TS_OFF
    L_Q = 0; L_ML = 512; L_R2 = 640; L_GG = 768; L_TAG = 776; L_CNT = 780; L_YP = 1024; L_F = 1024; L_OW = 5120; OWS = 1024; LDS = L_OW + 16 * OWS
    sCk0, sCk1, sH, sB, sS, sJJ, sBH, sW = 3, 4, 5, 6, 7, 8, 9, 10
    sT0, sT1, sT2, sT3 = 11, 12, 13, 14
    sK, sV, sWS, sWA, sWB = 44, 48, 52, 56, 64
    sSel = [40, 41, 60, 61]; sE = 62; sFF = 63; sHF = 1
    sKV = 68
    sKT = 72; sVG = 76; sC = 78; sHI = 79; sM = 80
    sP0, sP1, sP2 = 82, 83, 84
    sRole = 85; sRed = 86; sCnt = 87
    sTS = 88; sTSo = 90; s3584 = 91; sTag = 92
    vMask = 96; vS = 100; vQ = 108; vO = 108; vA = 116; vKo = 124; vVo = 125; vL = 126; vT = 127
    LIM = 1 << 23
    def R(b, n=4): return "v[%d:%d]" % (b, b + n - 1)
    def S(b, n=4): return "s[%d:%d]" % (b, b + n - 1)
    STR = [26, 27, 93, 94, 95, 96, 97, 98, 99, 100, 101, 15]
    def stamp(idx):
        if not stamps: return
        a("s_memrealtime s[%d:%d]" % (sTS, sTS + 1))
        a("s_waitcnt lgkmcnt(0)")
        a("s_mov_b32 s%d, s%d" % (STR[idx], sTS))
    def endpgm():
        if stamps: a("s_branch L_stampout")
        else: a("s_endpgm")
    DPPF = "row_mask:0xf bank_mask:0xf"
    ROW16 = ['ror:8', 'ror:4', 'ror:2', 'ror:1']
    Q8 = ("quad_perm:[1,0,3,2]", "quad_perm:[2,3,0,1]", "row_half_mirror")
    def kload(f):
        u, i = f >> 2, f & 3
        a(f"buffer_load_dwordx4 {R(4*f)}, v{vKo}, {S(sK)}, s{sKT+u} offen offset:{128*i}{KV}")
    def vload(idx):
        G, t, hf = idx >> 3, (idx >> 1) & 3, idx & 1
        base = 64 if G == 0 else 0
        a(f"buffer_load_dwordx4 {R(base+4*(2*t+hf))}, v{vVo}, {S(sV)}, s{sVG+G} offen offset:{512*t+256*hf}{KV}")
    def allred4(base, tmp, steps, op="add"):
        for st in steps:
            if st.startswith('ror'):
                for r in range(4): a(f"v_{op}_f32_dpp v{base+r}, v{base+r}, v{base+r} row_{st} {DPPF}")
            else:
                sw = "v_permlane16_swap_b32" if st == 'p16' else "v_permlane32_swap_b32"
                for r in range(4): a(f"v_mov_b32 v{tmp+r}, v{base+r}")
                for r in range(4): a(f"{sw} v{base+r}, v{tmp+r}")
                for r in range(4): a(f"v_{op}_f32 v{base+r}, v{base+r}, v{tmp+r}")
    def rnd2(x, y, tmp):
        a(f"v_cvt_pk_bf16_f32 v{tmp}, v{x}, v{y}")
        a(f"v_lshlrev_b32 v{x}, 16, v{tmp}")
        a(f"v_and_b32 v{y}, s{sHI}, v{tmp}")
    def tag_put(base, vtag):
        for r in range(4): a(f"v_perm_b32 v{base+r}, v{base+r}, v{vtag}, s{sSel[r]}")
    def tag_chk(base, t0, t1):
        a(f"v_perm_b32 v{t0}, v{base+1}, v{base}, s{sCk0}")
        a(f"v_perm_b32 v{t1}, v{base+3}, v{base+2}, s{sCk1}")
        a(f"v_or_b32 v{t0}, v{t0}, v{t1}")
        a(f"v_cmp_ne_u32 vcc, s{sTag}, v{t0}")
    def poll_many(lbl, loads, t0, t1):
        a(f"s_mov_b32 s{sCnt}, 0")
        a.label(lbl); a.forget()
        a("s_waitcnt vmcnt(0)")
        a(f"s_mov_b32 s{sE}, 0")
        for i, (base, fn) in enumerate(loads):
            tag_chk(base, t0, t1)
            a(f"s_cbranch_vccz {lbl}_s{i}")
            a("s_mov_b64 exec, vcc")
            fn()
            a("s_mov_b64 exec, -1")
            a(f"s_mov_b32 s{sE}, 1")
            a.label(f"{lbl}_s{i}")
        a(f"""
        s_cmp_eq_u32 s{sE}, 0
        s_cbranch_scc1 {lbl}_ok
        s_add_u32 s{sCnt}, s{sCnt}, 1
        s_cmp_gt_u32 s{sCnt}, {LIM}
        s_cbranch_scc0 {lbl}
        s_waitcnt vmcnt(0)
        """)
        a.label(lbl + "_ok"); a.forget()
    def setup2():
        a(f"""
        s_add_u32 s{sV}, s20, s{sKV}
        s_addc_u32 s{sV+1}, s21, 0
        s_mov_b32 s{sWS}, s42
        s_mov_b32 s{sWS+1}, s43
        """)
        if stamps:
            for r in STR[:11]: a("s_mov_b32 s%d, 0" % r)
        tmp = vS
        a(f"""
        v_and_b32 v{tmp}, 1, v{vL}
        v_lshlrev_b32 v{tmp}, 4, v{tmp}
        v_mov_b32 v{tmp+1}, 0xffff
        v_lshlrev_b32 v{tmp+1}, v{tmp}, v{tmp+1}
        v_bfe_u32 v{tmp+2}, v{vL}, 1, 2
        """)
        for r in range(4):
            a(f"v_cmp_eq_u32 vcc, {r}, v{tmp+2}")
            a(f"s_mov_b32 s{sSel[r]}, {0x07060500 + r}")
            a(f"v_cndmask_b32 v{vMask+r}, 0, v{tmp+1}, vcc")
        a(f"""
        s_mov_b32 s{sCk0}, 0x0c0c0400
        s_mov_b32 s{sCk1}, 0x04000c0c
        """)

    if lst == 2: a.raw("; @launch kernel=tiny_kernel grid=(1,1,1) block=(64,1,1) lds=0")
    if lst: a.raw("; @launch kernel=%s_kernel grid=(256,1,1) block=(1024,1,1) lds=%d" % (NAME, LDS))
    else: a.raw("; @launch grid=(256,1,1) block=(1024,1,1) lds=%d" % LDS)
    if lst == 3: a.raw("; @launch kernel=tiny_kernel grid=(1,1,1) block=(64,1,1) lds=0")
    if lst == 4: a.raw("; @launch kernel=tiny_kernel grid=(256,1,1) block=(1024,1,1) lds=21504")
    if lst == 5: a.raw("; @launch kernel=tiny_kernel grid=(256,1,1) block=(512,1,1) lds=21504")
    if lst == 6: a.raw("; @launch kernel=tiny_kernel grid=(256,1,1) block=(64,1,1) lds=0")
    if lst == 7: a.raw("; @launch kernel=%s_kernel grid=(256,1,1) block=(1024,1,1) lds=%d" % (NAME, LDS))
    a.raw('.amdgcn_target "amdgcn-amd-amdhsa--gfx950"')
    a.raw(".text")
    a.raw(".globl %s_kernel" % NAME)
    a.raw(".p2align 8")
    a.raw(".type %s_kernel,@function" % NAME)
    a.raw("%s_kernel:" % NAME)
    a("s_cmp_ge_u32 s2, 256")
    a("s_cbranch_scc1 L_end")
    stamp(11)
    a("s_load_dwordx16 s[16:31], s[0:1], 0")
    a("s_load_dwordx8 s[32:39], s[0:1], 64")
    a("s_load_dwordx2 s[42:43], s[0:1], 104")
    n, g = 120, 121
    SWZ = {0: f"s_mov_b32 s{sT3}, 0", 1: f"s_mov_b32 s{sT3}, s{sW}", 2: f"s_lshr_b32 s{sT3}, s{sW}, 2",
           3: f"s_lshr_b32 s{sT3}, s{sW}, 2\n s_xor_b32 s{sT3}, s{sT3}, s{sW}", 4: f"s_add_u32 s{sT3}, s{sW}, s{sS}",
           5: f"s_xor_b32 s{sT3}, s{sW}, s{sH}", 6: f"s_lshr_b32 s{sT3}, s{sW}, 1", 7: f"s_lshr_b32 s{sT3}, s{sS}, 1\n s_add_u32 s{sT3}, s{sT3}, s{sW}",
           8: f"s_mov_b32 s{sT3}, s{sH}", 9: f"s_lshr_b32 s{sT3}, s{sH}, 2\n s_xor_b32 s{sT3}, s{sT3}, s{sW}", 10: f"s_xor_b32 s{sT3}, s{sW}, s{sH}\n s_xor_b32 s{sT3}, s{sT3}, s{sS}",
           11: f"s_mul_i32 s{sT3}, s2, 0x9e3779b1\n s_lshr_b32 s{sT3}, s{sT3}, 27\n s_xor_b32 s{sT3}, s{sT3}, s{sW}", 12: f"s_add_u32 s{sT3}, s{sW}, s{sH}",
           13: f"s_lshr_b32 s{sT3}, s{sH}, 2\n s_xor_b32 s{sT3}, s{sT3}, s{sH}\n s_xor_b32 s{sT3}, s{sT3}, s{sW}"}[swz]
    sX, sJ = sCk0, sCk1
    HSW = {0: f"s_mov_b32 s{sT2}, 0", 1: f"s_mov_b32 s{sT2}, s{sH}", 2: f"s_mov_b32 s{sT2}, s{sJJ}", 3: f"s_mov_b32 s{sT2}, s{sJ}",
           4: f"s_mul_i32 s{sT2}, s2, 0x9e3779b1\n s_lshr_b32 s{sT2}, s{sT2}, 20", 5: f"s_lshr_b32 s{sT2}, s{sH}, 2", 6: f"s_and_b32 s{sT2}, s{sH}, 12",
           7: f"s_lshl_b32 s{sT2}, s{sS}, 1", 8: f"s_mov_b32 s{sT2}, s{sS}"}[hsw]
    a(f"""
    v_lshrrev_b32 v{vT}, 6, v0
    v_and_b32 v{vL}, 63, v0
    s_and_b32 s{sX}, s2, 7
    v_readfirstlane_b32 s{sW}, v{vT}
    s_lshr_b32 s{sJ}, s2, 3
    """)
    if wmap == 1: a(f"""
    s_lshr_b32 s{sT0}, s{sJ}, 4
    s_lshl_b32 s{sH}, s{sX}, 1
    s_add_u32 s{sH}, s{sH}, s{sT0}
    s_lshr_b32 s{sB}, s{sJ}, 3
    s_and_b32 s{sB}, s{sB}, 1
    s_and_b32 s{sS}, s{sJ}, 7
    """)
    elif wmap == 0: a(f"""
    s_and_b32 s{sH}, s{sJ}, 15
    s_lshr_b32 s{sB}, s{sJ}, 4
    s_xor_b32 s{sS}, s{sX}, {fpar}
    """)
    elif wmap == 4: a(f"""
    s_and_b32 s{sT0}, s{sJ}, 3
    s_lshr_b32 s{sH}, s{sX}, 1
    s_lshl_b32 s{sH}, s{sH}, 2
    s_add_u32 s{sH}, s{sH}, s{sT0}
    s_lshr_b32 s{sB}, s{sJ}, 4
    s_lshr_b32 s{sS}, s{sJ}, 1
    s_and_b32 s{sS}, s{sS}, 6
    s_and_b32 s{sT0}, s{sX}, 1
    s_xor_b32 s{sT0}, s{sT0}, {fpar}
    s_or_b32 s{sS}, s{sS}, s{sT0}
    """)
    a(f"""
    s_lshl_b32 s{sJJ}, s{sB}, 3
    s_add_u32 s{sJJ}, s{sJJ}, s{sS}
    s_lshl_b32 s{sBH}, s{sB}, 4
    s_add_u32 s{sBH}, s{sBH}, s{sH}
    s_and_b32 s{sT0}, s{sS}, 1
    s_lshl_b32 s{sT0}, s{sT0}, 4
    s_xor_b32 s{sHF}, s{sH}, {hx}
    s_or_b32 s{sT0}, s{sT0}, s{sHF}
    s_cmp_lt_u32 s{sT0}, 14
    s_cselect_b32 s{sFF}, 1, 0
    v_and_b32 v{n}, 15, v{vL}
    v_lshrrev_b32 v{g}, 4, v{vL}
    v_and_b32 v{vT}, 7, v{vL}
    v_lshlrev_b32 v{vKo}, 9, v{vT}
    v_lshl_add_u32 v{vKo}, v{g}, 4, v{vKo}
    v_and_b32 v{vT}, 8, v{vL}
    v_lshl_add_u32 v{vKo}, v{vT}, 3, v{vKo}
    {HSW}
    s_xor_b32 s{sT2}, s{sT2}, s{sW}
    s_and_b32 s{sT2}, s{sT2}, 15
    s_lshl_b32 s{sT2}, s{sT2}, 14
    {SWZ}
    s_and_b32 s{sT3}, s{sT3}, 3
    s_lshl_b32 s{sT1}, s{sT3}, 12
    s_or_b32 s{sKT}, s{sT2}, s{sT1}
    s_xor_b32 s{sKT+1}, s{sKT}, 4096
    s_xor_b32 s{sKT+2}, s{sKT}, 8192
    s_xor_b32 s{sKT+3}, s{sKT}, 12288
    s_lshl_b32 s{sKV}, s{sBH}, 21
    s_lshl_b32 s{sT1}, s{sS}, 18
    s_add_u32 s{sKV}, s{sKV}, s{sT1}
    s_mov_b32 s{sK+2}, 262144
    s_mov_b32 s{sK+3}, 0x00020000
    s_mov_b32 s{sV+2}, 262144
    s_mov_b32 s{sV+3}, 0x00020000
    s_mov_b32 s{sWS+2}, {WS_USED}
    s_mov_b32 s{sWS+3}, 0x00020000
    s_mov_b32 s{sWA+3}, 0x00020000
    s_mov_b32 s{sHI}, 0xffff0000
    s_cmp_le_u32 s{sW}, s{sFF}
    s_cbranch_scc1 L_stage1
    s_waitcnt lgkmcnt(0)
    s_add_u32 s{sK}, s18, s{sKV}
    s_addc_u32 s{sK+1}, s19, 0
    """)
    if early: a("s_memrealtime s[70:71]")
    if pf:
        a(f"""
        s_cmp_lg_u32 s{sW}, 3
        s_cbranch_scc1 L_nopf
        s_lshl_b32 s{sT0}, s{sH}, 3
        s_add_u32 s{sT0}, s{sT0}, s{sS}
        s_mul_i32 s{sT0}, s{sT0}, {16*896}
        s_mul_i32 s{sT1}, s{sT0}, s{sFF}
        s_lshl_b32 s{sT0}, s{sT0}, 1
        v_mov_b32 v64, s{sKV}
        v_mov_b32 v65, s{sT0}
        v_mov_b32 v66, s{sT1}
        v_mov_b32 v67, {OB_OFF}
        s_mov_b64 exec, 1
        global_load_dword v68, v64, s[20:21] nt
        global_load_dword v69, v65, s[24:25] nt
        global_load_dword v70, v66, s[32:33] nt
        global_load_dword v71, v67, s[42:43] nt
        s_mov_b64 exec, -1
        """)
        a.label("L_nopf")
    if b0: a("s_barrier")
    for f in range(16):
        kload(f)
        if BL and f % BL == BL - 1 and f < 15: a("s_nop 0")
    if cpf:
        a(f"""
        s_cmp_lg_u32 s{sW}, 2
        s_cbranch_scc1 L_nocpf
        s_cmp_ge_u32 s2, {8*cpf}
        s_cbranch_scc1 L_nocpf
        s_getpc_b64 s[70:71]
        v_lshlrev_b32 v64, 7, v{vL}
        s_mov_b32 exec_hi, 0xfff
        global_load_dword v65, v64, s[70:71]
        s_mov_b64 exec, -1
        """)
        a.label("L_nocpf")
    setup2()
    if early:
        a("s_mov_b32 s%d, s70" % STR[9])
        stamp(7)
        a("s_waitcnt vmcnt(15)")
        stamp(10)
    a.label("L_kdone"); a.forget()
    a(f"""
    v_lshlrev_b32 v{vVo}, 11, v{g}
    v_lshl_add_u32 v{vVo}, v{n}, 4, v{vVo}
    s_and_b32 s{sT1}, s{sKT}, 4096
    v_xor_b32 v{vVo}, s{sT1}, v{vVo}
    s_andn2_b32 s{sVG}, s{sKT}, 4096
    s_xor_b32 s{sVG+1}, s{sVG}, 8192
    """)
    for idx in range(NPRE): vload(idx)
    a(f"""
    s_mov_b32 s{sC}, {f32(1.4426950408889634/16)}
    s_movk_i32 s{s3584}, 3584
    s_lshr_b32 s{sRole}, s{sW}, 2
    s_lshl_b32 s{sT0}, s{sH}, 3
    s_add_u32 s{sT0}, s{sT0}, s{sS}
    s_mul_i32 s{sT0}, s{sT0}, {32*896}
    s_lshl_b32 s{sT1}, s{sHF}, 3
    s_add_u32 s{sT1}, s{sT1}, s{sS}
    s_mul_i32 s{sT1}, s{sT1}, {16*896}
    s_mul_i32 s{sT1}, s{sT1}, s{sFF}
    s_cmp_eq_u32 s{sRole}, 1
    s_cselect_b32 s{sT0}, s{sT0}, s{sT1}
    s_cselect_b32 s{sT2}, s24, s32
    s_cselect_b32 s{sT3}, s25, s33
    s_add_u32 s{sWB}, s{sT2}, s{sT0}
    s_addc_u32 s{sWB+1}, s{sT3}, 0
    s_mov_b32 s{sWB+2}, 28672
    s_mov_b32 s{sWB+3}, 0x00020000
    s_lshl_b32 s{sT0}, s{sFF}, 1
    s_cmp_eq_u32 s{sRole}, 2
    s_cselect_b32 s{sRole}, s{sT0}, s{sRole}
    v_and_b32 v{vT}, 8, v{vL}
    v_lshlrev_b32 v{vT}, 3, v{vT}
    v_lshl_add_u32 v{vT}, v{g}, 4, v{vT}
    v_mul_u32_u24 v{vKo}, 7168, v{g}
    v_lshl_add_u32 v{vKo}, v{n}, 4, v{vKo}
    s_and_b32 s{sT0}, s{sW}, 3
    s_lshl_b32 s{sT1}, s{sT0}, 8
    v_add_u32 v{vKo}, s{sT1}, v{vKo}
    s_cmp_eq_u32 s{sT0}, 3
    s_cselect_b32 s{sT0}, 8, 0
    v_and_b32 v{vS}, s{sT0}, v{vL}
    v_lshl_or_b32 v{vKo}, v{vS}, 27, v{vKo}
    """)
    a(f"""
    s_lshl_b32 s{sRed}, s{sH}, 2
    s_lshr_b32 s{sT0}, s{sS}, 1
    s_add_u32 s{sRed}, s{sRed}, s{sT0}
    s_bitcmp1_b32 s{sS}, 0
    s_cselect_b32 s{sRed}, s{sRed}, 99
    s_cmp_lg_u32 s{sW}, 2
    s_cbranch_scc1 L_noz
    v_mov_b32 v{vS}, 0
    v_mov_b32 v{vS+1}, 0
    v_mov_b32 v{vS+2}, 0
    v_mov_b32 v{vS+3}, 0
    v_lshlrev_b32 v{vS+4}, 4, v{vL}
    ds_write_b128 v{vS+4}, {R(vS)} offset:{L_YP}
    ds_write_b32 v{vS}, v{vS} offset:{L_CNT}
    """)
    a.label("L_noz")
    if stamps:
        a(f"""
        s_lshl_b32 s{sTSo}, s2, 4
        s_add_u32 s{sTSo}, s{sTSo}, s{sW}
        s_lshl_b32 s{sTSo}, s{sTSo}, 6
        s_add_u32 s{sTSo}, s{sTSo}, {TS_OFF}
        """)
    if amp >= 200:
        a(f"""
        s_lshl_b32 s11, s2, 4
        s_add_u32 s11, s11, s{sW}
        s_cmp_lg_u32 s11, 1
        s_cbranch_scc1 L_nts
        v_mov_b32 v{vQ}, s15
        s_mov_b32 s12, {TS_OFF}
        buffer_store_dword v{vQ}, off, {S(sWS)}, s12 sc1
        """)
        a.label("L_nts")
    stamp(0)
    a("s_waitcnt lgkmcnt(0)")
    a("s_barrier")
    assert NPRE <= 4
    qb = [80, 84, 88, 92]
    for i in range(4): a(f"ds_read_b128 {R(qb[i])}, v{vT} offset:{L_Q+128*i}")
    a(f"s_sub_u32 s{sT0}, s{sRole}, 1")
    a(f"s_waitcnt vmcnt({NPRE})")
    stamp(1)
    acc = [vS, vS + 4, vQ, vQ + 4]
    for i in range(4):
        a(f"s_waitcnt lgkmcnt({3-i})")
        for u in range(4):
            c = "0" if i == 0 else R(acc[u])
            a(f"v_mfma_f32_16x16x32_bf16 {R(acc[u])}, {R(4*(4*u+i))}, {R(qb[i])}, {c}")
    a(f"""
    s_cmp_gt_u32 s{sT0}, 1
    s_cbranch_scc1 L_now
    """)
    for t in range(8):
        so_ = "0" if t < 4 else f"s{s3584}"
        a(f"buffer_load_dwordx4 {R(32+4*t)}, v{vKo}, {S(sWB)}, {so_} offen offset:{896*(t%4)}{WP}")
    a.label("L_now")
    NB2 = NPRE + NMID
    for idx in range(NPRE, NB2): vload(idx)
    a(f"""
    s_cmp_eq_u32 s{sW}, 3
    s_cbranch_scc1 L_ldgate
    """)
    a.label("L_sm")
    a("s_nop 1")
    for r in range(4): a(f"v_permlane32_swap_b32 v{acc[0]+r}, v{acc[1]+r}")
    for r in range(4): a(f"v_permlane32_swap_b32 v{acc[2]+r}, v{acc[3]+r}")
    for r in range(4): a(f"v_add_f32_dpp v{vS+r}, v{acc[1]+r}, v{acc[0]+r} row_ror:8 {DPPF}")
    for r in range(4): a(f"v_add_f32_dpp v{vS+4+r}, v{acc[3]+r}, v{acc[2]+r} row_ror:8 {DPPF}")
    for k in range(0, 8, 2): a(f"v_cvt_pk_bf16_f32 v{vA+k//2}, v{vS+k}, v{vS+k+1}")
    for k in range(4): a(f"v_mov_b32_dpp v{vA+k}, v{vA+k} row_ror:8 row_mask:0xf bank_mask:0xc")
    for k in range(0, 8, 2):
        a(f"v_lshlrev_b32 v{vS+k}, 16, v{vA+k//2}")
        a(f"v_and_b32 v{vS+k+1}, s{sHI}, v{vA+k//2}")
    m, t1, l, mc = vA, vA + 1, vA + 2, vA + 3
    a(f"""
    v_max3_f32 v{m}, v{vS}, v{vS+1}, v{vS+2}
    v_max3_f32 v{t1}, v{vS+3}, v{vS+4}, v{vS+5}
    v_max3_f32 v{m}, v{m}, v{vS+6}, v{vS+7}
    v_max_f32 v{m}, v{m}, v{t1}
    v_mov_b32 v{t1}, v{m}
    v_permlane16_swap_b32 v{m}, v{t1}
    v_max_f32 v{m}, v{m}, v{t1}
    v_mov_b32 v{t1}, v{m}
    v_permlane32_swap_b32 v{m}, v{t1}
    v_max_f32 v{m}, v{m}, v{t1}
    v_mul_f32 v{mc}, s{sC}, v{m}
    """)
    for k in range(8): a(f"v_fma_f32 v{vS+k}, v{vS+k}, s{sC}, -v{mc}")
    for k in range(8): a(f"v_exp_f32 v{vS+k}, v{vS+k}")
    a(f"""
    v_add_f32 v{l}, v{vS}, v{vS+1}
    v_add_f32 v{t1}, v{vS+2}, v{vS+3}
    v_add_f32 v{l}, v{l}, v{vS+4}
    v_add_f32 v{t1}, v{t1}, v{vS+5}
    v_add_f32 v{l}, v{l}, v{vS+6}
    v_add_f32 v{t1}, v{t1}, v{vS+7}
    v_add_f32 v{l}, v{l}, v{t1}
    v_mov_b32 v{t1}, v{l}
    v_permlane16_swap_b32 v{l}, v{t1}
    v_add_f32 v{l}, v{l}, v{t1}
    v_mov_b32 v{t1}, v{l}
    v_permlane32_swap_b32 v{l}, v{t1}
    v_add_f32 v{t1}, v{l}, v{t1}
    s_lshl_b32 s{sT0}, s{sW}, 3
    v_mov_b32 v{vT}, s{sT0}
    ds_write_b64 v{vT}, {R(m,2)} offset:{L_ML}
    v_and_b32 v{vT}, 15, v{vL}
    v_lshlrev_b32 v{vT}, 3, v{vT}
    v_mov_b32 v{l}, 0
    s_waitcnt lgkmcnt(0)
    s_barrier
    ds_read_b64 {R(vO+4,2)}, v{vT} offset:{L_ML}
    ds_read_b32 v{vKo}, v{l} offset:{L_TAG}
    """)
    for idx in range(NB2, 16): vload(idx)
    a("s_waitcnt lgkmcnt(0)")
    a(f"v_readfirstlane_b32 s{sTag}, v{vKo}")
    stamp(2)
    mi, li, M, L = vO + 4, vO + 5, vO, vO + 2
    a(f"v_mov_b32 v{M}, v{mi}")
    for k in (8, 4, 2, 1): a(f"v_max_f32_dpp v{M}, v{M}, v{M} row_ror:{k} {DPPF}")
    a(f"""
    v_sub_f32 v{m}, v{m}, v{M}
    v_mul_f32 v{m}, s{sC}, v{m}
    v_exp_f32 v{m}, v{m}
    s_cmp_eq_u32 s{sW}, 2
    s_cbranch_scc1 L_stat
    """)
    a.label("L_nostat")
    a(f"""
    v_and_b32 v{t1}, 8, v{vL}
    v_cmp_ne_u32 vcc, 0, v{t1}
    v_mov_b32 v{t1}, s{sHI}
    v_cndmask_b32 v{t1}, 0, v{t1}, vcc
    """)
    for k in range(8): a(f"v_mul_f32 v{vS+k}, v{vS+k}, v{m}")
    for k in range(8):
        tt = vA + 4 + (k & 3)
        a(f"v_cvt_pk_bf16_f32 v{tt}, v{vS+k}, v{vS+k}")
        a(f"v_and_b32 v{tt}, v{t1}, v{tt}")
        a(f"v_sub_f32 v{vS+k}, v{vS+k}, v{tt}")
        a(f"v_cvt_pk_bf16_f32 v{vS+k}, v{vS+k}, v{vS+k}")
    for t in range(4):
        ab = vA + 4 * (t & 1)
        for r in range(4): a(f"v_and_b32 v{ab+r}, v{vS+t}, v{vMask+r}")
        a(f"s_waitcnt vmcnt({14-2*t})")
        for hf in range(2):
            c = "0" if t == 0 else R(vO + 4 * hf)
            a(f"v_mfma_f32_16x16x32_bf16 {R(vO+4*hf)}, {R(ab)}, {R(64+4*(2*t+hf))}, {c}")
    stamp(3)
    for t in range(4):
        for r in range(4): a(f"v_and_b32 v{64+4*t+r}, v{vS+4+t}, v{vMask+r}")
    g, n = vA, vA + 1
    vTag = vKo; vSel = vVo
    a(f"""
    v_lshrrev_b32 v{g}, 4, v{vL}
    v_and_b32 v{n}, 15, v{vL}
    s_lshl_b32 s{sT0}, s{sW}, 10
    v_lshrrev_b32 v83, 5, v{vL}
    v_lshlrev_b32 v83, 9, v83
    v_lshl_add_u32 v83, v{n}, 5, v83
    v_and_b32 v{vT}, 16, v{vL}
    v_add3_u32 v83, v83, v{vT}, s{sT0}
    v_and_b32 v82, 31, v{vL}
    v_lshlrev_b32 v82, 2, v82
    v_lshrrev_b32 v81, 5, v{vL}
    v_lshl_add_u32 v81, v81, 13, v82
    s_and_b32 s{sT1}, s{sW}, 7
    s_lshl_b32 s{sT0}, s{sT1}, 7
    v_add_u32 v81, s{sT0}, v81
    v_and_b32 v{vSel}, 3, v{vL}
    v_add_u32 v{vSel}, 0x07060500, v{vSel}
    v_mov_b32 v80, 0
    s_lshl_b32 s{sP0}, s{sBH}, 3
    s_add_u32 s{sP0}, s{sP0}, s{sT1}
    s_lshl_b32 s{sP0}, s{sP0}, 3
    s_add_u32 s{sP0}, s{sP0}, s{sS}
    s_lshl_b32 s{sP0}, s{sP0}, 7
    s_add_u32 s{sP0}, s{sP0}, {OB_OFF}
    s_cmp_eq_u32 s{sRole}, 1
    s_cbranch_scc1 L_mid1
    s_cmp_eq_u32 s{sRole}, 2
    s_cbranch_scc1 L_mid2
    s_cmp_ge_u32 s{sW}, 8
    s_cbranch_scc1 L_mid3
    s_cmp_eq_u32 s{sW}, 3
    s_cbranch_scc1 L_gate
    """)
    a.label("L_pv2"); a.forget()
    for t in range(4):
        a(f"s_waitcnt vmcnt({6-2*t})")
        for hf in range(2):
            a(f"v_mfma_f32_16x16x32_bf16 {R(vO+4*hf)}, {R(64+4*t)}, {R(4*(2*t+hf))}, {R(vO+4*hf)}")
    if ack: stamp(0)
    a(f"s_cmp_lt_u32 s{sW}, 8")
    for r in range(4): a(f"v_permlane32_swap_b32 v{vO+r}, v{vO+4+r}")
    for r in range(4): a(f"v_add_f32 v{vO+r}, v{vO+r}, v{vO+4+r}")
    a(f"""
    ds_write_b128 v83, {R(vO)} offset:{L_OW}
    s_cbranch_scc1 L_low
    {"s_setprio 3" if tp else "s_nop 0"}
    s_waitcnt lgkmcnt(0)
    s_barrier
    """)
    for i in range(4): a(f"ds_read2st64_b32 {R(2*i,2)}, v81 offset0:{L_OW//256+8*i} offset1:{L_OW//256+8*i+4}")
    a(f"""
    s_waitcnt lgkmcnt(2)
    v_add_f32 v0, v0, v1
    v_add_f32 v2, v2, v3
    s_waitcnt lgkmcnt(0)
    v_add_f32 v4, v4, v5
    v_add_f32 v6, v6, v7
    v_add_f32 v0, v0, v2
    v_add_f32 v4, v4, v6
    v_add_f32 v0, v0, v4
    v_mov_b32 v1, v0
    v_permlane32_swap_b32 v0, v1
    v_add_f32 v0, v0, v1
    v_perm_b32 v0, v0, v{vTag}, v{vSel}
    s_mov_b32 exec_hi, 0
    buffer_store_dword v0, v82, {S(sWS)}, s{sP0} offen sc1
    """)
    stamp(4)
    a(f"""
    s_cmp_lt_u32 s{sRed}, 28
    s_cbranch_scc1 L_reduce
    """)
    endpgm()
    a.label("L_low"); a.forget()
    a(f"""
    s_cmp_eq_u32 s{sRole}, 1
    s_cbranch_scc1 L_gemv1
    s_waitcnt lgkmcnt(0)
    s_barrier
    """)
    if xs: endpgm()
    a(f"""
    s_add_u32 s{sT0}, s{sRed}, s{sB}
    s_add_u32 s{sT0}, s{sT0}, s{sW}
    s_max_u32 s{sT1}, s{sRed}, 28
    s_cmp_lg_u32 s{sT1}, s{sRed}
    s_cselect_b32 s{sT0}, 99, s{sT0}
    s_cmp_eq_u32 s{sT0}, 28
    s_cbranch_scc1 L_epoch
    """)
    endpgm()

    a.label("L_gemv1"); a.forget()
    cf = 123
    def oload(): a(f"buffer_load_dwordx4 {R(0)}, v122, {S(sWS)}, s{sP1} offen sc1")
    a(f"s_mov_b32 s{sCnt}, 0")
    a.label("L_stchk")
    a(f"""
    v_cmp_ne_u32 vcc, s{sTag}, v85
    v_cmp_ne_u32 {S(sM,2)}, s{sTag}, v87
    s_or_b64 vcc, vcc, {S(sM,2)}
    s_cbranch_vccz L_stok
    s_add_u32 s{sCnt}, s{sCnt}, 1
    s_cmp_gt_u32 s{sCnt}, {LIM}
    s_cbranch_scc1 L_stok
    buffer_load_dwordx4 {R(84)}, v89, {S(sWS)}, s{sT3} offen sc1
    s_waitcnt vmcnt(0)
    s_branch L_stchk
    """)
    a.label("L_stok"); a.forget()
    M = vA
    a(f"v_mov_b32 v{M}, v84")
    for d in Q8: a(f"v_max_f32_dpp v{M}, v{M}, v{M} {d} {DPPF}")
    a(f"""
    v_sub_f32 v{cf}, v84, v{M}
    v_mul_f32 v{cf}, s{sC}, v{cf}
    v_exp_f32 v{cf}, v{cf}
    v_mul_f32 v{M}, v{cf}, v86
    """)
    for d in Q8: a(f"v_add_f32_dpp v{M}, v{M}, v{M} {d} {DPPF}")
    a(f"""
    v_rcp_f32 v{M}, v{M}
    v_mul_f32 v{cf}, v{cf}, v{M}
    s_mov_b32 s{sCnt}, 0
    s_cmp_eq_u32 s{sFF}, 0
    s_waitcnt lgkmcnt(0)
    s_barrier
    """)
    if xs: endpgm()
    oload()
    a(f"""
    ds_read_b64 {R(90,2)}, v80 offset:{L_GG}
    s_cbranch_scc1 L_nof
    ds_read_b128 {R(92)}, v120 offset:{L_F}
    """)
    a.label("L_nof")
    a("s_waitcnt lgkmcnt(0)")
    for r in range(4): a(f"v_mul_f32 v{92+r}, v{92+r}, v91")
    a("s_waitcnt vmcnt(0)")
    a.label("L_ochk"); a.forget()
    tag_chk(0, 4, 5)
    a(f"""
    s_cbranch_vccz L_ook
    s_mov_b64 exec, vcc
    """)
    if osl: a(f"s_sleep {osl}")
    oload()
    a(f"""
    s_mov_b64 exec, -1
    s_add_u32 s{sCnt}, s{sCnt}, 1
    s_waitcnt vmcnt({pipe})
    s_cmp_gt_u32 s{sCnt}, {LIM}
    s_cbranch_scc0 L_ochk
    """)
    a.label("L_ook"); a.forget()
    stamp(5)
    for r in range(4): a(f"v_mul_f32 v{24+r}, v{r}, v{cf}")
    for d in Q8:
        for r in range(4): a(f"v_add_f32_dpp v{24+r}, v{24+r}, v{24+r} {d} {DPPF}")
    for r in range(4): a(f"v_cvt_pk_bf16_f32 v{24+r}, v{24+r}, v{24+r}")
    for r in range(4): a(f"v_mov_b32_dpp v{28+r}, v{24+r} row_ror:8 {DPPF}")
    for t in range(8):
        ab = 8 + 4 * (t % 4)
        for r in range(4): a(f"v_and_b32 v{ab+r}, v{24+t}, v{vMask+r}")
        c = "0" if t == 0 else R(vO)
        a(f"v_mfma_f32_16x16x32_bf16 {R(vO)}, {R(ab)}, {R(32+4*t)}, {c}")
    a("s_mov_b32 exec_hi, 0")
    for r in range(4): a(f"v_fma_f32 v{vO+r}, v{vO+r}, v90, v{92+r}")
    tag_put(vO, vTag)
    a(f"buffer_store_dwordx4 {R(vO)}, v88, {S(sWS)}, s{sP2} offen sc1")
    stamp(6)
    if ack:
        a("s_waitcnt vmcnt(0)")
        stamp(9)
    endpgm()

    a.label("L_reduce"); a.forget()
    def yload(base=8): a(f"buffer_load_dwordx4 {R(base)}, v84, {S(sWS)}, s{sP1} offen sc1")
    a("s_mov_b64 exec, -1")
    if tp: a("s_setprio 0")
    yload()
    a(f"s_mov_b32 s{sCnt}, 0")
    a.label("L_ypoll"); a.forget()
    a("s_waitcnt vmcnt(0)")
    tag_chk(8, 4, 5)
    a(f"""
    s_cbranch_vccz L_yok
    s_mov_b64 exec, vcc
    """)
    if psl: a(f"s_sleep {psl}")
    yload()
    a(f"""
    s_mov_b64 exec, -1
    s_add_u32 s{sCnt}, s{sCnt}, 1
    s_cmp_gt_u32 s{sCnt}, {LIM}
    s_cbranch_scc0 L_ypoll
    s_waitcnt vmcnt(0)
    """)
    a.label("L_yok"); a.forget()
    stamp(7)
    allred4(8, 0, ROW16)
    a(f"""
    s_mov_b64 exec, {S(sM,2)}
    ds_write_b128 v85, {R(8)} offset:{L_YP}
    s_mov_b64 exec, 1
    ds_add_rtn_u32 v4, v80, v86 offset:{L_CNT}
    s_mov_b64 exec, -1
    ds_read_b128 {R(12)}, v84 offset:{L_YP}
    s_waitcnt lgkmcnt(1)
    v_readfirstlane_b32 s{sT0}, v4
    s_cmp_lg_u32 s{sT0}, 7
    s_cbranch_scc1 L_yend
    s_waitcnt lgkmcnt(0)
    """)
    allred4(12, 0, ROW16)
    a(f"""
    v_cvt_pk_bf16_f32 v12, v12, v13
    v_cvt_pk_bf16_f32 v13, v14, v15
    s_mov_b64 exec, {S(sM,2)}
    global_store_dwordx2 v90, {R(12,2)}, s[38:39] {opol}
    """)
    stamp(8)
    a.label("L_yend")
    endpgm()
    a.label("L_epoch"); a.forget()
    a(f"""
    s_mov_b32 s{sCnt}, 0
    v_lshlrev_b32 v84, 4, v{vL}
    s_movk_i32 s{sT3}, {ST_OFF}
    """)
    a.label("L_fchk")
    for i in range(4):
        a(f"buffer_load_dwordx4 {R(32+4*i)}, v84, {S(sWS)}, s{sT3} offen offset:{1024*i} sc1")
    a("s_waitcnt vmcnt(0)")
    for i in range(4): a(f"v_xor_b32 v{33+4*i}, s{sTag}, v{33+4*i}")
    a(f"""
    v_or3_b32 v33, v33, v37, v41
    v_or_b32 v33, v33, v45
    v_cmp_ne_u32 vcc, 0, v33
    s_cbranch_vccz L_fok
    s_add_u32 s{sCnt}, s{sCnt}, 1
    s_cmp_gt_u32 s{sCnt}, {LIM}
    s_cbranch_scc0 L_fchk
    """)
    a.label("L_fok"); a.forget()
    a(f"""
    s_mov_b64 exec, 1
    buffer_store_dword v{vTag}, off, {S(sWS)}, 0 offset:{EP_OFF} sc1
    """)
    endpgm()

    a.label("L_stat"); a.forget()
    mi, li, M, L = vO + 4, vO + 5, vO, vO + 2
    a(f"""
    v_sub_f32 v{mi}, v{mi}, v{M}
    v_mul_f32 v{mi}, s{sC}, v{mi}
    v_exp_f32 v{mi}, v{mi}
    v_mul_f32 v{L}, v{li}, v{mi}
    """)
    for k in (8, 4, 2, 1): a(f"v_add_f32_dpp v{L}, v{L}, v{L} row_ror:{k} {DPPF}")
    a(f"""
    v_mov_b32 v{M+1}, s{sTag}
    v_mov_b32 v{L+1}, s{sTag}
    s_lshl_b32 s{sT0}, s{sBH}, 3
    s_add_u32 s{sT0}, s{sT0}, s{sS}
    s_lshl_b32 s{sT0}, s{sT0}, 4
    s_add_u32 s{sT0}, s{sT0}, {ST_OFF}
    s_mov_b64 exec, 1
    buffer_store_dwordx4 {R(M)}, off, {S(sWS)}, s{sT0} sc1
    s_mov_b64 exec, -1
    s_branch L_nostat
    """)
    a.label("L_mid1"); a.forget()
    a(f"""
    v_and_b32 v{vT}, 7, v{vL}
    v_lshlrev_b32 v89, 4, v{vT}
    s_lshl_b32 s{sT3}, s{sBH}, 7
    s_add_u32 s{sT3}, s{sT3}, {ST_OFF}
    v_lshlrev_b32 v122, 7, v{vT}
    v_lshl_add_u32 v122, v{g}, 5, v122
    v_bfe_u32 v{vT}, v{vL}, 3, 1
    v_lshl_add_u32 v122, v{vT}, 4, v122
    s_lshl_b32 s{sP1}, s{sBH}, 3
    s_add_u32 s{sP1}, s{sP1}, s{sS}
    s_lshl_b32 s{sP1}, s{sP1}, 10
    s_add_u32 s{sP1}, s{sP1}, {OB_OFF}
    buffer_load_dwordx4 {R(84)}, v89, {S(sWS)}, s{sT3} offen sc1
    s_and_b32 s{sT0}, s{sW}, 3
    s_cmp_lg_u32 s{sT0}, 0
    s_cbranch_scc1 L_mid1b
    buffer_load_dwordx4 {R(vS)}, v122, {S(sWS)}, s{sP1} offen sc1
    """)
    a.label("L_mid1b")
    a(f"""
    s_lshl_b32 s{sT1}, s{sT0}, 10
    v_lshlrev_b32 v120, 4, v{vL}
    v_add_u32 v120, s{sT1}, v120
    v_lshrrev_b32 v88, 1, v{n}
    v_mul_u32_u24 v88, {YST}, v88
    v_and_b32 v{vT}, 1, v{n}
    v_lshl_add_u32 v88, v{vT}, 5, v88
    v_and_b32 v{vT}, 16, v{vL}
    v_add_u32 v88, v88, v{vT}
    s_mul_i32 s{sP2}, s{sB}, 28
    s_lshl_b32 s{sT1}, s{sT0}, 3
    s_add_u32 s{sP2}, s{sP2}, s{sT1}
    s_mul_i32 s{sP2}, s{sP2}, {YST}
    s_lshl_b32 s{sT1}, s{sH}, 3
    s_add_u32 s{sT1}, s{sT1}, s{sS}
    s_lshl_b32 s{sT1}, s{sT1}, {YSH}
    s_add_u32 s{sP2}, s{sP2}, s{sT1}
    s_add_u32 s{sP2}, s{sP2}, {YB_OFF}
    s_cmp_eq_u32 s{sT0}, 3
    s_cselect_b32 s{sT0}, 8, 0
    v_and_b32 v{vT}, s{sT0}, v{vL}
    v_lshl_or_b32 v88, v{vT}, 27, v88
    v_mov_b32 v92, 0
    v_mov_b32 v93, 0
    v_mov_b32 v94, 0
    v_mov_b32 v95, 0
    s_branch L_pv2
    """)
    a.label("L_mid2"); a.forget()
    a(f"""
    v_lshlrev_b32 v{vT}, 5, v{g}
    ds_read_b128 {R(84)}, v{vT} offset:{L_R2}
    ds_read_b128 {R(88)}, v{vT} offset:{L_R2+16}
    s_waitcnt lgkmcnt(0)
    """)
    for t in range(8): a(f"v_cvt_pk_bf16_f32 v{84+t}, v{84+t}, v{84+t}")
    for t in range(8):
        ab = vA + 4 * (t & 1)
        for r in range(4): a(f"v_and_b32 v{ab+r}, v{84+t}, v{vMask+r}")
        c = "0" if t == 0 else R(92)
        a(f"v_mfma_f32_16x16x32_bf16 {R(92)}, {R(ab)}, {R(32+4*t)}, {c}")
    a(f"""
    s_and_b32 s{sT0}, s{sW}, 3
    s_lshl_b32 s{sT1}, s{sT0}, 10
    v_lshlrev_b32 v{vT}, 4, v{vL}
    v_add_u32 v{vT}, s{sT1}, v{vT}
    ds_write_b128 v{vT}, {R(92)} offset:{L_F}
    s_branch L_pv2
    """)
    a.label("L_mid3"); a.forget()
    assert YS == 64
    a(f"""
    s_cmp_ge_u32 s{sRed}, 28
    s_cbranch_scc1 L_pv2
    v_lshlrev_b32 v84, 6, v{n}
    v_lshl_add_u32 v84, v{g}, 4, v84
    s_mov_b32 s{sM}, 0x00010001
    s_mov_b32 s{sM+1}, 0x00010001
    s_and_b32 s{sT1}, s{sW}, 7
    s_lshl_b32 s{sT0}, s{sT1}, 6
    v_lshlrev_b32 v85, 4, v{g}
    v_add_u32 v85, s{sT0}, v85
    v_mov_b32 v86, 1
    s_lshl_b32 s{sT0}, s{sRed}, 5
    s_mul_i32 s{sT2}, s{sB}, 896
    s_add_u32 s{sT0}, s{sT0}, s{sT2}
    v_lshlrev_b32 v90, 3, v{g}
    v_add_u32 v90, s{sT0}, v90
    s_mul_i32 s{sP1}, s{sB}, 28
    s_add_u32 s{sP1}, s{sP1}, s{sRed}
    s_mul_i32 s{sP1}, s{sP1}, {YST}
    s_lshl_b32 s{sT1}, s{sT1}, 10
    s_add_u32 s{sP1}, s{sP1}, s{sT1}
    s_add_u32 s{sP1}, s{sP1}, {YB_OFF}
    """)
    if ywarm: yload(32)
    a("s_branch L_pv2")
    a.label("L_gate"); a.forget()
    xa, ga = 32, 36
    a("v_mov_b32 v44, 0")
    for r in range(4):
        a(f"""
        v_lshlrev_b32 v40, 16, v{xa+r}
        v_and_b32 v41, s{sHI}, v{xa+r}
        v_lshlrev_b32 v42, 16, v{ga+r}
        v_and_b32 v43, s{sHI}, v{ga+r}
        v_mul_f32 v40, v40, v42
        v_mul_f32 v41, v41, v43
        v_cvt_pk_bf16_f32 v40, v40, v41
        v_lshlrev_b32 v41, 16, v40
        v_and_b32 v40, s{sHI}, v40
        v_add_f32 v44, v44, v41
        v_add_f32 v44, v44, v40
        """)
    for k in (8, 4, 2, 1): a(f"v_add_f32_dpp v44, v44, v44 row_ror:{k} {DPPF}")
    a(f"""
    v_mov_b32 v45, v44
    v_permlane16_swap_b32 v44, v45
    v_add_f32 v44, v44, v45
    v_mov_b32 v45, v44
    v_permlane32_swap_b32 v44, v45
    v_add_f32 v44, v44, v45
    v_cvt_pk_bf16_f32 v44, v44, v44
    v_and_b32 v44, s{sHI}, v44
    v_mul_f32 v44, {f32(-1.4426950408889634)}, v44
    v_exp_f32 v44, v44
    v_add_f32 v44, 1.0, v44
    v_rcp_f32 v44, v44
    v_cvt_pk_bf16_f32 v44, v44, v44
    v_and_b32 v44, s{sHI}, v44
    v_sub_f32 v45, 1.0, v44
    v_cvt_pk_bf16_f32 v45, v45, v45
    v_and_b32 v45, s{sHI}, v45
    ds_write_b64 v80, {R(44,2)} offset:{L_GG}
    s_cmp_ge_u32 s{sRed}, 28
    s_cbranch_scc1 L_pv2
    v_lshlrev_b32 v40, 16, v46
    v_and_b32 v41, s{sHI}, v46
    v_lshlrev_b32 v42, 16, v47
    v_and_b32 v43, s{sHI}, v47
    v_mul_f32 v40, v40, v45
    v_mul_f32 v41, v41, v45
    v_mul_f32 v42, v42, v45
    v_mul_f32 v43, v43, v45
    v_lshlrev_b32 v{vT}, 4, v{g}
    ds_write_b128 v{vT}, {R(40)} offset:{L_YP+512}
    s_branch L_pv2
    """)
    a.label("L_ldgate"); a.forget()
    for r in range(8): a(f"v_mov_b32 v{32+r}, 0")
    a(f"""
    v_lshlrev_b32 v{vA+1}, 4, v{vL}
    s_mul_i32 s{sT0}, s{sB}, 896
    v_add_u32 v{vA}, s{sT0}, v{vA+1}
    s_min_u32 s{sT0}, s{sRed}, 27
    s_lshl_b32 s{sT0}, s{sT0}, 5
    v_lshrrev_b32 v{vA+2}, 4, v{vL}
    v_lshlrev_b32 v{vA+2}, 3, v{vA+2}
    v_add_u32 v{vA+2}, s{sT0}, v{vA+2}
    s_mov_b32 exec_hi, 0x00ffffff
    global_load_dwordx4 {R(32)}, v{vA}, s[16:17]
    global_load_dwordx4 {R(36)}, v{vA+1}, s[36:37]
    s_mov_b64 exec, -1
    global_load_dwordx2 {R(46,2)}, v{vA+2}, s[34:35]
    s_branch L_sm
    """)

    n, g = 120, 121
    a.label("L_stage1"); a.forget()
    SO = [None, 60, 61, 62, 64, 65, 66, 67, 69, 70, 71, 76, 77, 78]
    sStr = sP1
    a(f"""
    s_movk_i32 s{sStr}, 3584
    s_mov_b32 s{sP0}, {SH_OFF}
    s_cmp_eq_u32 s{sW}, 0
    s_cselect_b32 s{sStr}, 8192, s{sStr}
    s_cselect_b32 s{sP2}, 9, 8
    s_cselect_b32 s{sT3}, s{sH}, s{sHF}
    s_cselect_b32 s{sP0}, {SQ_OFF}, s{sP0}
    s_mul_i32 s{sCnt}, s{sStr}, 448
    s_lshr_b32 s{sT1}, s{sJJ}, 1
    s_mul_i32 s{sT2}, s{sT1}, 56
    s_mul_i32 s{sT2}, s{sT2}, s{sStr}
    s_lshl_b32 s{sT3}, s{sT3}, s{sP2}
    s_add_u32 s{sT2}, s{sT2}, s{sT3}
    s_and_b32 s{sT3}, s{sJJ}, 1
    s_lshl_b32 s{sT0}, s{sT3}, 8
    s_add_u32 s{sT2}, s{sT2}, s{sT0}
    s_sub_u32 s{sWA+2}, s{sCnt}, s{sT2}
    s_mul_i32 s{sT0}, s{sStr}, 14
    v_mul_u32_u24 v{vT}, s{sT0}, v{g}
    v_lshl_add_u32 v{vT}, v{n}, 4, v{vT}
    s_mov_b32 s{SO[1]}, s{sStr}
    """)
    for t in range(2, 14): a(f"s_add_u32 s{SO[t]}, s{SO[t-1]}, s{sStr}")
    a(f"""
    v_lshrrev_b32 v{vS}, 3, v{n}
    v_mul_u32_u24 v{vS}, 896, v{vS}
    v_mad_u32_u24 v{vS}, v{g}, 28, v{vS}
    s_mul_i32 s{sT0}, s{sT1}, 112
    v_add_u32 v{vS}, s{sT0}, v{vS}
    v_mov_b32 v{vS+1}, 0
    s_cmp_eq_u32 s{sW}, 0
    s_waitcnt lgkmcnt(0)
    s_cselect_b32 s{sWA}, s22, s28
    s_cselect_b32 s{sWA+1}, s23, s29
    s_add_u32 s{sWA}, s{sWA}, s{sT2}
    s_addc_u32 s{sWA+1}, s{sWA+1}, 0
    """)
    for t in range(14):
        a(f"buffer_load_dwordx4 {R(4*t)}, v{vT}, {S(sWA)}, {('s%d' % SO[t]) if t else '0'} offen{WQP}")
    a(f"""
    global_load_dwordx4 {R(56)}, v{vS}, s[16:17]
    global_load_dwordx3 {R(60,3)}, v{vS}, s[16:17] offset:16
    global_load_dword v63, v{vS+1}, s[42:43] offset:{EP_OFF} sc1
    {"s_barrier" if b0 else "s_nop 0"}
    s_add_u32 s{sK}, s18, s{sKV}
    s_addc_u32 s{sK+1}, s19, 0
    """)
    setup2()
    a(f"""
    v_lshrrev_b32 v{vT}, 1, v{g}
    v_lshlrev_b32 v{vT}, 13, v{vT}
    v_lshl_add_u32 v{vT}, v{n}, 5, v{vT}
    v_and_b32 v{vS}, 16, v{vL}
    v_add_u32 v{vT}, v{vT}, v{vS}
    s_lshl_b32 s{sT0}, s{sH}, 14
    s_add_u32 s{sP0}, s{sP0}, s{sT0}
    s_lshl_b32 s{sT0}, s{sB}, 13
    s_add_u32 s{sP1}, s{sP0}, s{sT0}
    s_lshl_b32 s{sT2}, s{sT1}, 10
    s_add_u32 s{sP0}, s{sP0}, s{sT2}
    s_lshl_b32 s{sT2}, s{sT3}, 9
    s_add_u32 s{sP0}, s{sP0}, s{sT2}
    s_mov_b32 s{sT2}, 0x01000100
    s_mov_b32 s{sT3}, 0x03020302
    v_lshlrev_b32 v{vQ+1}, 4, v{vL}
    s_add_u32 s{sP2}, s{sP1}, 4096
    s_waitcnt vmcnt(0)
    v_and_b32 v{vQ}, 0x7f7f7f7f, v63
    v_add_u32 v{vQ}, 0x671b3501, v{vQ}
    v_xor_b32 v63, 0xe79b3501, v63
    v_and_b32 v63, 0x80808080, v63
    v_xor_b32 v{vQ}, v{vQ}, v63
    v_mov_b32 v63, 0
    v_readfirstlane_b32 s{sTag}, v{vQ}
    ds_write_b32 v63, v{vQ} offset:{L_TAG}
    """)
    stamp(5)
    for t in range(14):
        ab = 112 if t & 1 else vA
        a(f"v_perm_b32 v{vS+4}, v{56+t//2}, v{56+t//2}, s{sT3 if t & 1 else sT2}")
        for r in range(4): a(f"v_and_b32 v{ab+r}, v{vS+4}, v{vMask+r}")
        c = "0" if t == 0 else R(vS)
        a(f"v_mfma_f32_16x16x32_bf16 {R(vS)}, {R(ab)}, {R(4*t)}, {c}")
    a(f"s_cmp_eq_u32 s{sW}, 1")
    tag_put(vS, vQ)
    a(f"buffer_store_dwordx4 {R(vS)}, v{vT}, {S(sWS)}, s{sP0} offen sc1")
    stamp(6)
    a("s_cbranch_scc1 L_hgather")
    def qload(i): a(f"buffer_load_dwordx4 {R(64+4*i)}, v{vQ+1}, {S(sWS)}, s{sP1 if i < 4 else sP2} offen offset:{1024*(i%4)} sc1")
    for f in range(KS): kload(f)
    for i in range(8): qload(i)
    poll_many("L_qp", [(64+4*i, (lambda i=i: qload(i))) for i in range(8)], vQ + 4, vQ + 5)
    for f in range(KS, 16): kload(f)
    for i in range(1, 8):
        for r in range(4): a(f"v_add_f32 v{64+r}, v{64+r}, v{64+4*i+r}")
    a(f"""
    v_cvt_pk_bf16_f32 v{vQ}, v64, v65
    v_cvt_pk_bf16_f32 v{vQ+1}, v66, v67
    v_lshlrev_b32 v{vT}, 3, v{vL}
    ds_write_b64 v{vT}, {R(vQ,2)} offset:{L_Q}
    """)
    stamp(10)
    a("s_branch L_kdone")
    a.label("L_hgather"); a.forget()
    for f in range(16): kload(f)
    h = vS
    a(f"""
    v_and_b32 v{vA}, 7, v{vL}
    v_lshrrev_b32 v{vQ}, 3, v{vL}
    v_lshlrev_b32 v{vQ}, 10, v{vQ}
    v_lshl_add_u32 v{vQ}, v{vA}, 4, v{vQ}
    s_lshl_b32 s{sT0}, s{sS}, 6
    s_add_u32 s{sP1}, s{sP1}, s{sT0}
    s_lshl_b32 s{sT1}, s{sHF}, 8
    s_lshl_b32 s{sT0}, s{sS}, 5
    s_add_u32 s{sT1}, s{sT1}, s{sT0}
    v_lshlrev_b32 v{vT}, 3, v{vA}
    v_add_u32 v{vT}, s{sT1}, v{vT}
    global_load_dwordx2 {R(118,2)}, v{vT}, s[30:31]
    """)
    def hload(): a(f"buffer_load_dwordx4 {R(h)}, v{vQ}, {S(sWS)}, s{sP1} offen sc1")
    hload()
    poll_many("L_hp", [(h, hload)], vQ + 4, vQ + 5)
    allred4(h, h + 4, ['ror:8', 'p16', 'p32'])
    rnd2(h, h + 1, vQ + 4); rnd2(h + 2, h + 3, vQ + 5)
    a(f"""
    v_lshlrev_b32 v{h+4}, 16, v118
    v_and_b32 v{h+5}, s{sHI}, v118
    v_lshlrev_b32 v{h+6}, 16, v119
    v_and_b32 v{h+7}, s{sHI}, v119
    """)
    for r in range(4): a(f"v_add_f32 v{h+r}, v{h+r}, v{h+4+r}")
    rnd2(h, h + 1, vQ + 4); rnd2(h + 2, h + 3, vQ + 5)
    for r in range(4): a(f"v_max_f32 v{h+r}, 0, v{h+r}")
    for r in range(4): a(f"v_mul_f32 v{h+r}, v{h+r}, v{h+r}")
    a(f"""
    v_lshlrev_b32 v{vT}, 4, v{vA}
    ds_write_b128 v{vT}, {R(h)} offset:{L_R2}
    s_nop 1
    s_branch L_kdone
    """)
    if stamps:
        a.label("L_stampout"); a.forget()
        if amp >= 0:
            if amp == 99: a("s_movk_i32 s11, 10000")
            elif amp >= 200:
                a(f"""
                s_cmp_lg_u32 s2, {amp-200}
                s_cbranch_scc1 L_end
                s_cmp_lg_u32 s{sW}, 1
                s_cbranch_scc1 L_end
                s_mov_b64 exec, -1
                s_mov_b32 s12, {TS_OFF}
                buffer_load_dword v0, off, {S(sWS)}, s12 sc1
                s_waitcnt vmcnt(0)
                v_readfirstlane_b32 s11, v0
                s_sub_u32 s11, s15, s11
                s_add_u32 s11, s11, 100
                s_min_u32 s11, s11, 1000
                s_mul_i32 s11, s11, 50
                """)
            else:
                a("s_cmp_eq_u32 s%d, 0" % STR[amp])
                a("s_cbranch_scc1 L_end")
                a("s_sub_u32 s11, s%d, s15" % STR[amp])
                a("s_min_u32 s11, s11, 20000")
                a("s_lshl_b32 s11, s11, 3")
            a.label("L_amp")
            a("s_sleep 8")
            a("s_memrealtime s[%d:%d]" % (sTS, sTS + 1))
            a("s_waitcnt lgkmcnt(0)")
            a("s_sub_u32 s12, s%d, s15" % sTS)
            a("s_cmp_lt_u32 s12, s11")
            a("s_cbranch_scc1 L_amp")
        else:
            a("s_mov_b64 exec, -1")
            a("s_waitcnt vmcnt(0)")
            for i, r in enumerate(STR): a("v_writelane_b32 v0, s%d, %d" % (r, i))
            a(f"v_lshlrev_b32 v1, 2, v{vL}")
            a("s_mov_b64 exec, 0xfff")
            a("buffer_store_dword v0, v1, %s, s%d offen" % (S(sWS), sTSo))
    a.label("L_end")
    a("s_endpgm")
    if 2 <= lst <= 6:
        a.raw(".globl tiny_kernel\n.p2align 8\n.type tiny_kernel,@function\ntiny_kernel:\n    s_endpgm")
    a.raw('.section .rodata,"a"')
    if 2 <= lst <= 6:
        a.raw(".p2align 6\n.amdhsa_kernel tiny_kernel\n  .amdhsa_next_free_vgpr NV\n  .amdhsa_next_free_sgpr 16\n  .amdhsa_accum_offset NV\n  .amdhsa_group_segment_fixed_size 0\n  .amdhsa_kernarg_size 112\n  .amdhsa_user_sgpr_count 2\n  .amdhsa_user_sgpr_kernarg_segment_ptr 1\n  .amdhsa_system_sgpr_workgroup_id_x 1\n.end_amdhsa_kernel".replace("NV", {4: "128", 5: "256"}.get(lst, "8")))
    a.raw(".p2align 6")
    a.raw(".amdhsa_kernel %s_kernel" % NAME)
    a.raw("  .amdhsa_next_free_vgpr 128")
    a.raw("  .amdhsa_next_free_sgpr 102")
    a.raw("  .amdhsa_accum_offset 128")
    a.raw("  .amdhsa_group_segment_fixed_size 0")
    a.raw("  .amdhsa_kernarg_size 112")
    a.raw("  .amdhsa_user_sgpr_count 2")
    a.raw("  .amdhsa_user_sgpr_kernarg_segment_ptr 1")
    a.raw("  .amdhsa_system_sgpr_workgroup_id_x 1")
    a.raw("  .amdhsa_float_denorm_mode_32 3")
    a.raw(".end_amdhsa_kernel")
    return a.text()

if __name__ == "__main__":
    import argparse, inspect
    ap = argparse.ArgumentParser()
    ap.add_argument("-o", default="cdna_kernels/%s.s" % NAME)
    sig = inspect.signature(gen)
    for k, p in sig.parameters.items():
        if isinstance(p.default, bool): ap.add_argument("--" + k, action="store_true")
        elif isinstance(p.default, int): ap.add_argument("--" + k, type=int, default=p.default)
        else: ap.add_argument("--" + k, default=p.default)
    x = vars(ap.parse_args()); o = x.pop("o")
    x = {k: ("" if v == "none" else v) for k, v in x.items()}
    open(o, "w").write(gen(**x))
```

```python
import sys, struct
from asmlib import Asm

NAME = "gated_mix__mha_block_cached__dense_activation_squared_relu__decode"
def f32(x): return "0x%08x" % struct.unpack('<I', struct.pack('<f', x))[0]

def gen(kv="nt", wq="", w2="", stamps=False, NPRE=2, NMID=2, swz=1, amp=-1, xs=0, wmap=4, pipe=0, fpar=0, red=2, ypad=0, yskew=256, KS=16, early=0, pf=0, cpf=0, lst=0, BL=0, b0=0, ack=0, psl=0, ywarm=1, hx=0, tp=1, osl=0, opol="", hsw=0, wl=0, wpre=8):
    stamps = stamps or amp >= 0
    a = Asm()
    KV = (" " + kv) if kv else ""
    WQP = (" " + wq) if wq else ""
    WP = (" " + w2) if w2 else ""
    YS = 128 if ypad else 64
    YSH = 7 if ypad else 6
    YST = 128 * YS + yskew
    EP_OFF = 0; ST_OFF = 4096; OB_OFF = 8192; SQ_OFF = OB_OFF + 262144; SH_OFF = SQ_OFF + 262144
    YB_OFF = SH_OFF + 262144; TS_OFF = 1835008; WS_USED = 2097152
    assert YB_OFF + 56 * YST <= TS_OFF
    L_Q = 0; L_ML = 512; L_R2 = 640; L_GG = 768; L_TAG = 776; L_CNT = 780; L_YP = 1024; L_F = 1024; L_OW = 5120; OWS = 1024; LDS = L_OW + 16 * OWS
    sCk0, sCk1, sH, sB, sS, sJJ, sBH, sW = 3, 4, 5, 6, 7, 8, 9, 10
    sT0, sT1, sT2, sT3 = 11, 12, 13, 14
    sK, sV, sWS, sWA, sWB = 44, 48, 52, 56, 64
    sSel = [40, 41, 60, 61]; sE = 62; sFF = 63; sHF = 1; sMK = 0
    sKV = 68
    sKT = 72; sVG = 76; sC = 78; sHI = 79; sM = 80
    sP0, sP1, sP2 = 82, 83, 84
    sRole = 85; sRed = 86; sCnt = 87
    sTS = 88; sTSo = 90; s3584 = 91; sTag = 92
    vMask = 96; vS = 100; vQ = 108; vO = 108; vA = 116; vKo = 124; vVo = 125; vL = 126; vT = 127
    LIM = 1 << 23
    def R(b, n=4): return "v[%d:%d]" % (b, b + n - 1)
    def S(b, n=4): return "s[%d:%d]" % (b, b + n - 1)
    STR = [26, 27, 93, 94, 95, 96, 97, 98, 99, 100, 101, 15]
    def stamp(idx):
        if not stamps: return
        a("s_memrealtime s[%d:%d]" % (sTS, sTS + 1))
        a("s_waitcnt lgkmcnt(0)")
        a("s_mov_b32 s%d, s%d" % (STR[idx], sTS))
    def endpgm():
        if stamps: a("s_branch L_stampout")
        else: a("s_endpgm")
    DPPF = "row_mask:0xf bank_mask:0xf"
    ROW16 = ['ror:8', 'ror:4', 'ror:2', 'ror:1']
    Q8 = ("quad_perm:[1,0,3,2]", "quad_perm:[2,3,0,1]", "row_half_mirror")
    def kload(f):
        u, i = f >> 2, f & 3
        a(f"buffer_load_dwordx4 {R(4*f)}, v{vKo}, {S(sK)}, s{sKT+u} offen offset:{128*i}{KV}")
    def vload(idx):
        G, t, hf = idx >> 3, (idx >> 1) & 3, idx & 1
        base = 64 if G == 0 else 0
        a(f"buffer_load_dwordx4 {R(base+4*(2*t+hf))}, v{vVo}, {S(sV)}, s{sVG+G} offen offset:{512*t+256*hf}{KV}")
    def allred4(base, tmp, steps, op="add"):
        for st in steps:
            if st.startswith('ror'):
                for r in range(4): a(f"v_{op}_f32_dpp v{base+r}, v{base+r}, v{base+r} row_{st} {DPPF}")
            else:
                sw = "v_permlane16_swap_b32" if st == 'p16' else "v_permlane32_swap_b32"
                for r in range(4): a(f"v_mov_b32 v{tmp+r}, v{base+r}")
                for r in range(4): a(f"{sw} v{base+r}, v{tmp+r}")
                for r in range(4): a(f"v_{op}_f32 v{base+r}, v{base+r}, v{tmp+r}")
    def rnd2(x, y, tmp):
        a(f"v_cvt_pk_bf16_f32 v{tmp}, v{x}, v{y}")
        a(f"v_lshlrev_b32 v{x}, 16, v{tmp}")
        a(f"v_and_b32 v{y}, s{sHI}, v{tmp}")
    def tag_put(base, vtag):
        for r in range(4): a(f"v_perm_b32 v{base+r}, v{base+r}, v{vtag}, s{sSel[r]}")
    def tag_chk(base, t0, t1):
        a(f"v_perm_b32 v{t0}, v{base+1}, v{base}, s{sCk0}")
        a(f"v_perm_b32 v{t1}, v{base+3}, v{base+2}, s{sCk1}")
        a(f"v_or_b32 v{t0}, v{t0}, v{t1}")
        a(f"v_cmp_ne_u32 vcc, s{sTag}, v{t0}")
    def poll_many(lbl, loads, t0, t1):
        a(f"s_mov_b32 s{sCnt}, 0")
        a.label(lbl); a.forget()
        a("s_waitcnt vmcnt(0)")
        a(f"s_mov_b32 s{sE}, 0")
        for i, (base, fn) in enumerate(loads):
            tag_chk(base, t0, t1)
            a(f"s_cbranch_vccz {lbl}_s{i}")
            a("s_mov_b64 exec, vcc")
            fn()
            a("s_mov_b64 exec, -1")
            a(f"s_mov_b32 s{sE}, 1")
            a.label(f"{lbl}_s{i}")
        a(f"""
        s_cmp_eq_u32 s{sE}, 0
        s_cbranch_scc1 {lbl}_ok
        s_add_u32 s{sCnt}, s{sCnt}, 1
        s_cmp_gt_u32 s{sCnt}, {LIM}
        s_cbranch_scc0 {lbl}
        s_waitcnt vmcnt(0)
        """)
        a.label(lbl + "_ok"); a.forget()
    def setup2():
        a(f"""
        s_add_u32 s{sV}, s20, s{sKV}
        s_addc_u32 s{sV+1}, s21, 0
        s_mov_b32 s{sWS}, s42
        s_mov_b32 s{sWS+1}, s43
        """)
        if stamps:
            for r in STR[:11]: a("s_mov_b32 s%d, 0" % r)
        tmp = vS
        a(f"""
        v_and_b32 v{tmp}, 1, v{vL}
        v_lshlrev_b32 v{tmp}, 4, v{tmp}
        v_mov_b32 v{tmp+1}, 0xffff
        v_lshlrev_b32 v{tmp+1}, v{tmp}, v{tmp+1}
        v_bfe_u32 v{tmp+2}, v{vL}, 1, 2
        """)
        for r in range(4):
            a(f"v_cmp_eq_u32 vcc, {r}, v{tmp+2}")
            a(f"s_mov_b32 s{sSel[r]}, {0x07060500 + r}")
            a(f"v_cndmask_b32 v{vMask+r}, 0, v{tmp+1}, vcc")
        a(f"""
        s_mov_b32 s{sCk0}, 0x0c0c0400
        s_mov_b32 s{sCk1}, 0x04000c0c
        s_movk_i32 s{sMK}, 0xff00
        """)
    def tag_clr(base, dst=None):
        for r in range(4): a(f"v_and_b32 v{(base if dst is None else dst)+r}, s{sMK}, v{base+r}")

    if lst == 2: a.raw("; @launch kernel=tiny_kernel grid=(1,1,1) block=(64,1,1) lds=0")
    if lst: a.raw("; @launch kernel=%s_kernel grid=(256,1,1) block=(1024,1,1) lds=%d" % (NAME, LDS))
    else: a.raw("; @launch grid=(256,1,1) block=(1024,1,1) lds=%d" % LDS)
    if lst == 3: a.raw("; @launch kernel=tiny_kernel grid=(1,1,1) block=(64,1,1) lds=0")
    if lst == 4: a.raw("; @launch kernel=tiny_kernel grid=(256,1,1) block=(1024,1,1) lds=21504")
    if lst == 5: a.raw("; @launch kernel=tiny_kernel grid=(256,1,1) block=(512,1,1) lds=21504")
    if lst == 6: a.raw("; @launch kernel=tiny_kernel grid=(256,1,1) block=(64,1,1) lds=0")
    if lst == 7: a.raw("; @launch kernel=%s_kernel grid=(256,1,1) block=(1024,1,1) lds=%d" % (NAME, LDS))
    a.raw('.amdgcn_target "amdgcn-amd-amdhsa--gfx950"')
    a.raw(".text")
    a.raw(".globl %s_kernel" % NAME)
    a.raw(".p2align 8")
    a.raw(".type %s_kernel,@function" % NAME)
    a.raw("%s_kernel:" % NAME)
    a("s_cmp_ge_u32 s2, 256")
    a("s_cbranch_scc1 L_end")
    stamp(11)
    a("s_load_dwordx16 s[16:31], s[0:1], 0")
    a("s_load_dwordx8 s[32:39], s[0:1], 64")
    a("s_load_dwordx2 s[42:43], s[0:1], 104")
    n, g = 120, 121
    SWZ = {0: f"s_mov_b32 s{sT3}, 0", 1: f"s_mov_b32 s{sT3}, s{sW}", 2: f"s_lshr_b32 s{sT3}, s{sW}, 2",
           3: f"s_lshr_b32 s{sT3}, s{sW}, 2\n s_xor_b32 s{sT3}, s{sT3}, s{sW}", 4: f"s_add_u32 s{sT3}, s{sW}, s{sS}",
           5: f"s_xor_b32 s{sT3}, s{sW}, s{sH}", 6: f"s_lshr_b32 s{sT3}, s{sW}, 1", 7: f"s_lshr_b32 s{sT3}, s{sS}, 1\n s_add_u32 s{sT3}, s{sT3}, s{sW}",
           8: f"s_mov_b32 s{sT3}, s{sH}", 9: f"s_lshr_b32 s{sT3}, s{sH}, 2\n s_xor_b32 s{sT3}, s{sT3}, s{sW}", 10: f"s_xor_b32 s{sT3}, s{sW}, s{sH}\n s_xor_b32 s{sT3}, s{sT3}, s{sS}",
           11: f"s_mul_i32 s{sT3}, s2, 0x9e3779b1\n s_lshr_b32 s{sT3}, s{sT3}, 27\n s_xor_b32 s{sT3}, s{sT3}, s{sW}", 12: f"s_add_u32 s{sT3}, s{sW}, s{sH}",
           13: f"s_lshr_b32 s{sT3}, s{sH}, 2\n s_xor_b32 s{sT3}, s{sT3}, s{sH}\n s_xor_b32 s{sT3}, s{sT3}, s{sW}"}[swz]
    sX, sJ = sCk0, sCk1
    HSW = {0: f"s_mov_b32 s{sT2}, 0", 1: f"s_mov_b32 s{sT2}, s{sH}", 2: f"s_mov_b32 s{sT2}, s{sJJ}", 3: f"s_mov_b32 s{sT2}, s{sJ}",
           4: f"s_mul_i32 s{sT2}, s2, 0x9e3779b1\n s_lshr_b32 s{sT2}, s{sT2}, 20", 5: f"s_lshr_b32 s{sT2}, s{sH}, 2", 6: f"s_and_b32 s{sT2}, s{sH}, 12",
           7: f"s_lshl_b32 s{sT2}, s{sS}, 1", 8: f"s_mov_b32 s{sT2}, s{sS}"}[hsw]
    a(f"""
    v_lshrrev_b32 v{vT}, 6, v0
    v_and_b32 v{vL}, 63, v0
    s_and_b32 s{sX}, s2, 7
    v_readfirstlane_b32 s{sW}, v{vT}
    s_lshr_b32 s{sJ}, s2, 3
    """)
    if wmap == 1: a(f"""
    s_lshr_b32 s{sT0}, s{sJ}, 4
    s_lshl_b32 s{sH}, s{sX}, 1
    s_add_u32 s{sH}, s{sH}, s{sT0}
    s_lshr_b32 s{sB}, s{sJ}, 3
    s_and_b32 s{sB}, s{sB}, 1
    s_and_b32 s{sS}, s{sJ}, 7
    """)
    elif wmap == 0: a(f"""
    s_and_b32 s{sH}, s{sJ}, 15
    s_lshr_b32 s{sB}, s{sJ}, 4
    s_xor_b32 s{sS}, s{sX}, {fpar}
    """)
    elif wmap == 4: a(f"""
    s_and_b32 s{sT0}, s{sJ}, 3
    s_lshr_b32 s{sH}, s{sX}, 1
    s_lshl_b32 s{sH}, s{sH}, 2
    s_add_u32 s{sH}, s{sH}, s{sT0}
    s_lshr_b32 s{sB}, s{sJ}, 4
    s_lshr_b32 s{sS}, s{sJ}, 1
    s_and_b32 s{sS}, s{sS}, 6
    s_and_b32 s{sT0}, s{sX}, 1
    s_xor_b32 s{sT0}, s{sT0}, {fpar}
    s_or_b32 s{sS}, s{sS}, s{sT0}
    """)
    a(f"""
    s_lshl_b32 s{sJJ}, s{sB}, 3
    s_add_u32 s{sJJ}, s{sJJ}, s{sS}
    s_lshl_b32 s{sBH}, s{sB}, 4
    s_add_u32 s{sBH}, s{sBH}, s{sH}
    s_and_b32 s{sT0}, s{sS}, 1
    s_lshl_b32 s{sT0}, s{sT0}, 4
    s_xor_b32 s{sHF}, s{sH}, {hx}
    s_or_b32 s{sT0}, s{sT0}, s{sHF}
    s_cmp_lt_u32 s{sT0}, 14
    s_cselect_b32 s{sFF}, 1, 0
    v_and_b32 v{n}, 15, v{vL}
    v_lshrrev_b32 v{g}, 4, v{vL}
    v_and_b32 v{vT}, 7, v{vL}
    v_lshlrev_b32 v{vKo}, 9, v{vT}
    v_lshl_add_u32 v{vKo}, v{g}, 4, v{vKo}
    v_and_b32 v{vT}, 8, v{vL}
    v_lshl_add_u32 v{vKo}, v{vT}, 3, v{vKo}
    {HSW}
    s_xor_b32 s{sT2}, s{sT2}, s{sW}
    s_and_b32 s{sT2}, s{sT2}, 15
    s_lshl_b32 s{sT2}, s{sT2}, 14
    {SWZ}
    s_and_b32 s{sT3}, s{sT3}, 3
    s_lshl_b32 s{sT1}, s{sT3}, 12
    s_or_b32 s{sKT}, s{sT2}, s{sT1}
    s_xor_b32 s{sKT+1}, s{sKT}, 4096
    s_xor_b32 s{sKT+2}, s{sKT}, 8192
    s_xor_b32 s{sKT+3}, s{sKT}, 12288
    s_lshl_b32 s{sKV}, s{sBH}, 21
    s_lshl_b32 s{sT1}, s{sS}, 18
    s_add_u32 s{sKV}, s{sKV}, s{sT1}
    s_mov_b32 s{sK+2}, 262144
    s_mov_b32 s{sK+3}, 0x00020000
    s_mov_b32 s{sV+2}, 262144
    s_mov_b32 s{sV+3}, 0x00020000
    s_mov_b32 s{sWS+2}, {WS_USED}
    s_mov_b32 s{sWS+3}, 0x00020000
    s_mov_b32 s{sWA+3}, 0x00020000
    s_mov_b32 s{sHI}, 0xffff0000
    s_cmp_le_u32 s{sW}, s{sFF}
    s_cbranch_scc1 L_stage1
    s_waitcnt lgkmcnt(0)
    s_add_u32 s{sK}, s18, s{sKV}
    s_addc_u32 s{sK+1}, s19, 0
    """)
    if early: a("s_memrealtime s[70:71]")
    if pf:
        a(f"""
        s_cmp_lg_u32 s{sW}, 3
        s_cbranch_scc1 L_nopf
        s_lshl_b32 s{sT0}, s{sH}, 3
        s_add_u32 s{sT0}, s{sT0}, s{sS}
        s_mul_i32 s{sT0}, s{sT0}, {16*896}
        s_mul_i32 s{sT1}, s{sT0}, s{sFF}
        s_lshl_b32 s{sT0}, s{sT0}, 1
        v_mov_b32 v64, s{sKV}
        v_mov_b32 v65, s{sT0}
        v_mov_b32 v66, s{sT1}
        v_mov_b32 v67, {OB_OFF}
        s_mov_b64 exec, 1
        global_load_dword v68, v64, s[20:21] nt
        global_load_dword v69, v65, s[24:25] nt
        global_load_dword v70, v66, s[32:33] nt
        global_load_dword v71, v67, s[42:43] nt
        s_mov_b64 exec, -1
        """)
        a.label("L_nopf")
    if b0: a("s_barrier")
    for f in range(16):
        kload(f)
        if BL and f % BL == BL - 1 and f < 15: a("s_nop 0")
    if cpf:
        a(f"""
        s_cmp_lg_u32 s{sW}, 2
        s_cbranch_scc1 L_nocpf
        s_cmp_ge_u32 s2, {8*cpf}
        s_cbranch_scc1 L_nocpf
        s_getpc_b64 s[70:71]
        v_lshlrev_b32 v64, 7, v{vL}
        s_mov_b32 exec_hi, 0xfff
        global_load_dword v65, v64, s[70:71]
        s_mov_b64 exec, -1
        """)
        a.label("L_nocpf")
    setup2()
    if early:
        a("s_mov_b32 s%d, s70" % STR[9])
        stamp(7)
        a("s_waitcnt vmcnt(15)")
        stamp(10)
    a.label("L_kdone"); a.forget()
    a(f"""
    v_lshlrev_b32 v{vVo}, 11, v{g}
    v_lshl_add_u32 v{vVo}, v{n}, 4, v{vVo}
    s_and_b32 s{sT1}, s{sKT}, 4096
    v_xor_b32 v{vVo}, s{sT1}, v{vVo}
    s_andn2_b32 s{sVG}, s{sKT}, 4096
    s_xor_b32 s{sVG+1}, s{sVG}, 8192
    """)
    for idx in range(NPRE): vload(idx)
    a(f"""
    s_mov_b32 s{sC}, {f32(1.4426950408889634/16)}
    s_movk_i32 s{s3584}, 3584
    s_lshr_b32 s{sRole}, s{sW}, 2
    s_lshl_b32 s{sT0}, s{sH}, 3
    s_add_u32 s{sT0}, s{sT0}, s{sS}
    s_mul_i32 s{sT0}, s{sT0}, {32*896}
    s_lshl_b32 s{sT1}, s{sHF}, 3
    s_add_u32 s{sT1}, s{sT1}, s{sS}
    s_mul_i32 s{sT1}, s{sT1}, {16*896}
    s_mul_i32 s{sT1}, s{sT1}, s{sFF}
    s_cmp_eq_u32 s{sRole}, 1
    s_cselect_b32 s{sT0}, s{sT0}, s{sT1}
    s_cselect_b32 s{sT2}, s24, s32
    s_cselect_b32 s{sT3}, s25, s33
    s_add_u32 s{sWB}, s{sT2}, s{sT0}
    s_addc_u32 s{sWB+1}, s{sT3}, 0
    s_mov_b32 s{sWB+2}, 28672
    s_mov_b32 s{sWB+3}, 0x00020000
    s_lshl_b32 s{sT0}, s{sFF}, 1
    s_cmp_eq_u32 s{sRole}, 2
    s_cselect_b32 s{sRole}, s{sT0}, s{sRole}
    v_and_b32 v{vT}, 8, v{vL}
    v_lshlrev_b32 v{vT}, 3, v{vT}
    v_lshl_add_u32 v{vT}, v{g}, 4, v{vT}
    v_mul_u32_u24 v{vKo}, 7168, v{g}
    v_lshl_add_u32 v{vKo}, v{n}, 4, v{vKo}
    s_and_b32 s{sT0}, s{sW}, 3
    s_lshl_b32 s{sT1}, s{sT0}, 8
    v_add_u32 v{vKo}, s{sT1}, v{vKo}
    s_cmp_eq_u32 s{sT0}, 3
    s_cselect_b32 s{sT0}, 8, 0
    v_and_b32 v{vS}, s{sT0}, v{vL}
    v_lshl_or_b32 v{vKo}, v{vS}, 27, v{vKo}
    """)
    a(f"""
    s_lshl_b32 s{sRed}, s{sH}, 2
    s_lshr_b32 s{sT0}, s{sS}, 1
    s_add_u32 s{sRed}, s{sRed}, s{sT0}
    s_bitcmp1_b32 s{sS}, 0
    s_cselect_b32 s{sRed}, s{sRed}, 99
    s_cmp_lg_u32 s{sW}, 2
    s_cbranch_scc1 L_noz
    v_mov_b32 v{vS}, 0
    v_mov_b32 v{vS+1}, 0
    v_mov_b32 v{vS+2}, 0
    v_mov_b32 v{vS+3}, 0
    v_lshlrev_b32 v{vS+4}, 4, v{vL}
    ds_write_b128 v{vS+4}, {R(vS)} offset:{L_YP}
    ds_write_b32 v{vS}, v{vS} offset:{L_CNT}
    """)
    a.label("L_noz")
    if stamps:
        a(f"""
        s_lshl_b32 s{sTSo}, s2, 4
        s_add_u32 s{sTSo}, s{sTSo}, s{sW}
        s_lshl_b32 s{sTSo}, s{sTSo}, 6
        s_add_u32 s{sTSo}, s{sTSo}, {TS_OFF}
        """)
    if amp >= 200:
        a(f"""
        s_lshl_b32 s11, s2, 4
        s_add_u32 s11, s11, s{sW}
        s_cmp_lg_u32 s11, 1
        s_cbranch_scc1 L_nts
        v_mov_b32 v{vQ}, s15
        s_mov_b32 s12, {TS_OFF}
        buffer_store_dword v{vQ}, off, {S(sWS)}, s12 sc1
        """)
        a.label("L_nts")
    stamp(0)
    a("s_waitcnt lgkmcnt(0)")
    a("s_barrier")
    assert NPRE <= 4
    qb = [80, 84, 88, 92]
    for i in range(4): a(f"ds_read_b128 {R(qb[i])}, v{vT} offset:{L_Q+128*i}")
    a(f"s_sub_u32 s{sT0}, s{sRole}, 1")
    a(f"s_waitcnt vmcnt({NPRE})")
    stamp(1)
    acc = [vS, vS + 4, vQ, vQ + 4]
    for i in range(4):
        a(f"s_waitcnt lgkmcnt({3-i})")
        for u in range(4):
            c = "0" if i == 0 else R(acc[u])
            a(f"v_mfma_f32_16x16x32_bf16 {R(acc[u])}, {R(4*(4*u+i))}, {R(qb[i])}, {c}")
    a(f"""
    {f"s_cmp_lg_u32 s{sT0}, 1" if wl else f"s_cmp_gt_u32 s{sT0}, 1"}
    s_cbranch_scc1 L_now
    """)
    for t in range(8):
        so_ = "0" if t < 4 else f"s{s3584}"
        a(f"buffer_load_dwordx4 {R(32+4*t)}, v{vKo}, {S(sWB)}, {so_} offen offset:{896*(t%4)}{WP}")
    a.label("L_now")
    NB2 = NPRE + NMID
    for idx in range(NPRE, NB2): vload(idx)
    a(f"""
    s_cmp_eq_u32 s{sW}, 3
    s_cbranch_scc1 L_ldgate
    """)
    a.label("L_sm")
    a("s_nop 1")
    for r in range(4): a(f"v_permlane32_swap_b32 v{acc[0]+r}, v{acc[1]+r}")
    for r in range(4): a(f"v_permlane32_swap_b32 v{acc[2]+r}, v{acc[3]+r}")
    for r in range(4): a(f"v_add_f32_dpp v{vS+r}, v{acc[1]+r}, v{acc[0]+r} row_ror:8 {DPPF}")
    for r in range(4): a(f"v_add_f32_dpp v{vS+4+r}, v{acc[3]+r}, v{acc[2]+r} row_ror:8 {DPPF}")
    for k in range(0, 8, 2): a(f"v_cvt_pk_bf16_f32 v{vA+k//2}, v{vS+k}, v{vS+k+1}")
    for k in range(4): a(f"v_mov_b32_dpp v{vA+k}, v{vA+k} row_ror:8 row_mask:0xf bank_mask:0xc")
    for k in range(0, 8, 2):
        a(f"v_lshlrev_b32 v{vS+k}, 16, v{vA+k//2}")
        a(f"v_and_b32 v{vS+k+1}, s{sHI}, v{vA+k//2}")
    m, t1, l, mc = vA, vA + 1, vA + 2, vA + 3
    a(f"""
    v_max3_f32 v{m}, v{vS}, v{vS+1}, v{vS+2}
    v_max3_f32 v{t1}, v{vS+3}, v{vS+4}, v{vS+5}
    v_max3_f32 v{m}, v{m}, v{vS+6}, v{vS+7}
    v_max_f32 v{m}, v{m}, v{t1}
    v_mov_b32 v{t1}, v{m}
    v_permlane16_swap_b32 v{m}, v{t1}
    v_max_f32 v{m}, v{m}, v{t1}
    v_mov_b32 v{t1}, v{m}
    v_permlane32_swap_b32 v{m}, v{t1}
    v_max_f32 v{m}, v{m}, v{t1}
    v_mul_f32 v{mc}, s{sC}, v{m}
    """)
    for k in range(8): a(f"v_fma_f32 v{vS+k}, v{vS+k}, s{sC}, -v{mc}")
    for k in range(8): a(f"v_exp_f32 v{vS+k}, v{vS+k}")
    a(f"""
    v_add_f32 v{l}, v{vS}, v{vS+1}
    v_add_f32 v{t1}, v{vS+2}, v{vS+3}
    v_add_f32 v{l}, v{l}, v{vS+4}
    v_add_f32 v{t1}, v{t1}, v{vS+5}
    v_add_f32 v{l}, v{l}, v{vS+6}
    v_add_f32 v{t1}, v{t1}, v{vS+7}
    v_add_f32 v{l}, v{l}, v{t1}
    v_mov_b32 v{t1}, v{l}
    v_permlane16_swap_b32 v{l}, v{t1}
    v_add_f32 v{l}, v{l}, v{t1}
    v_mov_b32 v{t1}, v{l}
    v_permlane32_swap_b32 v{l}, v{t1}
    v_add_f32 v{t1}, v{l}, v{t1}
    s_lshl_b32 s{sT0}, s{sW}, 3
    v_mov_b32 v{vT}, s{sT0}
    ds_write_b64 v{vT}, {R(m,2)} offset:{L_ML}
    v_and_b32 v{vT}, 15, v{vL}
    v_lshlrev_b32 v{vT}, 3, v{vT}
    v_mov_b32 v{l}, 0
    s_waitcnt lgkmcnt(0)
    s_barrier
    ds_read_b64 {R(vO+4,2)}, v{vT} offset:{L_ML}
    ds_read_b32 v{vKo}, v{l} offset:{L_TAG}
    """)
    if wl: a("s_setprio 1")
    for idx in range(NB2, 16): vload(idx)
    a("s_waitcnt lgkmcnt(0)")
    a(f"v_readfirstlane_b32 s{sTag}, v{vKo}")
    stamp(2)
    mi, li, M, L = vO + 4, vO + 5, vO, vO + 2
    a(f"v_mov_b32 v{M}, v{mi}")
    for k in (8, 4, 2, 1): a(f"v_max_f32_dpp v{M}, v{M}, v{M} row_ror:{k} {DPPF}")
    a(f"""
    v_sub_f32 v{m}, v{m}, v{M}
    v_mul_f32 v{m}, s{sC}, v{m}
    v_exp_f32 v{m}, v{m}
    s_cmp_eq_u32 s{sW}, 2
    s_cbranch_scc1 L_stat
    """)
    a.label("L_nostat")
    a(f"""
    v_and_b32 v{t1}, 8, v{vL}
    v_cmp_ne_u32 vcc, 0, v{t1}
    v_mov_b32 v{t1}, s{sHI}
    v_cndmask_b32 v{t1}, 0, v{t1}, vcc
    """)
    for k in range(8): a(f"v_mul_f32 v{vS+k}, v{vS+k}, v{m}")
    for k in range(8):
        tt = vA + 4 + (k & 3)
        a(f"v_cvt_pk_bf16_f32 v{tt}, v{vS+k}, v{vS+k}")
        a(f"v_and_b32 v{tt}, v{t1}, v{tt}")
        a(f"v_sub_f32 v{vS+k}, v{vS+k}, v{tt}")
        a(f"v_cvt_pk_bf16_f32 v{vS+k}, v{vS+k}, v{vS+k}")
    for t in range(4):
        ab = vA + 4 * (t & 1)
        for r in range(4): a(f"v_and_b32 v{ab+r}, v{vS+t}, v{vMask+r}")
        a(f"s_waitcnt vmcnt({14-2*t})")
        for hf in range(2):
            c = "0" if t == 0 else R(vO + 4 * hf)
            a(f"v_mfma_f32_16x16x32_bf16 {R(vO+4*hf)}, {R(ab)}, {R(64+4*(2*t+hf))}, {c}")
    stamp(3)
    for t in range(4):
        for r in range(4): a(f"v_and_b32 v{64+4*t+r}, v{vS+4+t}, v{vMask+r}")
    g, n = vA, vA + 1
    vTag = vKo; vSel = vVo
    a(f"""
    v_lshrrev_b32 v{g}, 4, v{vL}
    v_and_b32 v{n}, 15, v{vL}
    s_lshl_b32 s{sT0}, s{sW}, 10
    v_lshrrev_b32 v83, 5, v{vL}
    v_lshlrev_b32 v83, 9, v83
    v_lshl_add_u32 v83, v{n}, 5, v83
    v_and_b32 v{vT}, 16, v{vL}
    v_add3_u32 v83, v83, v{vT}, s{sT0}
    v_and_b32 v82, 31, v{vL}
    v_lshlrev_b32 v82, 2, v82
    v_lshrrev_b32 v81, 5, v{vL}
    v_lshl_add_u32 v81, v81, 13, v82
    s_and_b32 s{sT1}, s{sW}, 7
    s_lshl_b32 s{sT0}, s{sT1}, 7
    v_add_u32 v81, s{sT0}, v81
    v_and_b32 v{vSel}, 3, v{vL}
    v_add_u32 v{vSel}, 0x07060500, v{vSel}
    v_mov_b32 v80, 0
    s_lshl_b32 s{sP0}, s{sBH}, 3
    s_add_u32 s{sP0}, s{sP0}, s{sT1}
    s_lshl_b32 s{sP0}, s{sP0}, 3
    s_add_u32 s{sP0}, s{sP0}, s{sS}
    s_lshl_b32 s{sP0}, s{sP0}, 7
    s_add_u32 s{sP0}, s{sP0}, {OB_OFF}
    s_cmp_eq_u32 s{sRole}, 1
    s_cbranch_scc1 L_mid1
    s_cmp_eq_u32 s{sRole}, 2
    s_cbranch_scc1 L_mid2
    s_cmp_ge_u32 s{sW}, 8
    s_cbranch_scc1 L_mid3
    s_cmp_eq_u32 s{sW}, 3
    s_cbranch_scc1 L_gate
    """)
    a.label("L_pv2"); a.forget()
    for t in range(4):
        a(f"s_waitcnt vmcnt({6-2*t})")
        for hf in range(2):
            a(f"v_mfma_f32_16x16x32_bf16 {R(vO+4*hf)}, {R(64+4*t)}, {R(4*(2*t+hf))}, {R(vO+4*hf)}")
    if ack: stamp(0)
    a(f"s_cmp_lt_u32 s{sW}, 8")
    for r in range(4): a(f"v_permlane32_swap_b32 v{vO+r}, v{vO+4+r}")
    for r in range(4): a(f"v_add_f32 v{vO+r}, v{vO+r}, v{vO+4+r}")
    a(f"""
    ds_write_b128 v83, {R(vO)} offset:{L_OW}
    s_cbranch_scc1 L_low
    {"s_setprio 3" if tp else "s_nop 0"}
    s_waitcnt lgkmcnt(0)
    s_barrier
    """)
    for i in range(4): a(f"ds_read2st64_b32 {R(2*i,2)}, v81 offset0:{L_OW//256+8*i} offset1:{L_OW//256+8*i+4}")
    a(f"""
    s_waitcnt lgkmcnt(2)
    v_add_f32 v0, v0, v1
    v_add_f32 v2, v2, v3
    s_waitcnt lgkmcnt(0)
    v_add_f32 v4, v4, v5
    v_add_f32 v6, v6, v7
    v_add_f32 v0, v0, v2
    v_add_f32 v4, v4, v6
    v_add_f32 v0, v0, v4
    v_mov_b32 v1, v0
    v_permlane32_swap_b32 v0, v1
    v_add_f32 v0, v0, v1
    v_perm_b32 v0, v0, v{vTag}, v{vSel}
    s_mov_b32 exec_hi, 0
    buffer_store_dword v0, v82, {S(sWS)}, s{sP0} offen sc1
    """)
    stamp(4)
    a(f"""
    s_cmp_lt_u32 s{sRed}, 28
    s_cbranch_scc1 L_reduce
    """)
    endpgm()
    a.label("L_low"); a.forget()
    a(f"""
    s_cmp_eq_u32 s{sRole}, 1
    s_cbranch_scc1 L_gemv1
    s_waitcnt lgkmcnt(0)
    s_barrier
    """)
    if xs: endpgm()
    a(f"""
    s_add_u32 s{sT0}, s{sRed}, s{sB}
    s_add_u32 s{sT0}, s{sT0}, s{sW}
    s_max_u32 s{sT1}, s{sRed}, 28
    s_cmp_lg_u32 s{sT1}, s{sRed}
    s_cselect_b32 s{sT0}, 99, s{sT0}
    s_cmp_eq_u32 s{sT0}, 28
    s_cbranch_scc1 L_epoch
    """)
    endpgm()

    a.label("L_gemv1"); a.forget()
    cf = 123
    def oload(): a(f"buffer_load_dwordx4 {R(0)}, v122, {S(sWS)}, s{sP1} offen sc1")
    a(f"s_mov_b32 s{sCnt}, 0")
    a.label("L_stchk")
    a(f"""
    v_cmp_ne_u32 vcc, s{sTag}, v85
    v_cmp_ne_u32 {S(sM,2)}, s{sTag}, v87
    s_or_b64 vcc, vcc, {S(sM,2)}
    s_cbranch_vccz L_stok
    s_add_u32 s{sCnt}, s{sCnt}, 1
    s_cmp_gt_u32 s{sCnt}, {LIM}
    s_cbranch_scc1 L_stok
    buffer_load_dwordx4 {R(84)}, v89, {S(sWS)}, s{sT3} offen sc1
    s_waitcnt vmcnt(0)
    s_branch L_stchk
    """)
    a.label("L_stok"); a.forget()
    M = vA
    a(f"v_mov_b32 v{M}, v84")
    for d in Q8: a(f"v_max_f32_dpp v{M}, v{M}, v{M} {d} {DPPF}")
    a(f"""
    v_sub_f32 v{cf}, v84, v{M}
    v_mul_f32 v{cf}, s{sC}, v{cf}
    v_exp_f32 v{cf}, v{cf}
    v_mul_f32 v{M}, v{cf}, v86
    """)
    for d in Q8: a(f"v_add_f32_dpp v{M}, v{M}, v{M} {d} {DPPF}")
    a(f"""
    v_rcp_f32 v{M}, v{M}
    v_mul_f32 v{cf}, v{cf}, v{M}
    s_mov_b32 s{sCnt}, 0
    s_cmp_eq_u32 s{sFF}, 0
    """)
    def wol(t):
        so_ = "0" if t < 4 else f"s{s3584}"
        a(f"buffer_load_dwordx4 {R(32+4*t)}, v121, {S(sWB)}, {so_} offen offset:{896*(t%4)}{WP}")
    if wl:
        a("s_setprio 0")
        for t in range(wpre): wol(t)
        a("s_setprio 2")
    a(f"""
    s_waitcnt lgkmcnt(0)
    s_barrier
    """)
    if xs: endpgm()
    if wl:
        for t in range(wpre, 8): wol(t)
    oload()
    a(f"""
    ds_read_b64 {R(90,2)}, v80 offset:{L_GG}
    s_cbranch_scc1 L_nof
    ds_read_b128 {R(92)}, v120 offset:{L_F}
    """)
    a.label("L_nof")
    a("s_waitcnt lgkmcnt(0)")
    for r in range(4): a(f"v_mul_f32 v{92+r}, v{92+r}, v91")
    a("s_waitcnt vmcnt(0)")
    a.label("L_ochk"); a.forget()
    tag_chk(0, 4, 5)
    a(f"""
    s_cbranch_vccz L_ook
    s_mov_b64 exec, vcc
    """)
    if osl: a(f"s_sleep {osl}")
    oload()
    a(f"""
    s_mov_b64 exec, -1
    s_add_u32 s{sCnt}, s{sCnt}, 1
    s_waitcnt vmcnt({pipe})
    s_cmp_gt_u32 s{sCnt}, {LIM}
    s_cbranch_scc0 L_ochk
    """)
    a.label("L_ook"); a.forget()
    stamp(5)
    tag_clr(0, 24)
    for r in range(4): a(f"v_mul_f32 v{24+r}, v{24+r}, v{cf}")
    for d in Q8:
        for r in range(4): a(f"v_add_f32_dpp v{24+r}, v{24+r}, v{24+r} {d} {DPPF}")
    for r in range(4): a(f"v_cvt_pk_bf16_f32 v{24+r}, v{24+r}, v{24+r}")
    for r in range(4): a(f"v_mov_b32_dpp v{28+r}, v{24+r} row_ror:8 {DPPF}")
    for t in range(8):
        ab = 8 + 4 * (t % 4)
        for r in range(4): a(f"v_and_b32 v{ab+r}, v{24+t}, v{vMask+r}")
        c = "0" if t == 0 else R(vO)
        a(f"v_mfma_f32_16x16x32_bf16 {R(vO)}, {R(ab)}, {R(32+4*t)}, {c}")
    a("s_mov_b32 exec_hi, 0")
    for r in range(4): a(f"v_fma_f32 v{vO+r}, v{vO+r}, v90, v{92+r}")
    tag_put(vO, vTag)
    a(f"buffer_store_dwordx4 {R(vO)}, v88, {S(sWS)}, s{sP2} offen sc1")
    stamp(6)
    if ack:
        a("s_waitcnt vmcnt(0)")
        stamp(9)
    endpgm()

    a.label("L_reduce"); a.forget()
    def yload(base=8): a(f"buffer_load_dwordx4 {R(base)}, v84, {S(sWS)}, s{sP1} offen sc1")
    a("s_mov_b64 exec, -1")
    if tp: a("s_setprio 0")
    yload()
    a(f"s_mov_b32 s{sCnt}, 0")
    a.label("L_ypoll"); a.forget()
    a("s_waitcnt vmcnt(0)")
    tag_chk(8, 4, 5)
    a(f"""
    s_cbranch_vccz L_yok
    s_mov_b64 exec, vcc
    """)
    if psl: a(f"s_sleep {psl}")
    yload()
    a(f"""
    s_mov_b64 exec, -1
    s_add_u32 s{sCnt}, s{sCnt}, 1
    s_cmp_gt_u32 s{sCnt}, {LIM}
    s_cbranch_scc0 L_ypoll
    s_waitcnt vmcnt(0)
    """)
    a.label("L_yok"); a.forget()
    stamp(7)
    tag_clr(8)
    allred4(8, 0, ROW16)
    a(f"""
    s_mov_b64 exec, {S(sM,2)}
    ds_write_b128 v85, {R(8)} offset:{L_YP}
    s_mov_b64 exec, 1
    ds_add_rtn_u32 v4, v80, v86 offset:{L_CNT}
    s_mov_b64 exec, -1
    ds_read_b128 {R(12)}, v84 offset:{L_YP}
    s_waitcnt lgkmcnt(1)
    v_readfirstlane_b32 s{sT0}, v4
    s_cmp_lg_u32 s{sT0}, 7
    s_cbranch_scc1 L_yend
    s_waitcnt lgkmcnt(0)
    """)
    allred4(12, 0, ROW16)
    a(f"""
    v_cvt_pk_bf16_f32 v12, v12, v13
    v_cvt_pk_bf16_f32 v13, v14, v15
    s_mov_b64 exec, {S(sM,2)}
    global_store_dwordx2 v90, {R(12,2)}, s[38:39] {opol}
    """)
    stamp(8)
    a.label("L_yend")
    endpgm()
    a.label("L_epoch"); a.forget()
    a(f"""
    s_mov_b32 s{sCnt}, 0
    v_lshlrev_b32 v84, 4, v{vL}
    s_movk_i32 s{sT3}, {ST_OFF}
    """)
    a.label("L_fchk")
    for i in range(4):
        a(f"buffer_load_dwordx4 {R(32+4*i)}, v84, {S(sWS)}, s{sT3} offen offset:{1024*i} sc1")
    a("s_waitcnt vmcnt(0)")
    for i in range(4): a(f"v_xor_b32 v{33+4*i}, s{sTag}, v{33+4*i}")
    a(f"""
    v_or3_b32 v33, v33, v37, v41
    v_or_b32 v33, v33, v45
    v_cmp_ne_u32 vcc, 0, v33
    s_cbranch_vccz L_fok
    s_add_u32 s{sCnt}, s{sCnt}, 1
    s_cmp_gt_u32 s{sCnt}, {LIM}
    s_cbranch_scc0 L_fchk
    """)
    a.label("L_fok"); a.forget()
    a(f"""
    s_mov_b64 exec, 1
    buffer_store_dword v{vTag}, off, {S(sWS)}, 0 offset:{EP_OFF} sc1
    """)
    endpgm()

    a.label("L_stat"); a.forget()
    mi, li, M, L = vO + 4, vO + 5, vO, vO + 2
    a(f"""
    v_sub_f32 v{mi}, v{mi}, v{M}
    v_mul_f32 v{mi}, s{sC}, v{mi}
    v_exp_f32 v{mi}, v{mi}
    v_mul_f32 v{L}, v{li}, v{mi}
    """)
    for k in (8, 4, 2, 1): a(f"v_add_f32_dpp v{L}, v{L}, v{L} row_ror:{k} {DPPF}")
    a(f"""
    v_mov_b32 v{M+1}, s{sTag}
    v_mov_b32 v{L+1}, s{sTag}
    s_lshl_b32 s{sT0}, s{sBH}, 3
    s_add_u32 s{sT0}, s{sT0}, s{sS}
    s_lshl_b32 s{sT0}, s{sT0}, 4
    s_add_u32 s{sT0}, s{sT0}, {ST_OFF}
    s_mov_b64 exec, 1
    buffer_store_dwordx4 {R(M)}, off, {S(sWS)}, s{sT0} sc1
    s_mov_b64 exec, -1
    s_branch L_nostat
    """)
    a.label("L_mid1"); a.forget()
    a(f"""
    v_and_b32 v{vT}, 7, v{vL}
    v_lshlrev_b32 v89, 4, v{vT}
    s_lshl_b32 s{sT3}, s{sBH}, 7
    s_add_u32 s{sT3}, s{sT3}, {ST_OFF}
    v_lshlrev_b32 v122, 7, v{vT}
    v_lshl_add_u32 v122, v{g}, 5, v122
    v_bfe_u32 v{vT}, v{vL}, 3, 1
    v_lshl_add_u32 v122, v{vT}, 4, v122
    s_lshl_b32 s{sP1}, s{sBH}, 3
    s_add_u32 s{sP1}, s{sP1}, s{sS}
    s_lshl_b32 s{sP1}, s{sP1}, 10
    s_add_u32 s{sP1}, s{sP1}, {OB_OFF}
    buffer_load_dwordx4 {R(84)}, v89, {S(sWS)}, s{sT3} offen sc1
    s_and_b32 s{sT0}, s{sW}, 3
    s_cmp_lg_u32 s{sT0}, 0
    s_cbranch_scc1 L_mid1b
    buffer_load_dwordx4 {R(vS)}, v122, {S(sWS)}, s{sP1} offen sc1
    """)
    a.label("L_mid1b")
    a(f"""
    s_lshl_b32 s{sT1}, s{sT0}, 10
    v_lshlrev_b32 v120, 4, v{vL}
    v_add_u32 v120, s{sT1}, v120
    v_lshrrev_b32 v88, 1, v{n}
    v_mul_u32_u24 v88, {YST}, v88
    v_and_b32 v{vT}, 1, v{n}
    v_lshl_add_u32 v88, v{vT}, 5, v88
    v_and_b32 v{vT}, 16, v{vL}
    v_add_u32 v88, v88, v{vT}
    s_mul_i32 s{sP2}, s{sB}, 28
    s_lshl_b32 s{sT1}, s{sT0}, 3
    s_add_u32 s{sP2}, s{sP2}, s{sT1}
    s_mul_i32 s{sP2}, s{sP2}, {YST}
    s_lshl_b32 s{sT1}, s{sH}, 3
    s_add_u32 s{sT1}, s{sT1}, s{sS}
    s_lshl_b32 s{sT1}, s{sT1}, {YSH}
    s_add_u32 s{sP2}, s{sP2}, s{sT1}
    s_add_u32 s{sP2}, s{sP2}, {YB_OFF}
    s_cmp_eq_u32 s{sT0}, 3
    s_cselect_b32 s{sT0}, 8, 0
    v_and_b32 v{vT}, s{sT0}, v{vL}
    v_lshl_or_b32 v88, v{vT}, 27, v88
    v_mul_u32_u24 v121, 7168, v{g}
    v_lshl_add_u32 v121, v{n}, 4, v121
    v_lshl_or_b32 v121, v{vT}, 27, v121
    s_and_b32 s{sT0}, s{sW}, 3
    s_lshl_b32 s{sT0}, s{sT0}, 8
    v_add_u32 v121, s{sT0}, v121
    v_mov_b32 v92, 0
    v_mov_b32 v93, 0
    v_mov_b32 v94, 0
    v_mov_b32 v95, 0
    s_branch L_pv2
    """)
    a.label("L_mid2"); a.forget()
    a(f"""
    v_lshlrev_b32 v{vT}, 5, v{g}
    ds_read_b128 {R(84)}, v{vT} offset:{L_R2}
    ds_read_b128 {R(88)}, v{vT} offset:{L_R2+16}
    s_waitcnt lgkmcnt(0)
    """)
    for t in range(8): a(f"v_cvt_pk_bf16_f32 v{84+t}, v{84+t}, v{84+t}")
    for t in range(8):
        ab = vA + 4 * (t & 1)
        for r in range(4): a(f"v_and_b32 v{ab+r}, v{84+t}, v{vMask+r}")
        c = "0" if t == 0 else R(92)
        a(f"v_mfma_f32_16x16x32_bf16 {R(92)}, {R(ab)}, {R(32+4*t)}, {c}")
    a(f"""
    s_and_b32 s{sT0}, s{sW}, 3
    s_lshl_b32 s{sT1}, s{sT0}, 10
    v_lshlrev_b32 v{vT}, 4, v{vL}
    v_add_u32 v{vT}, s{sT1}, v{vT}
    ds_write_b128 v{vT}, {R(92)} offset:{L_F}
    s_branch L_pv2
    """)
    a.label("L_mid3"); a.forget()
    assert YS == 64
    a(f"""
    s_cmp_ge_u32 s{sRed}, 28
    s_cbranch_scc1 L_pv2
    v_lshlrev_b32 v84, 6, v{n}
    v_lshl_add_u32 v84, v{g}, 4, v84
    s_mov_b32 s{sM}, 0x00010001
    s_mov_b32 s{sM+1}, 0x00010001
    s_and_b32 s{sT1}, s{sW}, 7
    s_lshl_b32 s{sT0}, s{sT1}, 6
    v_lshlrev_b32 v85, 4, v{g}
    v_add_u32 v85, s{sT0}, v85
    v_mov_b32 v86, 1
    s_lshl_b32 s{sT0}, s{sRed}, 5
    s_mul_i32 s{sT2}, s{sB}, 896
    s_add_u32 s{sT0}, s{sT0}, s{sT2}
    v_lshlrev_b32 v90, 3, v{g}
    v_add_u32 v90, s{sT0}, v90
    s_mul_i32 s{sP1}, s{sB}, 28
    s_add_u32 s{sP1}, s{sP1}, s{sRed}
    s_mul_i32 s{sP1}, s{sP1}, {YST}
    s_lshl_b32 s{sT1}, s{sT1}, 10
    s_add_u32 s{sP1}, s{sP1}, s{sT1}
    s_add_u32 s{sP1}, s{sP1}, {YB_OFF}
    """)
    if ywarm: yload(32)
    a("s_branch L_pv2")
    a.label("L_gate"); a.forget()
    xa, ga = 32, 36
    a("v_mov_b32 v44, 0")
    for r in range(4):
        a(f"""
        v_lshlrev_b32 v40, 16, v{xa+r}
        v_and_b32 v41, s{sHI}, v{xa+r}
        v_lshlrev_b32 v42, 16, v{ga+r}
        v_and_b32 v43, s{sHI}, v{ga+r}
        v_mul_f32 v40, v40, v42
        v_mul_f32 v41, v41, v43
        v_cvt_pk_bf16_f32 v40, v40, v41
        v_lshlrev_b32 v41, 16, v40
        v_and_b32 v40, s{sHI}, v40
        v_add_f32 v44, v44, v41
        v_add_f32 v44, v44, v40
        """)
    for k in (8, 4, 2, 1): a(f"v_add_f32_dpp v44, v44, v44 row_ror:{k} {DPPF}")
    a(f"""
    v_mov_b32 v45, v44
    v_permlane16_swap_b32 v44, v45
    v_add_f32 v44, v44, v45
    v_mov_b32 v45, v44
    v_permlane32_swap_b32 v44, v45
    v_add_f32 v44, v44, v45
    v_cvt_pk_bf16_f32 v44, v44, v44
    v_and_b32 v44, s{sHI}, v44
    v_mul_f32 v44, {f32(-1.4426950408889634)}, v44
    v_exp_f32 v44, v44
    v_add_f32 v44, 1.0, v44
    v_rcp_f32 v44, v44
    v_cvt_pk_bf16_f32 v44, v44, v44
    v_and_b32 v44, s{sHI}, v44
    v_sub_f32 v45, 1.0, v44
    v_cvt_pk_bf16_f32 v45, v45, v45
    v_and_b32 v45, s{sHI}, v45
    ds_write_b64 v80, {R(44,2)} offset:{L_GG}
    s_cmp_ge_u32 s{sRed}, 28
    s_cbranch_scc1 L_pv2
    v_lshlrev_b32 v40, 16, v46
    v_and_b32 v41, s{sHI}, v46
    v_lshlrev_b32 v42, 16, v47
    v_and_b32 v43, s{sHI}, v47
    v_mul_f32 v40, v40, v45
    v_mul_f32 v41, v41, v45
    v_mul_f32 v42, v42, v45
    v_mul_f32 v43, v43, v45
    v_lshlrev_b32 v{vT}, 4, v{g}
    ds_write_b128 v{vT}, {R(40)} offset:{L_YP+512}
    s_branch L_pv2
    """)
    a.label("L_ldgate"); a.forget()
    for r in range(8): a(f"v_mov_b32 v{32+r}, 0")
    a(f"""
    v_lshlrev_b32 v{vA+1}, 4, v{vL}
    s_mul_i32 s{sT0}, s{sB}, 896
    v_add_u32 v{vA}, s{sT0}, v{vA+1}
    s_min_u32 s{sT0}, s{sRed}, 27
    s_lshl_b32 s{sT0}, s{sT0}, 5
    v_lshrrev_b32 v{vA+2}, 4, v{vL}
    v_lshlrev_b32 v{vA+2}, 3, v{vA+2}
    v_add_u32 v{vA+2}, s{sT0}, v{vA+2}
    s_mov_b32 exec_hi, 0x00ffffff
    global_load_dwordx4 {R(32)}, v{vA}, s[16:17]
    global_load_dwordx4 {R(36)}, v{vA+1}, s[36:37]
    s_mov_b64 exec, -1
    global_load_dwordx2 {R(46,2)}, v{vA+2}, s[34:35]
    s_branch L_sm
    """)

    n, g = 120, 121
    a.label("L_stage1"); a.forget()
    SO = [None, 60, 61, 62, 64, 65, 66, 67, 69, 70, 71, 76, 77, 78]
    sStr = sP1
    a(f"""
    s_movk_i32 s{sStr}, 3584
    s_mov_b32 s{sP0}, {SH_OFF}
    s_cmp_eq_u32 s{sW}, 0
    s_cselect_b32 s{sStr}, 8192, s{sStr}
    s_cselect_b32 s{sP2}, 9, 8
    s_cselect_b32 s{sT3}, s{sH}, s{sHF}
    s_cselect_b32 s{sP0}, {SQ_OFF}, s{sP0}
    s_mul_i32 s{sCnt}, s{sStr}, 448
    s_lshr_b32 s{sT1}, s{sJJ}, 1
    s_mul_i32 s{sT2}, s{sT1}, 56
    s_mul_i32 s{sT2}, s{sT2}, s{sStr}
    s_lshl_b32 s{sT3}, s{sT3}, s{sP2}
    s_add_u32 s{sT2}, s{sT2}, s{sT3}
    s_and_b32 s{sT3}, s{sJJ}, 1
    s_lshl_b32 s{sT0}, s{sT3}, 8
    s_add_u32 s{sT2}, s{sT2}, s{sT0}
    s_sub_u32 s{sWA+2}, s{sCnt}, s{sT2}
    s_mul_i32 s{sT0}, s{sStr}, 14
    v_mul_u32_u24 v{vT}, s{sT0}, v{g}
    v_lshl_add_u32 v{vT}, v{n}, 4, v{vT}
    s_mov_b32 s{SO[1]}, s{sStr}
    """)
    for t in range(2, 14): a(f"s_add_u32 s{SO[t]}, s{SO[t-1]}, s{sStr}")
    a(f"""
    v_lshrrev_b32 v{vS}, 3, v{n}
    v_mul_u32_u24 v{vS}, 896, v{vS}
    v_mad_u32_u24 v{vS}, v{g}, 28, v{vS}
    s_mul_i32 s{sT0}, s{sT1}, 112
    v_add_u32 v{vS}, s{sT0}, v{vS}
    v_mov_b32 v{vS+1}, 0
    s_cmp_eq_u32 s{sW}, 0
    s_waitcnt lgkmcnt(0)
    s_cselect_b32 s{sWA}, s22, s28
    s_cselect_b32 s{sWA+1}, s23, s29
    s_add_u32 s{sWA}, s{sWA}, s{sT2}
    s_addc_u32 s{sWA+1}, s{sWA+1}, 0
    """)
    for t in range(14):
        a(f"buffer_load_dwordx4 {R(4*t)}, v{vT}, {S(sWA)}, {('s%d' % SO[t]) if t else '0'} offen{WQP}")
    a(f"""
    global_load_dwordx4 {R(56)}, v{vS}, s[16:17]
    global_load_dwordx3 {R(60,3)}, v{vS}, s[16:17] offset:16
    global_load_dword v63, v{vS+1}, s[42:43] offset:{EP_OFF} sc1
    {"s_barrier" if b0 else "s_nop 0"}
    s_add_u32 s{sK}, s18, s{sKV}
    s_addc_u32 s{sK+1}, s19, 0
    """)
    setup2()
    a(f"""
    v_lshrrev_b32 v{vT}, 1, v{g}
    v_lshlrev_b32 v{vT}, 13, v{vT}
    v_lshl_add_u32 v{vT}, v{n}, 5, v{vT}
    v_and_b32 v{vS}, 16, v{vL}
    v_add_u32 v{vT}, v{vT}, v{vS}
    s_lshl_b32 s{sT0}, s{sH}, 14
    s_add_u32 s{sP0}, s{sP0}, s{sT0}
    s_lshl_b32 s{sT0}, s{sB}, 13
    s_add_u32 s{sP1}, s{sP0}, s{sT0}
    s_lshl_b32 s{sT2}, s{sT1}, 10
    s_add_u32 s{sP0}, s{sP0}, s{sT2}
    s_lshl_b32 s{sT2}, s{sT3}, 9
    s_add_u32 s{sP0}, s{sP0}, s{sT2}
    s_mov_b32 s{sT2}, 0x01000100
    s_mov_b32 s{sT3}, 0x03020302
    v_lshlrev_b32 v{vQ+1}, 4, v{vL}
    s_add_u32 s{sP2}, s{sP1}, 4096
    s_waitcnt vmcnt(0)
    v_and_b32 v{vQ}, 0x7f7f7f7f, v63
    v_add_u32 v{vQ}, 0x671b3501, v{vQ}
    v_xor_b32 v63, 0xe79b3501, v63
    v_and_b32 v63, 0x80808080, v63
    v_xor_b32 v{vQ}, v{vQ}, v63
    v_mov_b32 v63, 0
    v_readfirstlane_b32 s{sTag}, v{vQ}
    ds_write_b32 v63, v{vQ} offset:{L_TAG}
    """)
    stamp(5)
    for t in range(14):
        ab = 112 if t & 1 else vA
        a(f"v_perm_b32 v{vS+4}, v{56+t//2}, v{56+t//2}, s{sT3 if t & 1 else sT2}")
        for r in range(4): a(f"v_and_b32 v{ab+r}, v{vS+4}, v{vMask+r}")
        c = "0" if t == 0 else R(vS)
        a(f"v_mfma_f32_16x16x32_bf16 {R(vS)}, {R(ab)}, {R(4*t)}, {c}")
    a(f"s_cmp_eq_u32 s{sW}, 1")
    for r in range(4): a(f"v_add_u32 v{vS+r}, 0x80, v{vS+r}")
    tag_put(vS, vQ)
    a(f"buffer_store_dwordx4 {R(vS)}, v{vT}, {S(sWS)}, s{sP0} offen sc1")
    stamp(6)
    a("s_cbranch_scc1 L_hgather")
    def qload(i): a(f"buffer_load_dwordx4 {R(64+4*i)}, v{vQ+1}, {S(sWS)}, s{sP1 if i < 4 else sP2} offen offset:{1024*(i%4)} sc1")
    for f in range(KS): kload(f)
    for i in range(8): qload(i)
    poll_many("L_qp", [(64+4*i, (lambda i=i: qload(i))) for i in range(8)], vQ + 4, vQ + 5)
    for f in range(KS, 16): kload(f)
    for i in range(8): tag_clr(64 + 4 * i)
    for i in range(1, 8):
        for r in range(4): a(f"v_add_f32 v{64+r}, v{64+r}, v{64+4*i+r}")
    a(f"""
    v_cvt_pk_bf16_f32 v{vQ}, v64, v65
    v_cvt_pk_bf16_f32 v{vQ+1}, v66, v67
    v_lshlrev_b32 v{vT}, 3, v{vL}
    ds_write_b64 v{vT}, {R(vQ,2)} offset:{L_Q}
    """)
    stamp(10)
    a("s_branch L_kdone")
    a.label("L_hgather"); a.forget()
    for f in range(16): kload(f)
    h = vS
    a(f"""
    v_and_b32 v{vA}, 7, v{vL}
    v_lshrrev_b32 v{vQ}, 3, v{vL}
    v_lshlrev_b32 v{vQ}, 10, v{vQ}
    v_lshl_add_u32 v{vQ}, v{vA}, 4, v{vQ}
    s_lshl_b32 s{sT0}, s{sS}, 6
    s_add_u32 s{sP1}, s{sP1}, s{sT0}
    s_lshl_b32 s{sT1}, s{sHF}, 8
    s_lshl_b32 s{sT0}, s{sS}, 5
    s_add_u32 s{sT1}, s{sT1}, s{sT0}
    v_lshlrev_b32 v{vT}, 3, v{vA}
    v_add_u32 v{vT}, s{sT1}, v{vT}
    global_load_dwordx2 {R(118,2)}, v{vT}, s[30:31]
    """)
    def hload(): a(f"buffer_load_dwordx4 {R(h)}, v{vQ}, {S(sWS)}, s{sP1} offen sc1")
    hload()
    poll_many("L_hp", [(h, hload)], vQ + 4, vQ + 5)
    tag_clr(h)
    allred4(h, h + 4, ['ror:8', 'p16', 'p32'])
    rnd2(h, h + 1, vQ + 4); rnd2(h + 2, h + 3, vQ + 5)
    a(f"""
    v_lshlrev_b32 v{h+4}, 16, v118
    v_and_b32 v{h+5}, s{sHI}, v118
    v_lshlrev_b32 v{h+6}, 16, v119
    v_and_b32 v{h+7}, s{sHI}, v119
    """)
    for r in range(4): a(f"v_add_f32 v{h+r}, v{h+r}, v{h+4+r}")
    rnd2(h, h + 1, vQ + 4); rnd2(h + 2, h + 3, vQ + 5)
    for r in range(4): a(f"v_max_f32 v{h+r}, 0, v{h+r}")
    for r in range(4): a(f"v_mul_f32 v{h+r}, v{h+r}, v{h+r}")
    a(f"""
    v_lshlrev_b32 v{vT}, 4, v{vA}
    ds_write_b128 v{vT}, {R(h)} offset:{L_R2}
    s_nop 1
    s_branch L_kdone
    """)
    if stamps:
        a.label("L_stampout"); a.forget()
        if amp >= 0:
            if amp == 99: a("s_movk_i32 s11, 10000")
            elif amp >= 200:
                a(f"""
                s_cmp_lg_u32 s2, {amp-200}
                s_cbranch_scc1 L_end
                s_cmp_lg_u32 s{sW}, 1
                s_cbranch_scc1 L_end
                s_mov_b64 exec, -1
                s_mov_b32 s12, {TS_OFF}
                buffer_load_dword v0, off, {S(sWS)}, s12 sc1
                s_waitcnt vmcnt(0)
                v_readfirstlane_b32 s11, v0
                s_sub_u32 s11, s15, s11
                s_add_u32 s11, s11, 100
                s_min_u32 s11, s11, 1000
                s_mul_i32 s11, s11, 50
                """)
            else:
                a("s_cmp_eq_u32 s%d, 0" % STR[amp])
                a("s_cbranch_scc1 L_end")
                a("s_sub_u32 s11, s%d, s15" % STR[amp])
                a("s_min_u32 s11, s11, 20000")
                a("s_lshl_b32 s11, s11, 3")
            a.label("L_amp")
            a("s_sleep 8")
            a("s_memrealtime s[%d:%d]" % (sTS, sTS + 1))
            a("s_waitcnt lgkmcnt(0)")
            a("s_sub_u32 s12, s%d, s15" % sTS)
            a("s_cmp_lt_u32 s12, s11")
            a("s_cbranch_scc1 L_amp")
        else:
            a("s_mov_b64 exec, -1")
            a("s_waitcnt vmcnt(0)")
            for i, r in enumerate(STR): a("v_writelane_b32 v0, s%d, %d" % (r, i))
            a(f"v_lshlrev_b32 v1, 2, v{vL}")
            a("s_mov_b64 exec, 0xfff")
            a("buffer_store_dword v0, v1, %s, s%d offen" % (S(sWS), sTSo))
    a.label("L_end")
    a("s_endpgm")
    if 2 <= lst <= 6:
        a.raw(".globl tiny_kernel\n.p2align 8\n.type tiny_kernel,@function\ntiny_kernel:\n    s_endpgm")
    a.raw('.section .rodata,"a"')
    if 2 <= lst <= 6:
        a.raw(".p2align 6\n.amdhsa_kernel tiny_kernel\n  .amdhsa_next_free_vgpr NV\n  .amdhsa_next_free_sgpr 16\n  .amdhsa_accum_offset NV\n  .amdhsa_group_segment_fixed_size 0\n  .amdhsa_kernarg_size 112\n  .amdhsa_user_sgpr_count 2\n  .amdhsa_user_sgpr_kernarg_segment_ptr 1\n  .amdhsa_system_sgpr_workgroup_id_x 1\n.end_amdhsa_kernel".replace("NV", {4: "128", 5: "256"}.get(lst, "8")))
    a.raw(".p2align 6")
    a.raw(".amdhsa_kernel %s_kernel" % NAME)
    a.raw("  .amdhsa_next_free_vgpr 128")
    a.raw("  .amdhsa_next_free_sgpr 102")
    a.raw("  .amdhsa_accum_offset 128")
    a.raw("  .amdhsa_group_segment_fixed_size 0")
    a.raw("  .amdhsa_kernarg_size 112")
    a.raw("  .amdhsa_user_sgpr_count 2")
    a.raw("  .amdhsa_user_sgpr_kernarg_segment_ptr 1")
    a.raw("  .amdhsa_system_sgpr_workgroup_id_x 1")
    a.raw("  .amdhsa_float_denorm_mode_32 3")
    a.raw(".end_amdhsa_kernel")
    return a.text()

if __name__ == "__main__":
    import argparse, inspect
    ap = argparse.ArgumentParser()
    ap.add_argument("-o", default="cdna_kernels/%s.s" % NAME)
    sig = inspect.signature(gen)
    for k, p in sig.parameters.items():
        if isinstance(p.default, bool): ap.add_argument("--" + k, action="store_true")
        elif isinstance(p.default, int): ap.add_argument("--" + k, type=int, default=p.default)
        else: ap.add_argument("--" + k, default=p.default)
    x = vars(ap.parse_args()); o = x.pop("o")
    x = {k: ("" if v == "none" else v) for k, v in x.items()}
    open(o, "w").write(gen(**x))
```

```python
import sys, struct
from asmlib import Asm

NAME = "gated_mix__mha_block_cached__dense_activation_squared_relu__decode"
def f32(x): return "0x%08x" % struct.unpack('<I', struct.pack('<f', x))[0]

def gen(kv="nt", wq="", w2="", stamps=False, NPRE=2, NMID=2, swz=5, amp=-1, xs=0, wmap=0, pipe=0, fpar=0, red=2, ypad=0, yskew=256, KS=16, early=0, pf=0, cpf=0, lst=0, BL=0, b0=0, ack=0, psl=0, ywarm=2, hx=0, tp=1, osl=0, opol="", hsw=0, wl=1, wpre=8, s1w=0, rsp=0):
    stamps = stamps or amp >= 0
    a = Asm()
    KV = (" " + kv) if kv else ""
    WQP = (" " + wq) if wq else ""
    WP = (" " + w2) if w2 else ""
    YS = 128 if ypad else 64
    YSH = 7 if ypad else 6
    YST = 128 * YS + yskew
    EP_OFF = 0; ST_OFF = 4096; OB_OFF = 8192; SQ_OFF = OB_OFF + 262144; SH_OFF = SQ_OFF + 262144
    YB_OFF = SH_OFF + 262144; TS_OFF = 1835008; WS_USED = 2097152
    assert YB_OFF + 56 * YST <= TS_OFF
    L_Q = 0; L_ML = 512; L_R2 = 640; L_GG = 768; L_TAG = 776; L_CNT = 780; L_YP = 21504; L_F = 1024; L_OW = 5120; OWS = 1024; LDS = L_OW + 16 * OWS + 1024
    sCk0, sCk1, sH, sB, sS, sJJ, sBH, sW = 3, 4, 5, 6, 7, 8, 9, 10
    sT0, sT1, sT2, sT3 = 11, 12, 13, 14
    sK, sV, sWS, sWA, sWB = 44, 48, 52, 56, 64
    sSel = [40, 41, 60, 61]; sE = 62; sFF = 63; sHF = 1; sMK = 0
    sKV = 68
    sKT = 72; sVG = 76; sC = 78; sHI = 79; sM = 80
    sP0, sP1, sP2 = 82, 83, 84
    sRole = 85; sRed = 86; sCnt = 87
    sTS = 88; sTSo = 90; s3584 = 91; sTag = 92
    vMask = 96; vS = 100; vQ = 108; vO = 108; vA = 116; vKo = 124; vVo = 125; vL = 126; vT = 127
    LIM = 1 << 23
    def R(b, n=4): return "v[%d:%d]" % (b, b + n - 1)
    def S(b, n=4): return "s[%d:%d]" % (b, b + n - 1)
    STR = [26, 27, 93, 94, 95, 96, 97, 98, 99, 100, 101, 15]
    def stamp(idx):
        if not stamps: return
        a("s_memrealtime s[%d:%d]" % (sTS, sTS + 1))
        a("s_waitcnt lgkmcnt(0)")
        a("s_mov_b32 s%d, s%d" % (STR[idx], sTS))
    def endpgm():
        if stamps: a("s_branch L_stampout")
        else: a("s_endpgm")
    DPPF = "row_mask:0xf bank_mask:0xf"
    ROW16 = ['ror:8', 'ror:4', 'ror:2', 'ror:1']
    Q8 = ("quad_perm:[1,0,3,2]", "quad_perm:[2,3,0,1]", "row_half_mirror")
    def kload(f):
        u, i = f >> 2, f & 3
        a(f"buffer_load_dwordx4 {R(4*f)}, v{vKo}, {S(sK)}, s{sKT+u} offen offset:{128*i}{KV}")
    def vload(idx):
        G, t, hf = idx >> 3, (idx >> 1) & 3, idx & 1
        base = 64 if G == 0 else 0
        a(f"buffer_load_dwordx4 {R(base+4*(2*t+hf))}, v{vVo}, {S(sV)}, s{sVG+G} offen offset:{512*t+256*hf}{KV}")
    def allred4(base, tmp, steps, op="add"):
        for st in steps:
            if st.startswith('ror'):
                for r in range(4): a(f"v_{op}_f32_dpp v{base+r}, v{base+r}, v{base+r} row_{st} {DPPF}")
            else:
                sw = "v_permlane16_swap_b32" if st == 'p16' else "v_permlane32_swap_b32"
                for r in range(4): a(f"v_mov_b32 v{tmp+r}, v{base+r}")
                for r in range(4): a(f"{sw} v{base+r}, v{tmp+r}")
                for r in range(4): a(f"v_{op}_f32 v{base+r}, v{base+r}, v{tmp+r}")
    def rnd2(x, y, tmp):
        a(f"v_cvt_pk_bf16_f32 v{tmp}, v{x}, v{y}")
        a(f"v_lshlrev_b32 v{x}, 16, v{tmp}")
        a(f"v_and_b32 v{y}, s{sHI}, v{tmp}")
    def tag_put(base, vtag):
        for r in range(4): a(f"v_perm_b32 v{base+r}, v{base+r}, v{vtag}, s{sSel[r]}")
    def tag_chk(base, t0, t1):
        a(f"v_perm_b32 v{t0}, v{base+1}, v{base}, s{sCk0}")
        a(f"v_perm_b32 v{t1}, v{base+3}, v{base+2}, s{sCk1}")
        a(f"v_or_b32 v{t0}, v{t0}, v{t1}")
        a(f"v_cmp_ne_u32 vcc, s{sTag}, v{t0}")
    def poll_many(lbl, loads, t0, t1):
        a(f"s_mov_b32 s{sCnt}, 0")
        a.label(lbl); a.forget()
        a("s_waitcnt vmcnt(0)")
        a(f"s_mov_b32 s{sE}, 0")
        for i, (base, fn) in enumerate(loads):
            tag_chk(base, t0, t1)
            a(f"s_cbranch_vccz {lbl}_s{i}")
            a("s_mov_b64 exec, vcc")
            fn()
            a("s_mov_b64 exec, -1")
            a(f"s_mov_b32 s{sE}, 1")
            a.label(f"{lbl}_s{i}")
        a(f"""
        s_cmp_eq_u32 s{sE}, 0
        s_cbranch_scc1 {lbl}_ok
        s_add_u32 s{sCnt}, s{sCnt}, 1
        s_cmp_gt_u32 s{sCnt}, {LIM}
        s_cbranch_scc0 {lbl}
        s_waitcnt vmcnt(0)
        """)
        a.label(lbl + "_ok"); a.forget()
    def setup2():
        a(f"""
        s_add_u32 s{sV}, s20, s{sKV}
        s_addc_u32 s{sV+1}, s21, 0
        s_mov_b32 s{sWS}, s42
        s_mov_b32 s{sWS+1}, s43
        """)
        if stamps:
            for r in STR[:11]: a("s_mov_b32 s%d, 0" % r)
        tmp = vS
        a(f"""
        v_and_b32 v{tmp}, 1, v{vL}
        v_lshlrev_b32 v{tmp}, 4, v{tmp}
        v_mov_b32 v{tmp+1}, 0xffff
        v_lshlrev_b32 v{tmp+1}, v{tmp}, v{tmp+1}
        v_bfe_u32 v{tmp+2}, v{vL}, 1, 2
        """)
        for r in range(4):
            a(f"v_cmp_eq_u32 vcc, {r}, v{tmp+2}")
            a(f"s_mov_b32 s{sSel[r]}, {0x07060500 + r}")
            a(f"v_cndmask_b32 v{vMask+r}, 0, v{tmp+1}, vcc")
        a(f"""
        s_mov_b32 s{sCk0}, 0x0c0c0400
        s_mov_b32 s{sCk1}, 0x04000c0c
        s_movk_i32 s{sMK}, 0xff00
        """)
    def tag_clr(base, dst=None):
        for r in range(4): a(f"v_and_b32 v{(base if dst is None else dst)+r}, s{sMK}, v{base+r}")

    if lst == 2: a.raw("; @launch kernel=tiny_kernel grid=(1,1,1) block=(64,1,1) lds=0")
    if lst: a.raw("; @launch kernel=%s_kernel grid=(256,1,1) block=(1024,1,1) lds=%d" % (NAME, LDS))
    else: a.raw("; @launch grid=(256,1,1) block=(1024,1,1) lds=%d" % LDS)
    if lst == 3: a.raw("; @launch kernel=tiny_kernel grid=(1,1,1) block=(64,1,1) lds=0")
    if lst == 4: a.raw("; @launch kernel=tiny_kernel grid=(256,1,1) block=(1024,1,1) lds=21504")
    if lst == 5: a.raw("; @launch kernel=tiny_kernel grid=(256,1,1) block=(512,1,1) lds=21504")
    if lst == 6: a.raw("; @launch kernel=tiny_kernel grid=(256,1,1) block=(64,1,1) lds=0")
    if lst == 7: a.raw("; @launch kernel=%s_kernel grid=(256,1,1) block=(1024,1,1) lds=%d" % (NAME, LDS))
    a.raw('.amdgcn_target "amdgcn-amd-amdhsa--gfx950"')
    a.raw(".text")
    a.raw(".globl %s_kernel" % NAME)
    a.raw(".p2align 8")
    a.raw(".type %s_kernel,@function" % NAME)
    a.raw("%s_kernel:" % NAME)
    a("s_cmp_ge_u32 s2, 256")
    a("s_cbranch_scc1 L_end")
    stamp(11)
    a("s_load_dwordx16 s[16:31], s[0:1], 0")
    a("s_load_dwordx8 s[32:39], s[0:1], 64")
    a("s_load_dwordx2 s[42:43], s[0:1], 104")
    n, g = 120, 121
    SWZ = {0: f"s_mov_b32 s{sT3}, 0", 1: f"s_mov_b32 s{sT3}, s{sW}", 2: f"s_lshr_b32 s{sT3}, s{sW}, 2",
           3: f"s_lshr_b32 s{sT3}, s{sW}, 2\n s_xor_b32 s{sT3}, s{sT3}, s{sW}", 4: f"s_add_u32 s{sT3}, s{sW}, s{sS}",
           5: f"s_xor_b32 s{sT3}, s{sW}, s{sH}", 6: f"s_lshr_b32 s{sT3}, s{sW}, 1", 7: f"s_lshr_b32 s{sT3}, s{sS}, 1\n s_add_u32 s{sT3}, s{sT3}, s{sW}",
           8: f"s_mov_b32 s{sT3}, s{sH}", 9: f"s_lshr_b32 s{sT3}, s{sH}, 2\n s_xor_b32 s{sT3}, s{sT3}, s{sW}", 10: f"s_xor_b32 s{sT3}, s{sW}, s{sH}\n s_xor_b32 s{sT3}, s{sT3}, s{sS}",
           11: f"s_mul_i32 s{sT3}, s2, 0x9e3779b1\n s_lshr_b32 s{sT3}, s{sT3}, 27\n s_xor_b32 s{sT3}, s{sT3}, s{sW}", 12: f"s_add_u32 s{sT3}, s{sW}, s{sH}",
           13: f"s_lshr_b32 s{sT3}, s{sH}, 2\n s_xor_b32 s{sT3}, s{sT3}, s{sH}\n s_xor_b32 s{sT3}, s{sT3}, s{sW}"}[swz]
    sX, sJ = sCk0, sCk1
    HSW = {0: f"s_mov_b32 s{sT2}, 0", 1: f"s_mov_b32 s{sT2}, s{sH}", 2: f"s_mov_b32 s{sT2}, s{sJJ}", 3: f"s_mov_b32 s{sT2}, s{sJ}",
           4: f"s_mul_i32 s{sT2}, s2, 0x9e3779b1\n s_lshr_b32 s{sT2}, s{sT2}, 20", 5: f"s_lshr_b32 s{sT2}, s{sH}, 2", 6: f"s_and_b32 s{sT2}, s{sH}, 12",
           7: f"s_lshl_b32 s{sT2}, s{sS}, 1", 8: f"s_mov_b32 s{sT2}, s{sS}"}[hsw]
    a(f"""
    v_lshrrev_b32 v{vT}, 6, v0
    v_and_b32 v{vL}, 63, v0
    s_and_b32 s{sX}, s2, 7
    v_readfirstlane_b32 s{sW}, v{vT}
    s_lshr_b32 s{sJ}, s2, 3
    """)
    if wmap == 1: a(f"""
    s_lshr_b32 s{sT0}, s{sJ}, 4
    s_lshl_b32 s{sH}, s{sX}, 1
    s_add_u32 s{sH}, s{sH}, s{sT0}
    s_lshr_b32 s{sB}, s{sJ}, 3
    s_and_b32 s{sB}, s{sB}, 1
    s_and_b32 s{sS}, s{sJ}, 7
    """)
    elif wmap == 0: a(f"""
    s_and_b32 s{sH}, s{sJ}, 15
    s_lshr_b32 s{sB}, s{sJ}, 4
    s_xor_b32 s{sS}, s{sX}, {fpar}
    """)
    elif wmap == 4: a(f"""
    s_and_b32 s{sT0}, s{sJ}, 3
    s_lshr_b32 s{sH}, s{sX}, 1
    s_lshl_b32 s{sH}, s{sH}, 2
    s_add_u32 s{sH}, s{sH}, s{sT0}
    s_lshr_b32 s{sB}, s{sJ}, 4
    s_lshr_b32 s{sS}, s{sJ}, 1
    s_and_b32 s{sS}, s{sS}, 6
    s_and_b32 s{sT0}, s{sX}, 1
    s_xor_b32 s{sT0}, s{sT0}, {fpar}
    s_or_b32 s{sS}, s{sS}, s{sT0}
    """)
    a(f"""
    s_lshl_b32 s{sJJ}, s{sB}, 3
    s_add_u32 s{sJJ}, s{sJJ}, s{sS}
    s_lshl_b32 s{sBH}, s{sB}, 4
    s_add_u32 s{sBH}, s{sBH}, s{sH}
    s_and_b32 s{sT0}, s{sS}, 1
    s_lshl_b32 s{sT0}, s{sT0}, 4
    s_xor_b32 s{sHF}, s{sH}, {hx}
    s_or_b32 s{sT0}, s{sT0}, s{sHF}
    s_cmp_lt_u32 s{sT0}, 14
    s_cselect_b32 s{sFF}, 1, 0
    v_and_b32 v{n}, 15, v{vL}
    v_lshrrev_b32 v{g}, 4, v{vL}
    v_and_b32 v{vT}, 7, v{vL}
    v_lshlrev_b32 v{vKo}, 9, v{vT}
    v_lshl_add_u32 v{vKo}, v{g}, 4, v{vKo}
    v_and_b32 v{vT}, 8, v{vL}
    v_lshl_add_u32 v{vKo}, v{vT}, 3, v{vKo}
    {HSW}
    s_xor_b32 s{sT2}, s{sT2}, s{sW}
    s_and_b32 s{sT2}, s{sT2}, 15
    s_lshl_b32 s{sT2}, s{sT2}, 14
    {SWZ}
    s_and_b32 s{sT3}, s{sT3}, 3
    s_lshl_b32 s{sT1}, s{sT3}, 12
    s_or_b32 s{sKT}, s{sT2}, s{sT1}
    s_xor_b32 s{sKT+1}, s{sKT}, 4096
    s_xor_b32 s{sKT+2}, s{sKT}, 8192
    s_xor_b32 s{sKT+3}, s{sKT}, 12288
    s_lshl_b32 s{sKV}, s{sBH}, 21
    s_lshl_b32 s{sT1}, s{sS}, 18
    s_add_u32 s{sKV}, s{sKV}, s{sT1}
    s_mov_b32 s{sK+2}, 262144
    s_mov_b32 s{sK+3}, 0x00020000
    s_mov_b32 s{sV+2}, 262144
    s_mov_b32 s{sV+3}, 0x00020000
    s_mov_b32 s{sWS+2}, {WS_USED}
    s_mov_b32 s{sWS+3}, 0x00020000
    s_mov_b32 s{sWA+3}, 0x00020000
    s_mov_b32 s{sHI}, 0xffff0000
    s_cmp_le_u32 s{sW}, s{sFF}
    s_cbranch_scc1 L_stage1
    s_waitcnt lgkmcnt(0)
    s_add_u32 s{sK}, s18, s{sKV}
    s_addc_u32 s{sK+1}, s19, 0
    """)
    if early: a("s_memrealtime s[70:71]")
    if pf:
        a(f"""
        s_cmp_lg_u32 s{sW}, 3
        s_cbranch_scc1 L_nopf
        s_lshl_b32 s{sT0}, s{sH}, 3
        s_add_u32 s{sT0}, s{sT0}, s{sS}
        s_mul_i32 s{sT0}, s{sT0}, {16*896}
        s_mul_i32 s{sT1}, s{sT0}, s{sFF}
        s_lshl_b32 s{sT0}, s{sT0}, 1
        v_mov_b32 v64, s{sKV}
        v_mov_b32 v65, s{sT0}
        v_mov_b32 v66, s{sT1}
        v_mov_b32 v67, {OB_OFF}
        s_mov_b64 exec, 1
        global_load_dword v68, v64, s[20:21] nt
        global_load_dword v69, v65, s[24:25] nt
        global_load_dword v70, v66, s[32:33] nt
        global_load_dword v71, v67, s[42:43] nt
        s_mov_b64 exec, -1
        """)
        a.label("L_nopf")
    if b0: a("s_barrier")
    for f in range(16):
        kload(f)
        if BL and f % BL == BL - 1 and f < 15: a("s_nop 0")
    if cpf:
        a(f"""
        s_cmp_lg_u32 s{sW}, 2
        s_cbranch_scc1 L_nocpf
        s_cmp_ge_u32 s2, {8*cpf}
        s_cbranch_scc1 L_nocpf
        s_getpc_b64 s[70:71]
        v_lshlrev_b32 v64, 7, v{vL}
        s_mov_b32 exec_hi, 0xfff
        global_load_dword v65, v64, s[70:71]
        s_mov_b64 exec, -1
        """)
        a.label("L_nocpf")
    setup2()
    if early:
        a("s_mov_b32 s%d, s70" % STR[9])
        stamp(7)
        a("s_waitcnt vmcnt(15)")
        stamp(10)
    a.label("L_kdone"); a.forget()
    a(f"""
    v_lshlrev_b32 v{vVo}, 11, v{g}
    v_lshl_add_u32 v{vVo}, v{n}, 4, v{vVo}
    s_and_b32 s{sT1}, s{sKT}, 4096
    v_xor_b32 v{vVo}, s{sT1}, v{vVo}
    s_andn2_b32 s{sVG}, s{sKT}, 4096
    s_xor_b32 s{sVG+1}, s{sVG}, 8192
    """)
    for idx in range(NPRE): vload(idx)
    a(f"""
    s_mov_b32 s{sC}, {f32(1.4426950408889634/16)}
    s_movk_i32 s{s3584}, 3584
    s_lshr_b32 s{sRole}, s{sW}, 2
    s_lshl_b32 s{sT0}, s{sH}, 3
    s_add_u32 s{sT0}, s{sT0}, s{sS}
    s_mul_i32 s{sT0}, s{sT0}, {32*896}
    s_lshl_b32 s{sT1}, s{sHF}, 3
    s_add_u32 s{sT1}, s{sT1}, s{sS}
    s_mul_i32 s{sT1}, s{sT1}, {16*896}
    s_mul_i32 s{sT1}, s{sT1}, s{sFF}
    s_cmp_eq_u32 s{sRole}, 1
    s_cselect_b32 s{sT0}, s{sT0}, s{sT1}
    s_cselect_b32 s{sT2}, s24, s32
    s_cselect_b32 s{sT3}, s25, s33
    s_add_u32 s{sWB}, s{sT2}, s{sT0}
    s_addc_u32 s{sWB+1}, s{sT3}, 0
    s_mov_b32 s{sWB+2}, 28672
    s_mov_b32 s{sWB+3}, 0x00020000
    s_lshl_b32 s{sT0}, s{sFF}, 1
    s_cmp_eq_u32 s{sRole}, 2
    s_cselect_b32 s{sRole}, s{sT0}, s{sRole}
    v_and_b32 v{vT}, 8, v{vL}
    v_lshlrev_b32 v{vT}, 3, v{vT}
    v_lshl_add_u32 v{vT}, v{g}, 4, v{vT}
    v_mul_u32_u24 v{vKo}, 7168, v{g}
    v_lshl_add_u32 v{vKo}, v{n}, 4, v{vKo}
    s_and_b32 s{sT0}, s{sW}, 3
    s_lshl_b32 s{sT1}, s{sT0}, 8
    v_add_u32 v{vKo}, s{sT1}, v{vKo}
    s_cmp_eq_u32 s{sT0}, 3
    s_cselect_b32 s{sT0}, 8, 0
    v_and_b32 v{vS}, s{sT0}, v{vL}
    v_lshl_or_b32 v{vKo}, v{vS}, 27, v{vKo}
    """)
    a(f"""
    """)
    if rsp == 0: a(f"""
    s_lshl_b32 s{sRed}, s{sH}, 2
    s_lshr_b32 s{sT0}, s{sS}, 1
    s_add_u32 s{sRed}, s{sRed}, s{sT0}
    s_bitcmp1_b32 s{sS}, 0
    s_cselect_b32 s{sRed}, s{sRed}, 99
    """)
    if rsp == 1: a(f"""
    s_lshl_b32 s{sRed}, s{sH}, 1
    s_lshr_b32 s{sT0}, s{sS}, 1
    s_add_u32 s{sRed}, s{sRed}, s{sT0}
    s_and_b32 s{sT0}, s{sS}, 5
    s_cmp_eq_u32 s{sT0}, 1
    s_cselect_b32 s{sRed}, s{sRed}, 99
    """)
    if rsp == 2: a(f"""
    s_lshl_b32 s{sRed}, s{sH}, 1
    s_add_u32 s{sRed}, s{sRed}, s{sS}
    s_cmp_lt_u32 s{sS}, 2
    s_cselect_b32 s{sRed}, s{sRed}, 99
    """)
    a(f"""
    s_cmp_lg_u32 s{sW}, 2
    s_cbranch_scc1 L_noz
    v_mov_b32 v{vS}, 0
    v_mov_b32 v{vS+1}, 0
    v_mov_b32 v{vS+2}, 0
    v_mov_b32 v{vS+3}, 0
    v_lshlrev_b32 v{vS+4}, 4, v{vL}
    ds_write_b128 v{vS+4}, {R(vS)} offset:{L_YP}
    ds_write_b32 v{vS}, v{vS} offset:{L_CNT}
    """)
    a.label("L_noz")
    if stamps:
        a(f"""
        s_lshl_b32 s{sTSo}, s2, 4
        s_add_u32 s{sTSo}, s{sTSo}, s{sW}
        s_lshl_b32 s{sTSo}, s{sTSo}, 6
        s_add_u32 s{sTSo}, s{sTSo}, {TS_OFF}
        """)
    if amp >= 200:
        a(f"""
        s_lshl_b32 s11, s2, 4
        s_add_u32 s11, s11, s{sW}
        s_cmp_lg_u32 s11, 1
        s_cbranch_scc1 L_nts
        v_mov_b32 v{vQ}, s15
        s_mov_b32 s12, {TS_OFF}
        buffer_store_dword v{vQ}, off, {S(sWS)}, s12 sc1
        """)
        a.label("L_nts")
    stamp(0)
    a("s_waitcnt lgkmcnt(0)")
    a("s_barrier")
    assert NPRE <= 4
    qb = [80, 84, 88, 92]
    for i in range(4): a(f"ds_read_b128 {R(qb[i])}, v{vT} offset:{L_Q+128*i}")
    a(f"s_sub_u32 s{sT0}, s{sRole}, 1")
    a(f"s_waitcnt vmcnt({NPRE})")
    stamp(1)
    acc = [vS, vS + 4, vQ, vQ + 4]
    for i in range(4):
        a(f"s_waitcnt lgkmcnt({3-i})")
        for u in range(4):
            c = "0" if i == 0 else R(acc[u])
            a(f"v_mfma_f32_16x16x32_bf16 {R(acc[u])}, {R(4*(4*u+i))}, {R(qb[i])}, {c}")
    a(f"""
    {f"s_cmp_lg_u32 s{sT0}, 1" if wl else f"s_cmp_gt_u32 s{sT0}, 1"}
    s_cbranch_scc1 L_now
    """)
    for t in range(8):
        so_ = "0" if t < 4 else f"s{s3584}"
        a(f"buffer_load_dwordx4 {R(32+4*t)}, v{vKo}, {S(sWB)}, {so_} offen offset:{896*(t%4)}{WP}")
    a.label("L_now")
    NB2 = NPRE + NMID
    for idx in range(NPRE, NB2): vload(idx)
    a(f"""
    s_cmp_eq_u32 s{sW}, 3
    s_cbranch_scc1 L_ldgate
    """)
    a.label("L_sm")
    a("s_nop 1")
    for r in range(4): a(f"v_permlane32_swap_b32 v{acc[0]+r}, v{acc[1]+r}")
    for r in range(4): a(f"v_permlane32_swap_b32 v{acc[2]+r}, v{acc[3]+r}")
    for r in range(4): a(f"v_add_f32_dpp v{vS+r}, v{acc[1]+r}, v{acc[0]+r} row_ror:8 {DPPF}")
    for r in range(4): a(f"v_add_f32_dpp v{vS+4+r}, v{acc[3]+r}, v{acc[2]+r} row_ror:8 {DPPF}")
    for k in range(0, 8, 2): a(f"v_cvt_pk_bf16_f32 v{vA+k//2}, v{vS+k}, v{vS+k+1}")
    for k in range(4): a(f"v_mov_b32_dpp v{vA+k}, v{vA+k} row_ror:8 row_mask:0xf bank_mask:0xc")
    for k in range(0, 8, 2):
        a(f"v_lshlrev_b32 v{vS+k}, 16, v{vA+k//2}")
        a(f"v_and_b32 v{vS+k+1}, s{sHI}, v{vA+k//2}")
    m, t1, l, mc = vA, vA + 1, vA + 2, vA + 3
    a(f"""
    v_max3_f32 v{m}, v{vS}, v{vS+1}, v{vS+2}
    v_max3_f32 v{t1}, v{vS+3}, v{vS+4}, v{vS+5}
    v_max3_f32 v{m}, v{m}, v{vS+6}, v{vS+7}
    v_max_f32 v{m}, v{m}, v{t1}
    v_mov_b32 v{t1}, v{m}
    v_permlane16_swap_b32 v{m}, v{t1}
    v_max_f32 v{m}, v{m}, v{t1}
    v_mov_b32 v{t1}, v{m}
    v_permlane32_swap_b32 v{m}, v{t1}
    v_max_f32 v{m}, v{m}, v{t1}
    v_mul_f32 v{mc}, s{sC}, v{m}
    """)
    for k in range(8): a(f"v_fma_f32 v{vS+k}, v{vS+k}, s{sC}, -v{mc}")
    for k in range(8): a(f"v_exp_f32 v{vS+k}, v{vS+k}")
    a(f"""
    v_add_f32 v{l}, v{vS}, v{vS+1}
    v_add_f32 v{t1}, v{vS+2}, v{vS+3}
    v_add_f32 v{l}, v{l}, v{vS+4}
    v_add_f32 v{t1}, v{t1}, v{vS+5}
    v_add_f32 v{l}, v{l}, v{vS+6}
    v_add_f32 v{t1}, v{t1}, v{vS+7}
    v_add_f32 v{l}, v{l}, v{t1}
    v_mov_b32 v{t1}, v{l}
    v_permlane16_swap_b32 v{l}, v{t1}
    v_add_f32 v{l}, v{l}, v{t1}
    v_mov_b32 v{t1}, v{l}
    v_permlane32_swap_b32 v{l}, v{t1}
    v_add_f32 v{t1}, v{l}, v{t1}
    s_lshl_b32 s{sT0}, s{sW}, 3
    v_mov_b32 v{vT}, s{sT0}
    ds_write_b64 v{vT}, {R(m,2)} offset:{L_ML}
    v_and_b32 v{vT}, 15, v{vL}
    v_lshlrev_b32 v{vT}, 3, v{vT}
    v_mov_b32 v{l}, 0
    s_waitcnt lgkmcnt(0)
    s_barrier
    ds_read_b64 {R(vO+4,2)}, v{vT} offset:{L_ML}
    ds_read_b32 v{vKo}, v{l} offset:{L_TAG}
    """)
    if wl: a("s_setprio 1")
    for idx in range(NB2, 16): vload(idx)
    a("s_waitcnt lgkmcnt(0)")
    a(f"v_readfirstlane_b32 s{sTag}, v{vKo}")
    stamp(2)
    mi, li, M, L = vO + 4, vO + 5, vO, vO + 2
    a(f"v_mov_b32 v{M}, v{mi}")
    for k in (8, 4, 2, 1): a(f"v_max_f32_dpp v{M}, v{M}, v{M} row_ror:{k} {DPPF}")
    a(f"""
    v_sub_f32 v{m}, v{m}, v{M}
    v_mul_f32 v{m}, s{sC}, v{m}
    v_exp_f32 v{m}, v{m}
    s_cmp_eq_u32 s{sW}, 2
    s_cbranch_scc1 L_stat
    """)
    a.label("L_nostat")
    a(f"""
    v_and_b32 v{t1}, 8, v{vL}
    v_cmp_ne_u32 vcc, 0, v{t1}
    v_mov_b32 v{t1}, s{sHI}
    v_cndmask_b32 v{t1}, 0, v{t1}, vcc
    """)
    for k in range(8): a(f"v_mul_f32 v{vS+k}, v{vS+k}, v{m}")
    for k in range(8):
        tt = vA + 4 + (k & 3)
        a(f"v_cvt_pk_bf16_f32 v{tt}, v{vS+k}, v{vS+k}")
        a(f"v_and_b32 v{tt}, v{t1}, v{tt}")
        a(f"v_sub_f32 v{vS+k}, v{vS+k}, v{tt}")
        a(f"v_cvt_pk_bf16_f32 v{vS+k}, v{vS+k}, v{vS+k}")
    for t in range(4):
        ab = vA + 4 * (t & 1)
        for r in range(4): a(f"v_and_b32 v{ab+r}, v{vS+t}, v{vMask+r}")
        a(f"s_waitcnt vmcnt({14-2*t})")
        for hf in range(2):
            c = "0" if t == 0 else R(vO + 4 * hf)
            a(f"v_mfma_f32_16x16x32_bf16 {R(vO+4*hf)}, {R(ab)}, {R(64+4*(2*t+hf))}, {c}")
    stamp(3)
    for t in range(4):
        for r in range(4): a(f"v_and_b32 v{64+4*t+r}, v{vS+4+t}, v{vMask+r}")
    g, n = vA, vA + 1
    vTag = vKo; vSel = vVo
    a(f"""
    v_lshrrev_b32 v{g}, 4, v{vL}
    v_and_b32 v{n}, 15, v{vL}
    s_lshl_b32 s{sT0}, s{sW}, 10
    v_lshrrev_b32 v83, 5, v{vL}
    v_lshlrev_b32 v83, 9, v83
    v_lshl_add_u32 v83, v{n}, 5, v83
    v_and_b32 v{vT}, 16, v{vL}
    v_add3_u32 v83, v83, v{vT}, s{sT0}
    v_and_b32 v82, 31, v{vL}
    v_lshlrev_b32 v82, 2, v82
    v_lshrrev_b32 v81, 5, v{vL}
    v_lshl_add_u32 v81, v81, 13, v82
    s_and_b32 s{sT1}, s{sW}, 7
    s_lshl_b32 s{sT0}, s{sT1}, 7
    v_add_u32 v81, s{sT0}, v81
    v_and_b32 v{vSel}, 3, v{vL}
    v_add_u32 v{vSel}, 0x07060500, v{vSel}
    v_mov_b32 v80, 0
    s_lshl_b32 s{sP0}, s{sBH}, 3
    s_add_u32 s{sP0}, s{sP0}, s{sT1}
    s_lshl_b32 s{sP0}, s{sP0}, 3
    s_add_u32 s{sP0}, s{sP0}, s{sS}
    s_lshl_b32 s{sP0}, s{sP0}, 7
    s_add_u32 s{sP0}, s{sP0}, {OB_OFF}
    s_cmp_eq_u32 s{sRole}, 1
    s_cbranch_scc1 L_mid1
    s_cmp_eq_u32 s{sRole}, 2
    s_cbranch_scc1 L_mid2
    s_cmp_ge_u32 s{sW}, 8
    s_cbranch_scc1 L_mid3
    s_cmp_eq_u32 s{sW}, 3
    s_cbranch_scc1 L_gate
    """)
    if ywarm == 2: a(f"""
    s_cmp_eq_u32 s{sW}, 1
    s_cbranch_scc1 L_ywarm
    """)
    a.label("L_pv2"); a.forget()
    for t in range(4):
        a(f"s_waitcnt vmcnt({6-2*t})")
        for hf in range(2):
            a(f"v_mfma_f32_16x16x32_bf16 {R(vO+4*hf)}, {R(64+4*t)}, {R(4*(2*t+hf))}, {R(vO+4*hf)}")
    if ack: stamp(0)
    a(f"s_cmp_lt_u32 s{sW}, 8")
    for r in range(4): a(f"v_permlane32_swap_b32 v{vO+r}, v{vO+4+r}")
    for r in range(4): a(f"v_add_f32 v{vO+r}, v{vO+r}, v{vO+4+r}")
    a(f"""
    ds_write_b128 v83, {R(vO)} offset:{L_OW}
    s_cbranch_scc1 L_low
    {"s_setprio 3" if tp else "s_nop 0"}
    s_waitcnt lgkmcnt(0)
    s_barrier
    """)
    for i in range(4): a(f"ds_read2st64_b32 {R(2*i,2)}, v81 offset0:{L_OW//256+8*i} offset1:{L_OW//256+8*i+4}")
    a(f"""
    s_waitcnt lgkmcnt(2)
    v_add_f32 v0, v0, v1
    v_add_f32 v2, v2, v3
    s_waitcnt lgkmcnt(0)
    v_add_f32 v4, v4, v5
    v_add_f32 v6, v6, v7
    v_add_f32 v0, v0, v2
    v_add_f32 v4, v4, v6
    v_add_f32 v0, v0, v4
    v_mov_b32 v1, v0
    v_permlane32_swap_b32 v0, v1
    v_add_f32 v0, v0, v1
    v_perm_b32 v0, v0, v{vTag}, v{vSel}
    s_mov_b32 exec_hi, 0
    buffer_store_dword v0, v82, {S(sWS)}, s{sP0} offen sc1
    """)
    stamp(4)
    a(f"""
    s_cmp_lt_u32 s{sRed}, 28
    s_cbranch_scc1 L_reduce
    """)
    endpgm()
    a.label("L_low"); a.forget()
    a(f"""
    s_cmp_eq_u32 s{sRole}, 1
    s_cbranch_scc1 L_gemv1
    s_waitcnt lgkmcnt(0)
    s_barrier
    """)
    if xs: endpgm()
    a(f"""
    s_add_u32 s{sT0}, s{sRed}, s{sB}
    s_add_u32 s{sT0}, s{sT0}, s{sW}
    s_max_u32 s{sT1}, s{sRed}, 28
    s_cmp_lg_u32 s{sT1}, s{sRed}
    s_cselect_b32 s{sT0}, 99, s{sT0}
    s_cmp_eq_u32 s{sT0}, 28
    s_cbranch_scc1 L_epoch
    """)
    endpgm()

    a.label("L_gemv1"); a.forget()
    cf = 123
    def oload(): a(f"buffer_load_dwordx4 {R(0)}, v122, {S(sWS)}, s{sP1} offen sc1")
    a(f"s_mov_b32 s{sCnt}, 0")
    a.label("L_stchk")
    a(f"""
    v_cmp_ne_u32 vcc, s{sTag}, v85
    v_cmp_ne_u32 {S(sM,2)}, s{sTag}, v87
    s_or_b64 vcc, vcc, {S(sM,2)}
    s_cbranch_vccz L_stok
    s_add_u32 s{sCnt}, s{sCnt}, 1
    s_cmp_gt_u32 s{sCnt}, {LIM}
    s_cbranch_scc1 L_stok
    buffer_load_dwordx4 {R(84)}, v89, {S(sWS)}, s{sT3} offen sc1
    s_waitcnt vmcnt(0)
    s_branch L_stchk
    """)
    a.label("L_stok"); a.forget()
    M = vA
    a(f"v_mov_b32 v{M}, v84")
    for d in Q8: a(f"v_max_f32_dpp v{M}, v{M}, v{M} {d} {DPPF}")
    a(f"""
    v_sub_f32 v{cf}, v84, v{M}
    v_mul_f32 v{cf}, s{sC}, v{cf}
    v_exp_f32 v{cf}, v{cf}
    v_mul_f32 v{M}, v{cf}, v86
    """)
    for d in Q8: a(f"v_add_f32_dpp v{M}, v{M}, v{M} {d} {DPPF}")
    a(f"""
    v_rcp_f32 v{M}, v{M}
    v_mul_f32 v{cf}, v{cf}, v{M}
    s_mov_b32 s{sCnt}, 0
    s_cmp_eq_u32 s{sFF}, 0
    """)
    def wol(t):
        so_ = "0" if t < 4 else f"s{s3584}"
        a(f"buffer_load_dwordx4 {R(32+4*t)}, v121, {S(sWB)}, {so_} offen offset:{896*(t%4)}{WP}")
    if wl:
        a("s_setprio 0")
        for t in range(wpre): wol(t)
        a("s_setprio 2")
    a(f"""
    s_waitcnt lgkmcnt(0)
    s_barrier
    """)
    if xs: endpgm()
    if wl:
        for t in range(wpre, 8): wol(t)
    oload()
    a(f"""
    ds_read_b64 {R(90,2)}, v80 offset:{L_GG}
    s_cbranch_scc1 L_nof
    ds_read_b128 {R(92)}, v120 offset:{L_F}
    """)
    a.label("L_nof")
    a("s_waitcnt lgkmcnt(0)")
    for r in range(4): a(f"v_mul_f32 v{92+r}, v{92+r}, v91")
    a("s_waitcnt vmcnt(0)")
    a.label("L_ochk"); a.forget()
    tag_chk(0, 4, 5)
    a(f"""
    s_cbranch_vccz L_ook
    s_mov_b64 exec, vcc
    """)
    if osl: a(f"s_sleep {osl}")
    oload()
    a(f"""
    s_mov_b64 exec, -1
    s_add_u32 s{sCnt}, s{sCnt}, 1
    s_waitcnt vmcnt({pipe})
    s_cmp_gt_u32 s{sCnt}, {LIM}
    s_cbranch_scc0 L_ochk
    """)
    a.label("L_ook"); a.forget()
    stamp(5)
    tag_clr(0, 24)
    for r in range(4): a(f"v_mul_f32 v{24+r}, v{24+r}, v{cf}")
    for d in Q8:
        for r in range(4): a(f"v_add_f32_dpp v{24+r}, v{24+r}, v{24+r} {d} {DPPF}")
    for r in range(4): a(f"v_cvt_pk_bf16_f32 v{24+r}, v{24+r}, v{24+r}")
    for r in range(4): a(f"v_mov_b32_dpp v{28+r}, v{24+r} row_ror:8 {DPPF}")
    for t in range(8):
        ab = 8 + 4 * (t % 4)
        for r in range(4): a(f"v_and_b32 v{ab+r}, v{24+t}, v{vMask+r}")
        c = "0" if t == 0 else R(vO)
        a(f"v_mfma_f32_16x16x32_bf16 {R(vO)}, {R(ab)}, {R(32+4*t)}, {c}")
    a("s_mov_b32 exec_hi, 0")
    for r in range(4): a(f"v_fma_f32 v{vO+r}, v{vO+r}, v90, v{92+r}")
    tag_put(vO, vTag)
    a(f"buffer_store_dwordx4 {R(vO)}, v88, {S(sWS)}, s{sP2} offen sc1")
    stamp(6)
    if ack:
        a("s_waitcnt vmcnt(0)")
        stamp(9)
    endpgm()

    a.label("L_reduce"); a.forget()
    def yload(base=8): a(f"buffer_load_dwordx4 {R(base)}, v84, {S(sWS)}, s{sP1} offen sc1")
    a("s_mov_b64 exec, -1")
    if tp: a("s_setprio 0")
    yload()
    a(f"s_mov_b32 s{sCnt}, 0")
    a.label("L_ypoll"); a.forget()
    a("s_waitcnt vmcnt(0)")
    tag_chk(8, 4, 5)
    a(f"""
    s_cbranch_vccz L_yok
    s_mov_b64 exec, vcc
    """)
    if psl: a(f"s_sleep {psl}")
    yload()
    a(f"""
    s_mov_b64 exec, -1
    s_add_u32 s{sCnt}, s{sCnt}, 1
    s_cmp_gt_u32 s{sCnt}, {LIM}
    s_cbranch_scc0 L_ypoll
    s_waitcnt vmcnt(0)
    """)
    a.label("L_yok"); a.forget()
    stamp(7)
    tag_clr(8)
    allred4(8, 0, ROW16)
    a(f"""
    s_mov_b64 exec, {S(sM,2)}
    ds_write_b128 v85, {R(8)} offset:{L_YP}
    s_mov_b64 exec, 1
    ds_add_rtn_u32 v4, v80, v86 offset:{L_CNT}
    s_mov_b64 exec, -1
    ds_read_b128 {R(12)}, v84 offset:{L_YP}
    s_waitcnt lgkmcnt(1)
    v_readfirstlane_b32 s{sT0}, v4
    s_cmp_lg_u32 s{sT0}, 7
    s_cbranch_scc1 L_yend
    s_waitcnt lgkmcnt(0)
    """)
    allred4(12, 0, ROW16)
    a(f"""
    v_cvt_pk_bf16_f32 v12, v12, v13
    v_cvt_pk_bf16_f32 v13, v14, v15
    s_mov_b64 exec, {S(sM,2)}
    global_store_dwordx2 v90, {R(12,2)}, s[38:39] {opol}
    """)
    stamp(8)
    a.label("L_yend")
    endpgm()
    a.label("L_epoch"); a.forget()
    a(f"""
    s_mov_b32 s{sCnt}, 0
    v_lshlrev_b32 v84, 4, v{vL}
    s_movk_i32 s{sT3}, {ST_OFF}
    """)
    a.label("L_fchk")
    for i in range(4):
        a(f"buffer_load_dwordx4 {R(32+4*i)}, v84, {S(sWS)}, s{sT3} offen offset:{1024*i} sc1")
    a("s_waitcnt vmcnt(0)")
    for i in range(4): a(f"v_xor_b32 v{33+4*i}, s{sTag}, v{33+4*i}")
    a(f"""
    v_or3_b32 v33, v33, v37, v41
    v_or_b32 v33, v33, v45
    v_cmp_ne_u32 vcc, 0, v33
    s_cbranch_vccz L_fok
    s_add_u32 s{sCnt}, s{sCnt}, 1
    s_cmp_gt_u32 s{sCnt}, {LIM}
    s_cbranch_scc0 L_fchk
    """)
    a.label("L_fok"); a.forget()
    a(f"""
    s_mov_b64 exec, 1
    buffer_store_dword v{vTag}, off, {S(sWS)}, 0 offset:{EP_OFF} sc1
    """)
    endpgm()

    a.label("L_stat"); a.forget()
    mi, li, M, L = vO + 4, vO + 5, vO, vO + 2
    a(f"""
    v_sub_f32 v{mi}, v{mi}, v{M}
    v_mul_f32 v{mi}, s{sC}, v{mi}
    v_exp_f32 v{mi}, v{mi}
    v_mul_f32 v{L}, v{li}, v{mi}
    """)
    for k in (8, 4, 2, 1): a(f"v_add_f32_dpp v{L}, v{L}, v{L} row_ror:{k} {DPPF}")
    a(f"""
    v_mov_b32 v{M+1}, s{sTag}
    v_mov_b32 v{L+1}, s{sTag}
    s_lshl_b32 s{sT0}, s{sBH}, 3
    s_add_u32 s{sT0}, s{sT0}, s{sS}
    s_lshl_b32 s{sT0}, s{sT0}, 4
    s_add_u32 s{sT0}, s{sT0}, {ST_OFF}
    s_mov_b64 exec, 1
    buffer_store_dwordx4 {R(M)}, off, {S(sWS)}, s{sT0} sc1
    s_mov_b64 exec, -1
    s_branch L_nostat
    """)
    a.label("L_mid1"); a.forget()
    a(f"""
    v_and_b32 v{vT}, 7, v{vL}
    v_lshlrev_b32 v89, 4, v{vT}
    s_lshl_b32 s{sT3}, s{sBH}, 7
    s_add_u32 s{sT3}, s{sT3}, {ST_OFF}
    v_lshlrev_b32 v122, 7, v{vT}
    v_lshl_add_u32 v122, v{g}, 5, v122
    v_bfe_u32 v{vT}, v{vL}, 3, 1
    v_lshl_add_u32 v122, v{vT}, 4, v122
    s_lshl_b32 s{sP1}, s{sBH}, 3
    s_add_u32 s{sP1}, s{sP1}, s{sS}
    s_lshl_b32 s{sP1}, s{sP1}, 10
    s_add_u32 s{sP1}, s{sP1}, {OB_OFF}
    buffer_load_dwordx4 {R(84)}, v89, {S(sWS)}, s{sT3} offen sc1
    s_and_b32 s{sT0}, s{sW}, 3
    s_cmp_lg_u32 s{sT0}, 0
    s_cbranch_scc1 L_mid1b
    buffer_load_dwordx4 {R(vS)}, v122, {S(sWS)}, s{sP1} offen sc1
    """)
    a.label("L_mid1b")
    a(f"""
    s_lshl_b32 s{sT1}, s{sT0}, 10
    v_lshlrev_b32 v120, 4, v{vL}
    v_add_u32 v120, s{sT1}, v120
    v_lshrrev_b32 v88, 1, v{n}
    v_mul_u32_u24 v88, {YST}, v88
    v_and_b32 v{vT}, 1, v{n}
    v_lshl_add_u32 v88, v{vT}, 5, v88
    v_and_b32 v{vT}, 16, v{vL}
    v_add_u32 v88, v88, v{vT}
    s_mul_i32 s{sP2}, s{sB}, 28
    s_lshl_b32 s{sT1}, s{sT0}, 3
    s_add_u32 s{sP2}, s{sP2}, s{sT1}
    s_mul_i32 s{sP2}, s{sP2}, {YST}
    s_lshl_b32 s{sT1}, s{sH}, 3
    s_add_u32 s{sT1}, s{sT1}, s{sS}
    s_lshl_b32 s{sT1}, s{sT1}, {YSH}
    s_add_u32 s{sP2}, s{sP2}, s{sT1}
    s_add_u32 s{sP2}, s{sP2}, {YB_OFF}
    s_cmp_eq_u32 s{sT0}, 3
    s_cselect_b32 s{sT0}, 8, 0
    v_and_b32 v{vT}, s{sT0}, v{vL}
    v_lshl_or_b32 v88, v{vT}, 27, v88
    v_mul_u32_u24 v121, 7168, v{g}
    v_lshl_add_u32 v121, v{n}, 4, v121
    v_lshl_or_b32 v121, v{vT}, 27, v121
    s_and_b32 s{sT0}, s{sW}, 3
    s_lshl_b32 s{sT0}, s{sT0}, 8
    v_add_u32 v121, s{sT0}, v121
    v_mov_b32 v92, 0
    v_mov_b32 v93, 0
    v_mov_b32 v94, 0
    v_mov_b32 v95, 0
    s_branch L_pv2
    """)
    a.label("L_mid2"); a.forget()
    a(f"""
    v_lshlrev_b32 v{vT}, 5, v{g}
    ds_read_b128 {R(84)}, v{vT} offset:{L_R2}
    ds_read_b128 {R(88)}, v{vT} offset:{L_R2+16}
    s_waitcnt lgkmcnt(0)
    """)
    for t in range(8): a(f"v_cvt_pk_bf16_f32 v{84+t}, v{84+t}, v{84+t}")
    for t in range(8):
        ab = vA + 4 * (t & 1)
        for r in range(4): a(f"v_and_b32 v{ab+r}, v{84+t}, v{vMask+r}")
        c = "0" if t == 0 else R(92)
        a(f"v_mfma_f32_16x16x32_bf16 {R(92)}, {R(ab)}, {R(32+4*t)}, {c}")
    a(f"""
    s_and_b32 s{sT0}, s{sW}, 3
    s_lshl_b32 s{sT1}, s{sT0}, 10
    v_lshlrev_b32 v{vT}, 4, v{vL}
    v_add_u32 v{vT}, s{sT1}, v{vT}
    ds_write_b128 v{vT}, {R(92)} offset:{L_F}
    v_lshrrev_b32 v{g}, 4, v{vL}
    v_and_b32 v{n}, 15, v{vL}
    """)
    a.label("L_mid3"); a.forget()
    assert YS == 64
    a(f"""
    s_cmp_ge_u32 s{sRed}, 28
    s_cbranch_scc1 L_pv2
    v_lshlrev_b32 v84, 6, v{n}
    v_lshl_add_u32 v84, v{g}, 4, v84
    s_mov_b32 s{sM}, 0x00010001
    s_mov_b32 s{sM+1}, 0x00010001
    s_and_b32 s{sT1}, s{sW}, 7
    s_lshl_b32 s{sT0}, s{sT1}, 6
    v_lshlrev_b32 v85, 4, v{g}
    v_add_u32 v85, s{sT0}, v85
    v_mov_b32 v86, 1
    s_lshl_b32 s{sT0}, s{sRed}, 5
    s_mul_i32 s{sT2}, s{sB}, 896
    s_add_u32 s{sT0}, s{sT0}, s{sT2}
    v_lshlrev_b32 v90, 3, v{g}
    v_add_u32 v90, s{sT0}, v90
    s_mul_i32 s{sP1}, s{sB}, 28
    s_add_u32 s{sP1}, s{sP1}, s{sRed}
    s_mul_i32 s{sP1}, s{sP1}, {YST}
    s_lshl_b32 s{sT1}, s{sT1}, 10
    s_add_u32 s{sP1}, s{sP1}, s{sT1}
    s_add_u32 s{sP1}, s{sP1}, {YB_OFF}
    """)
    if ywarm == 1: yload(32)
    a("s_branch L_pv2")
    if ywarm == 2:
        a.label("L_ywarm"); a.forget()
        a(f"""
        s_cmp_ge_u32 s{sRed}, 28
        s_cbranch_scc1 L_pv2
        s_mul_i32 s{sP1}, s{sB}, 28
        s_add_u32 s{sP1}, s{sP1}, s{sRed}
        s_mul_i32 s{sP1}, s{sP1}, {YST}
        s_add_u32 s{sP1}, s{sP1}, {YB_OFF}
        v_lshlrev_b32 v84, 7, v{vL}
        buffer_load_dword v32, v84, {S(sWS)}, s{sP1} offen sc1
        s_branch L_pv2
        """)
    a.label("L_gate"); a.forget()
    xa, ga = 32, 36
    a("v_mov_b32 v44, 0")
    for r in range(4):
        a(f"""
        v_lshlrev_b32 v40, 16, v{xa+r}
        v_and_b32 v41, s{sHI}, v{xa+r}
        v_lshlrev_b32 v42, 16, v{ga+r}
        v_and_b32 v43, s{sHI}, v{ga+r}
        v_mul_f32 v40, v40, v42
        v_mul_f32 v41, v41, v43
        v_cvt_pk_bf16_f32 v40, v40, v41
        v_lshlrev_b32 v41, 16, v40
        v_and_b32 v40, s{sHI}, v40
        v_add_f32 v44, v44, v41
        v_add_f32 v44, v44, v40
        """)
    for k in (8, 4, 2, 1): a(f"v_add_f32_dpp v44, v44, v44 row_ror:{k} {DPPF}")
    a(f"""
    v_mov_b32 v45, v44
    v_permlane16_swap_b32 v44, v45
    v_add_f32 v44, v44, v45
    v_mov_b32 v45, v44
    v_permlane32_swap_b32 v44, v45
    v_add_f32 v44, v44, v45
    v_cvt_pk_bf16_f32 v44, v44, v44
    v_and_b32 v44, s{sHI}, v44
    v_mul_f32 v44, {f32(-1.4426950408889634)}, v44
    v_exp_f32 v44, v44
    v_add_f32 v44, 1.0, v44
    v_rcp_f32 v44, v44
    v_cvt_pk_bf16_f32 v44, v44, v44
    v_and_b32 v44, s{sHI}, v44
    v_sub_f32 v45, 1.0, v44
    v_cvt_pk_bf16_f32 v45, v45, v45
    v_and_b32 v45, s{sHI}, v45
    ds_write_b64 v80, {R(44,2)} offset:{L_GG}
    s_cmp_ge_u32 s{sRed}, 28
    s_cbranch_scc1 L_pv2
    v_lshlrev_b32 v40, 16, v46
    v_and_b32 v41, s{sHI}, v46
    v_lshlrev_b32 v42, 16, v47
    v_and_b32 v43, s{sHI}, v47
    v_mul_f32 v40, v40, v45
    v_mul_f32 v41, v41, v45
    v_mul_f32 v42, v42, v45
    v_mul_f32 v43, v43, v45
    v_lshlrev_b32 v{vT}, 4, v{g}
    ds_write_b128 v{vT}, {R(40)} offset:{L_YP+512}
    s_branch L_pv2
    """)
    a.label("L_ldgate"); a.forget()
    for r in range(8): a(f"v_mov_b32 v{32+r}, 0")
    a(f"""
    v_lshlrev_b32 v{vA+1}, 4, v{vL}
    s_mul_i32 s{sT0}, s{sB}, 896
    v_add_u32 v{vA}, s{sT0}, v{vA+1}
    s_min_u32 s{sT0}, s{sRed}, 27
    s_lshl_b32 s{sT0}, s{sT0}, 5
    v_lshrrev_b32 v{vA+2}, 4, v{vL}
    v_lshlrev_b32 v{vA+2}, 3, v{vA+2}
    v_add_u32 v{vA+2}, s{sT0}, v{vA+2}
    s_mov_b32 exec_hi, 0x00ffffff
    global_load_dwordx4 {R(32)}, v{vA}, s[16:17]
    global_load_dwordx4 {R(36)}, v{vA+1}, s[36:37]
    s_mov_b64 exec, -1
    global_load_dwordx2 {R(46,2)}, v{vA+2}, s[34:35]
    s_branch L_sm
    """)

    n, g = 120, 121
    a.label("L_stage1"); a.forget()
    SO = [None, 60, 61, 62, 64, 65, 66, 67, 69, 70, 71, 76, 77, 78]
    sStr = sP1
    a(f"""
    s_movk_i32 s{sStr}, 3584
    s_mov_b32 s{sP0}, {SH_OFF}
    s_cmp_eq_u32 s{sW}, 0
    s_cselect_b32 s{sStr}, 8192, s{sStr}
    s_cselect_b32 s{sP2}, 9, 8
    s_cselect_b32 s{sT3}, s{sH}, s{sHF}
    s_cselect_b32 s{sP0}, {SQ_OFF}, s{sP0}
    s_mul_i32 s{sCnt}, s{sStr}, 448
    s_lshr_b32 s{sT1}, s{sJJ}, 1
    s_mul_i32 s{sT2}, s{sT1}, 56
    s_mul_i32 s{sT2}, s{sT2}, s{sStr}
    s_lshl_b32 s{sT3}, s{sT3}, s{sP2}
    s_add_u32 s{sT2}, s{sT2}, s{sT3}
    s_and_b32 s{sT3}, s{sJJ}, 1
    s_lshl_b32 s{sT0}, s{sT3}, 8
    s_add_u32 s{sT2}, s{sT2}, s{sT0}
    s_sub_u32 s{sWA+2}, s{sCnt}, s{sT2}
    s_mul_i32 s{sT0}, s{sStr}, 14
    v_mul_u32_u24 v{vT}, s{sT0}, v{g}
    v_lshl_add_u32 v{vT}, v{n}, 4, v{vT}
    s_mov_b32 s{SO[1]}, s{sStr}
    """)
    for t in range(2, 14): a(f"s_add_u32 s{SO[t]}, s{SO[t-1]}, s{sStr}")
    a(f"""
    v_lshrrev_b32 v{vS}, 3, v{n}
    v_mul_u32_u24 v{vS}, 896, v{vS}
    v_mad_u32_u24 v{vS}, v{g}, 28, v{vS}
    s_mul_i32 s{sT0}, s{sT1}, 112
    v_add_u32 v{vS}, s{sT0}, v{vS}
    v_mov_b32 v{vS+1}, 0
    v_lshrrev_b32 v{vS+2}, 1, v{g}
    v_lshlrev_b32 v{vS+2}, 13, v{vS+2}
    v_lshl_add_u32 v{vS+2}, v{n}, 5, v{vS+2}
    s_lshl_b32 s{sT0}, s{sH}, 14
    s_add_u32 s{sT0}, s{sT0}, s{sP0}
    s_lshl_b32 s{sCnt}, s{sJJ}, 9
    s_add_u32 s{sT0}, s{sT0}, s{sCnt}
    v_add_u32 v{vS+2}, s{sT0}, v{vS+2}
    s_cmp_eq_u32 s{sW}, 0
    s_waitcnt lgkmcnt(0)
    s_cselect_b32 s{sWA}, s22, s28
    s_cselect_b32 s{sWA+1}, s23, s29
    s_add_u32 s{sWA}, s{sWA}, s{sT2}
    s_addc_u32 s{sWA+1}, s{sWA+1}, 0
    """)
    if s1w: a(f"global_load_dword v64, v{vS+2}, s[42:43]{' sc1' if s1w == 1 else ''}")
    for t in range(14):
        a(f"buffer_load_dwordx4 {R(4*t)}, v{vT}, {S(sWA)}, {('s%d' % SO[t]) if t else '0'} offen{WQP}")
    a(f"""
    global_load_dwordx4 {R(56)}, v{vS}, s[16:17]
    global_load_dwordx3 {R(60,3)}, v{vS}, s[16:17] offset:16
    global_load_dword v63, v{vS+1}, s[42:43] offset:{EP_OFF} sc1
    {"s_barrier" if b0 else "s_nop 0"}
    s_add_u32 s{sK}, s18, s{sKV}
    s_addc_u32 s{sK+1}, s19, 0
    """)
    setup2()
    a(f"""
    v_lshrrev_b32 v{vT}, 1, v{g}
    v_lshlrev_b32 v{vT}, 13, v{vT}
    v_lshl_add_u32 v{vT}, v{n}, 5, v{vT}
    v_and_b32 v{vS}, 16, v{vL}
    v_add_u32 v{vT}, v{vT}, v{vS}
    s_lshl_b32 s{sT0}, s{sH}, 14
    s_add_u32 s{sP0}, s{sP0}, s{sT0}
    s_lshl_b32 s{sT0}, s{sB}, 13
    s_add_u32 s{sP1}, s{sP0}, s{sT0}
    s_lshl_b32 s{sT2}, s{sT1}, 10
    s_add_u32 s{sP0}, s{sP0}, s{sT2}
    s_lshl_b32 s{sT2}, s{sT3}, 9
    s_add_u32 s{sP0}, s{sP0}, s{sT2}
    s_mov_b32 s{sT2}, 0x01000100
    s_mov_b32 s{sT3}, 0x03020302
    v_lshlrev_b32 v{vQ+1}, 4, v{vL}
    s_add_u32 s{sP2}, s{sP1}, 4096
    s_waitcnt vmcnt(0)
    v_and_b32 v{vQ}, 0x7f7f7f7f, v63
    v_add_u32 v{vQ}, 0x671b3501, v{vQ}
    v_xor_b32 v63, 0xe79b3501, v63
    v_and_b32 v63, 0x80808080, v63
    v_xor_b32 v{vQ}, v{vQ}, v63
    v_mov_b32 v63, 0
    v_readfirstlane_b32 s{sTag}, v{vQ}
    ds_write_b32 v63, v{vQ} offset:{L_TAG}
    """)
    stamp(5)
    for t in range(14):
        ab = 112 if t & 1 else vA
        a(f"v_perm_b32 v{vS+4}, v{56+t//2}, v{56+t//2}, s{sT3 if t & 1 else sT2}")
        for r in range(4): a(f"v_and_b32 v{ab+r}, v{vS+4}, v{vMask+r}")
        c = "0" if t == 0 else R(vS)
        a(f"v_mfma_f32_16x16x32_bf16 {R(vS)}, {R(ab)}, {R(4*t)}, {c}")
    a(f"s_cmp_eq_u32 s{sW}, 1")
    for r in range(4): a(f"v_add_u32 v{vS+r}, 0x80, v{vS+r}")
    tag_put(vS, vQ)
    a(f"buffer_store_dwordx4 {R(vS)}, v{vT}, {S(sWS)}, s{sP0} offen sc1")
    stamp(6)
    a("s_cbranch_scc1 L_hgather")
    def qload(i): a(f"buffer_load_dwordx4 {R(64+4*i)}, v{vQ+1}, {S(sWS)}, s{sP1 if i < 4 else sP2} offen offset:{1024*(i%4)} sc1")
    for f in range(KS): kload(f)
    for i in range(8): qload(i)
    poll_many("L_qp", [(64+4*i, (lambda i=i: qload(i))) for i in range(8)], vQ + 4, vQ + 5)
    for f in range(KS, 16): kload(f)
    for i in range(8): tag_clr(64 + 4 * i)
    for i in range(1, 8):
        for r in range(4): a(f"v_add_f32 v{64+r}, v{64+r}, v{64+4*i+r}")
    a(f"""
    v_cvt_pk_bf16_f32 v{vQ}, v64, v65
    v_cvt_pk_bf16_f32 v{vQ+1}, v66, v67
    v_lshlrev_b32 v{vT}, 3, v{vL}
    ds_write_b64 v{vT}, {R(vQ,2)} offset:{L_Q}
    """)
    stamp(10)
    a("s_branch L_kdone")
    a.label("L_hgather"); a.forget()
    for f in range(16): kload(f)
    h = vS
    a(f"""
    v_and_b32 v{vA}, 7, v{vL}
    v_lshrrev_b32 v{vQ}, 3, v{vL}
    v_lshlrev_b32 v{vQ}, 10, v{vQ}
    v_lshl_add_u32 v{vQ}, v{vA}, 4, v{vQ}
    s_lshl_b32 s{sT0}, s{sS}, 6
    s_add_u32 s{sP1}, s{sP1}, s{sT0}
    s_lshl_b32 s{sT1}, s{sHF}, 8
    s_lshl_b32 s{sT0}, s{sS}, 5
    s_add_u32 s{sT1}, s{sT1}, s{sT0}
    v_lshlrev_b32 v{vT}, 3, v{vA}
    v_add_u32 v{vT}, s{sT1}, v{vT}
    global_load_dwordx2 {R(118,2)}, v{vT}, s[30:31]
    """)
    def hload(): a(f"buffer_load_dwordx4 {R(h)}, v{vQ}, {S(sWS)}, s{sP1} offen sc1")
    hload()
    poll_many("L_hp", [(h, hload)], vQ + 4, vQ + 5)
    tag_clr(h)
    allred4(h, h + 4, ['ror:8', 'p16', 'p32'])
    rnd2(h, h + 1, vQ + 4); rnd2(h + 2, h + 3, vQ + 5)
    a(f"""
    v_lshlrev_b32 v{h+4}, 16, v118
    v_and_b32 v{h+5}, s{sHI}, v118
    v_lshlrev_b32 v{h+6}, 16, v119
    v_and_b32 v{h+7}, s{sHI}, v119
    """)
    for r in range(4): a(f"v_add_f32 v{h+r}, v{h+r}, v{h+4+r}")
    rnd2(h, h + 1, vQ + 4); rnd2(h + 2, h + 3, vQ + 5)
    for r in range(4): a(f"v_max_f32 v{h+r}, 0, v{h+r}")
    for r in range(4): a(f"v_mul_f32 v{h+r}, v{h+r}, v{h+r}")
    a(f"""
    v_lshlrev_b32 v{vT}, 4, v{vA}
    ds_write_b128 v{vT}, {R(h)} offset:{L_R2}
    s_nop 1
    s_branch L_kdone
    """)
    if stamps:
        a.label("L_stampout"); a.forget()
        if amp >= 0:
            if amp == 99: a("s_movk_i32 s11, 10000")
            elif amp >= 200:
                a(f"""
                s_cmp_lg_u32 s2, {amp-200}
                s_cbranch_scc1 L_end
                s_cmp_lg_u32 s{sW}, 1
                s_cbranch_scc1 L_end
                s_mov_b64 exec, -1
                s_mov_b32 s12, {TS_OFF}
                buffer_load_dword v0, off, {S(sWS)}, s12 sc1
                s_waitcnt vmcnt(0)
                v_readfirstlane_b32 s11, v0
                s_sub_u32 s11, s15, s11
                s_add_u32 s11, s11, 100
                s_min_u32 s11, s11, 1000
                s_mul_i32 s11, s11, 50
                """)
            else:
                a("s_cmp_eq_u32 s%d, 0" % STR[amp])
                a("s_cbranch_scc1 L_end")
                a("s_sub_u32 s11, s%d, s15" % STR[amp])
                a("s_min_u32 s11, s11, 20000")
                a("s_lshl_b32 s11, s11, 3")
            a.label("L_amp")
            a("s_sleep 8")
            a("s_memrealtime s[%d:%d]" % (sTS, sTS + 1))
            a("s_waitcnt lgkmcnt(0)")
            a("s_sub_u32 s12, s%d, s15" % sTS)
            a("s_cmp_lt_u32 s12, s11")
            a("s_cbranch_scc1 L_amp")
        else:
            a("s_mov_b64 exec, -1")
            a("s_waitcnt vmcnt(0)")
            for i, r in enumerate(STR): a("v_writelane_b32 v0, s%d, %d" % (r, i))
            a(f"v_lshlrev_b32 v1, 2, v{vL}")
            a("s_mov_b64 exec, 0xfff")
            a("buffer_store_dword v0, v1, %s, s%d offen" % (S(sWS), sTSo))
    a.label("L_end")
    a("s_endpgm")
    if 2 <= lst <= 6:
        a.raw(".globl tiny_kernel\n.p2align 8\n.type tiny_kernel,@function\ntiny_kernel:\n    s_endpgm")
    a.raw('.section .rodata,"a"')
    if 2 <= lst <= 6:
        a.raw(".p2align 6\n.amdhsa_kernel tiny_kernel\n  .amdhsa_next_free_vgpr NV\n  .amdhsa_next_free_sgpr 16\n  .amdhsa_accum_offset NV\n  .amdhsa_group_segment_fixed_size 0\n  .amdhsa_kernarg_size 112\n  .amdhsa_user_sgpr_count 2\n  .amdhsa_user_sgpr_kernarg_segment_ptr 1\n  .amdhsa_system_sgpr_workgroup_id_x 1\n.end_amdhsa_kernel".replace("NV", {4: "128", 5: "256"}.get(lst, "8")))
    a.raw(".p2align 6")
    a.raw(".amdhsa_kernel %s_kernel" % NAME)
    a.raw("  .amdhsa_next_free_vgpr 128")
    a.raw("  .amdhsa_next_free_sgpr 102")
    a.raw("  .amdhsa_accum_offset 128")
    a.raw("  .amdhsa_group_segment_fixed_size 0")
    a.raw("  .amdhsa_kernarg_size 112")
    a.raw("  .amdhsa_user_sgpr_count 2")
    a.raw("  .amdhsa_user_sgpr_kernarg_segment_ptr 1")
    a.raw("  .amdhsa_system_sgpr_workgroup_id_x 1")
    a.raw("  .amdhsa_float_denorm_mode_32 3")
    a.raw(".end_amdhsa_kernel")
    return a.text()

if __name__ == "__main__":
    import argparse, inspect
    ap = argparse.ArgumentParser()
    ap.add_argument("-o", default="cdna_kernels/%s.s" % NAME)
    sig = inspect.signature(gen)
    for k, p in sig.parameters.items():
        if isinstance(p.default, bool): ap.add_argument("--" + k, action="store_true")
        elif isinstance(p.default, int): ap.add_argument("--" + k, type=int, default=p.default)
        else: ap.add_argument("--" + k, default=p.default)
    x = vars(ap.parse_args()); o = x.pop("o")
    x = {k: ("" if v == "none" else v) for k, v in x.items()}
    open(o, "w").write(gen(**x))
```

```python
import sys, struct
from asmlib import Asm

NAME = "gated_mix__mha_block_cached__dense_activation_squared_relu__decode"
def f32(x): return "0x%08x" % struct.unpack('<I', struct.pack('<f', x))[0]

def gen(kv="nt", wq="", w2="", stamps=False, NPRE=2, NMID=2, swz=5, amp=-1, xs=0, wmap=0, pipe=0, fpar=0, red=2, ypad=0, yskew=256, KS=16, early=0, pf=0, cpf=0, lst=0, BL=0, b0=0, ack=0, psl=0, ywarm=2, hx=0, tp=1, osl=0, opol="", hsw=0, wl=1, wpre=8, s1w=0, rsp=0, NL=8, GS=8, ypipe=0, rb=1):
    stamps = stamps or amp >= 0
    a = Asm()
    KV = (" " + kv) if kv else ""
    WQP = (" " + wq) if wq else ""
    WP = (" " + w2) if w2 else ""
    YS = 128 if ypad else 64
    YSH = 7 if ypad else 6
    YST = 128 * YS + yskew
    EP_OFF = 0; ST_OFF = 4096; OB_OFF = 8192; SQ_OFF = OB_OFF + 262144; SH_OFF = SQ_OFF + 262144
    YB_OFF = SH_OFF + 262144; TS_OFF = 1835008; WS_USED = 2097152
    assert YB_OFF + 56 * YST <= TS_OFF
    L_Q = 0; L_ML = 512; L_R2 = 640; L_GG = 768; L_TAG = 776; L_CNT = 780; L_YP = 21504; L_F = 1024; L_OW = 5120; OWS = 1024; LDS = L_OW + 16 * OWS + 1024
    sCk0, sCk1, sH, sB, sS, sJJ, sBH, sW = 3, 4, 5, 6, 7, 8, 9, 10
    sT0, sT1, sT2, sT3 = 11, 12, 13, 14
    sK, sV, sWS, sWA, sWB = 44, 48, 52, 56, 64
    sSel = [40, 41, 60, 61]; sE = 62; sFF = 63; sHF = 1; sMK = 0
    sKV = 68
    sKT = 72; sVG = 76; sC = 78; sHI = 79; sM = 80
    sP0, sP1, sP2 = 82, 83, 84
    sRole = 85; sRed = 86; sCnt = 87
    sTS = 88; sTSo = 90; s3584 = 91; sTag = 92
    vMask = 96; vS = 100; vQ = 108; vO = 108; vA = 116; vKo = 124; vVo = 125; vL = 126; vT = 127
    LIM = 1 << 23
    def R(b, n=4): return "v[%d:%d]" % (b, b + n - 1)
    def S(b, n=4): return "s[%d:%d]" % (b, b + n - 1)
    STR = [26, 27, 93, 94, 95, 96, 97, 98, 99, 100, 101, 15]
    def stamp(idx):
        if not stamps: return
        a("s_memrealtime s[%d:%d]" % (sTS, sTS + 1))
        a("s_waitcnt lgkmcnt(0)")
        a("s_mov_b32 s%d, s%d" % (STR[idx], sTS))
    def endpgm():
        if stamps: a("s_branch L_stampout")
        else: a("s_endpgm")
    DPPF = "row_mask:0xf bank_mask:0xf"
    ROW16 = ['ror:8', 'ror:4', 'ror:2', 'ror:1']
    Q8 = ("quad_perm:[1,0,3,2]", "quad_perm:[2,3,0,1]", "row_half_mirror")
    def kload(f):
        u, i = f >> 2, f & 3
        a(f"buffer_load_dwordx4 {R(4*f)}, v{vKo}, {S(sK)}, s{sKT+u} offen offset:{128*i}{KV}")
    def vload(idx):
        G, t, hf = idx >> 3, (idx >> 1) & 3, idx & 1
        base = 64 if G == 0 else 0
        a(f"buffer_load_dwordx4 {R(base+4*(2*t+hf))}, v{vVo}, {S(sV)}, s{sVG+G} offen offset:{512*t+256*hf}{KV}")
    def allred4(base, tmp, steps, op="add"):
        for st in steps:
            if st.startswith('ror'):
                for r in range(4): a(f"v_{op}_f32_dpp v{base+r}, v{base+r}, v{base+r} row_{st} {DPPF}")
            else:
                sw = "v_permlane16_swap_b32" if st == 'p16' else "v_permlane32_swap_b32"
                for r in range(4): a(f"v_mov_b32 v{tmp+r}, v{base+r}")
                for r in range(4): a(f"{sw} v{base+r}, v{tmp+r}")
                for r in range(4): a(f"v_{op}_f32 v{base+r}, v{base+r}, v{tmp+r}")
    def rnd2(x, y, tmp):
        a(f"v_cvt_pk_bf16_f32 v{tmp}, v{x}, v{y}")
        a(f"v_lshlrev_b32 v{x}, 16, v{tmp}")
        a(f"v_and_b32 v{y}, s{sHI}, v{tmp}")
    def tag_put(base, vtag):
        for r in range(4): a(f"v_perm_b32 v{base+r}, v{base+r}, v{vtag}, s{sSel[r]}")
    def tag_chk(base, t0, t1):
        a(f"v_perm_b32 v{t0}, v{base+1}, v{base}, s{sCk0}")
        a(f"v_perm_b32 v{t1}, v{base+3}, v{base+2}, s{sCk1}")
        a(f"v_or_b32 v{t0}, v{t0}, v{t1}")
        a(f"v_cmp_ne_u32 vcc, s{sTag}, v{t0}")
    def poll_many(lbl, loads, t0, t1):
        a(f"s_mov_b32 s{sCnt}, 0")
        a.label(lbl); a.forget()
        a("s_waitcnt vmcnt(0)")
        a(f"s_mov_b32 s{sE}, 0")
        for i, (base, fn) in enumerate(loads):
            tag_chk(base, t0, t1)
            a(f"s_cbranch_vccz {lbl}_s{i}")
            a("s_mov_b64 exec, vcc")
            fn()
            a("s_mov_b64 exec, -1")
            a(f"s_mov_b32 s{sE}, 1")
            a.label(f"{lbl}_s{i}")
        a(f"""
        s_cmp_eq_u32 s{sE}, 0
        s_cbranch_scc1 {lbl}_ok
        s_add_u32 s{sCnt}, s{sCnt}, 1
        s_cmp_gt_u32 s{sCnt}, {LIM}
        s_cbranch_scc0 {lbl}
        s_waitcnt vmcnt(0)
        """)
        a.label(lbl + "_ok"); a.forget()
    def setup2():
        a(f"""
        s_add_u32 s{sV}, s20, s{sKV}
        s_addc_u32 s{sV+1}, s21, 0
        s_mov_b32 s{sWS}, s42
        s_mov_b32 s{sWS+1}, s43
        """)
        if stamps:
            for r in STR[:11]: a("s_mov_b32 s%d, 0" % r)
        tmp = vS
        a(f"""
        v_and_b32 v{tmp}, 1, v{vL}
        v_lshlrev_b32 v{tmp}, 4, v{tmp}
        v_mov_b32 v{tmp+1}, 0xffff
        v_lshlrev_b32 v{tmp+1}, v{tmp}, v{tmp+1}
        v_bfe_u32 v{tmp+2}, v{vL}, 1, 2
        """)
        for r in range(4):
            a(f"v_cmp_eq_u32 vcc, {r}, v{tmp+2}")
            a(f"s_mov_b32 s{sSel[r]}, {0x07060500 + r}")
            a(f"v_cndmask_b32 v{vMask+r}, 0, v{tmp+1}, vcc")
        a(f"""
        s_mov_b32 s{sCk0}, 0x0c0c0400
        s_mov_b32 s{sCk1}, 0x04000c0c
        s_movk_i32 s{sMK}, 0xff00
        """)
    def tag_clr(base, dst=None):
        for r in range(4): a(f"v_and_b32 v{(base if dst is None else dst)+r}, s{sMK}, v{base+r}")

    if lst == 2: a.raw("; @launch kernel=tiny_kernel grid=(1,1,1) block=(64,1,1) lds=0")
    if lst: a.raw("; @launch kernel=%s_kernel grid=(256,1,1) block=(1024,1,1) lds=%d" % (NAME, LDS))
    else: a.raw("; @launch grid=(256,1,1) block=(1024,1,1) lds=%d" % LDS)
    if lst == 3: a.raw("; @launch kernel=tiny_kernel grid=(1,1,1) block=(64,1,1) lds=0")
    if lst == 4: a.raw("; @launch kernel=tiny_kernel grid=(256,1,1) block=(1024,1,1) lds=21504")
    if lst == 5: a.raw("; @launch kernel=tiny_kernel grid=(256,1,1) block=(512,1,1) lds=21504")
    if lst == 6: a.raw("; @launch kernel=tiny_kernel grid=(256,1,1) block=(64,1,1) lds=0")
    if lst == 7: a.raw("; @launch kernel=%s_kernel grid=(256,1,1) block=(1024,1,1) lds=%d" % (NAME, LDS))
    a.raw('.amdgcn_target "amdgcn-amd-amdhsa--gfx950"')
    a.raw(".text")
    a.raw(".globl %s_kernel" % NAME)
    a.raw(".p2align 8")
    a.raw(".type %s_kernel,@function" % NAME)
    a.raw("%s_kernel:" % NAME)
    a("s_cmp_ge_u32 s2, 256")
    a("s_cbranch_scc1 L_end")
    stamp(11)
    a("s_load_dwordx16 s[16:31], s[0:1], 0")
    a("s_load_dwordx8 s[32:39], s[0:1], 64")
    a("s_load_dwordx2 s[42:43], s[0:1], 104")
    n, g = 120, 121
    SWZ = {0: f"s_mov_b32 s{sT3}, 0", 1: f"s_mov_b32 s{sT3}, s{sW}", 2: f"s_lshr_b32 s{sT3}, s{sW}, 2",
           3: f"s_lshr_b32 s{sT3}, s{sW}, 2\n s_xor_b32 s{sT3}, s{sT3}, s{sW}", 4: f"s_add_u32 s{sT3}, s{sW}, s{sS}",
           5: f"s_xor_b32 s{sT3}, s{sW}, s{sH}", 6: f"s_lshr_b32 s{sT3}, s{sW}, 1", 7: f"s_lshr_b32 s{sT3}, s{sS}, 1\n s_add_u32 s{sT3}, s{sT3}, s{sW}",
           8: f"s_mov_b32 s{sT3}, s{sH}", 9: f"s_lshr_b32 s{sT3}, s{sH}, 2\n s_xor_b32 s{sT3}, s{sT3}, s{sW}", 10: f"s_xor_b32 s{sT3}, s{sW}, s{sH}\n s_xor_b32 s{sT3}, s{sT3}, s{sS}",
           11: f"s_mul_i32 s{sT3}, s2, 0x9e3779b1\n s_lshr_b32 s{sT3}, s{sT3}, 27\n s_xor_b32 s{sT3}, s{sT3}, s{sW}", 12: f"s_add_u32 s{sT3}, s{sW}, s{sH}",
           13: f"s_lshr_b32 s{sT3}, s{sH}, 2\n s_xor_b32 s{sT3}, s{sT3}, s{sH}\n s_xor_b32 s{sT3}, s{sT3}, s{sW}"}[swz]
    sX, sJ = sCk0, sCk1
    HSW = {0: f"s_mov_b32 s{sT2}, 0", 1: f"s_mov_b32 s{sT2}, s{sH}", 2: f"s_mov_b32 s{sT2}, s{sJJ}", 3: f"s_mov_b32 s{sT2}, s{sJ}",
           4: f"s_mul_i32 s{sT2}, s2, 0x9e3779b1\n s_lshr_b32 s{sT2}, s{sT2}, 20", 5: f"s_lshr_b32 s{sT2}, s{sH}, 2", 6: f"s_and_b32 s{sT2}, s{sH}, 12",
           7: f"s_lshl_b32 s{sT2}, s{sS}, 1", 8: f"s_mov_b32 s{sT2}, s{sS}"}[hsw]
    a(f"""
    v_lshrrev_b32 v{vT}, 6, v0
    v_and_b32 v{vL}, 63, v0
    s_and_b32 s{sX}, s2, 7
    v_readfirstlane_b32 s{sW}, v{vT}
    s_lshr_b32 s{sJ}, s2, 3
    """)
    if wmap == 1: a(f"""
    s_lshr_b32 s{sT0}, s{sJ}, 4
    s_lshl_b32 s{sH}, s{sX}, 1
    s_add_u32 s{sH}, s{sH}, s{sT0}
    s_lshr_b32 s{sB}, s{sJ}, 3
    s_and_b32 s{sB}, s{sB}, 1
    s_and_b32 s{sS}, s{sJ}, 7
    """)
    elif wmap == 0: a(f"""
    s_and_b32 s{sH}, s{sJ}, 15
    s_lshr_b32 s{sB}, s{sJ}, 4
    s_xor_b32 s{sS}, s{sX}, {fpar}
    """)
    elif wmap == 4: a(f"""
    s_and_b32 s{sT0}, s{sJ}, 3
    s_lshr_b32 s{sH}, s{sX}, 1
    s_lshl_b32 s{sH}, s{sH}, 2
    s_add_u32 s{sH}, s{sH}, s{sT0}
    s_lshr_b32 s{sB}, s{sJ}, 4
    s_lshr_b32 s{sS}, s{sJ}, 1
    s_and_b32 s{sS}, s{sS}, 6
    s_and_b32 s{sT0}, s{sX}, 1
    s_xor_b32 s{sT0}, s{sT0}, {fpar}
    s_or_b32 s{sS}, s{sS}, s{sT0}
    """)
    a(f"""
    s_lshl_b32 s{sJJ}, s{sB}, 3
    s_add_u32 s{sJJ}, s{sJJ}, s{sS}
    s_lshl_b32 s{sBH}, s{sB}, 4
    s_add_u32 s{sBH}, s{sBH}, s{sH}
    s_and_b32 s{sT0}, s{sS}, 1
    s_lshl_b32 s{sT0}, s{sT0}, 4
    s_xor_b32 s{sHF}, s{sH}, {hx}
    s_or_b32 s{sT0}, s{sT0}, s{sHF}
    s_cmp_lt_u32 s{sT0}, 14
    s_cselect_b32 s{sFF}, 1, 0
    v_and_b32 v{n}, 15, v{vL}
    v_lshrrev_b32 v{g}, 4, v{vL}
    v_and_b32 v{vT}, 7, v{vL}
    v_lshlrev_b32 v{vKo}, 9, v{vT}
    v_lshl_add_u32 v{vKo}, v{g}, 4, v{vKo}
    v_and_b32 v{vT}, 8, v{vL}
    v_lshl_add_u32 v{vKo}, v{vT}, 3, v{vKo}
    {HSW}
    s_xor_b32 s{sT2}, s{sT2}, s{sW}
    s_and_b32 s{sT2}, s{sT2}, 15
    s_lshl_b32 s{sT2}, s{sT2}, 14
    {SWZ}
    s_and_b32 s{sT3}, s{sT3}, 3
    s_lshl_b32 s{sT1}, s{sT3}, 12
    s_or_b32 s{sKT}, s{sT2}, s{sT1}
    s_xor_b32 s{sKT+1}, s{sKT}, 4096
    s_xor_b32 s{sKT+2}, s{sKT}, 8192
    s_xor_b32 s{sKT+3}, s{sKT}, 12288
    s_lshl_b32 s{sKV}, s{sBH}, 21
    s_lshl_b32 s{sT1}, s{sS}, 18
    s_add_u32 s{sKV}, s{sKV}, s{sT1}
    s_mov_b32 s{sK+2}, 262144
    s_mov_b32 s{sK+3}, 0x00020000
    s_mov_b32 s{sV+2}, 262144
    s_mov_b32 s{sV+3}, 0x00020000
    s_mov_b32 s{sWS+2}, {WS_USED}
    s_mov_b32 s{sWS+3}, 0x00020000
    s_mov_b32 s{sWA+3}, 0x00020000
    s_mov_b32 s{sHI}, 0xffff0000
    s_cmp_le_u32 s{sW}, s{sFF}
    s_cbranch_scc1 L_stage1
    s_waitcnt lgkmcnt(0)
    s_add_u32 s{sK}, s18, s{sKV}
    s_addc_u32 s{sK+1}, s19, 0
    """)
    if early: a("s_memrealtime s[70:71]")
    if pf:
        a(f"""
        s_cmp_lg_u32 s{sW}, 3
        s_cbranch_scc1 L_nopf
        s_lshl_b32 s{sT0}, s{sH}, 3
        s_add_u32 s{sT0}, s{sT0}, s{sS}
        s_mul_i32 s{sT0}, s{sT0}, {16*896}
        s_mul_i32 s{sT1}, s{sT0}, s{sFF}
        s_lshl_b32 s{sT0}, s{sT0}, 1
        v_mov_b32 v64, s{sKV}
        v_mov_b32 v65, s{sT0}
        v_mov_b32 v66, s{sT1}
        v_mov_b32 v67, {OB_OFF}
        s_mov_b64 exec, 1
        global_load_dword v68, v64, s[20:21] nt
        global_load_dword v69, v65, s[24:25] nt
        global_load_dword v70, v66, s[32:33] nt
        global_load_dword v71, v67, s[42:43] nt
        s_mov_b64 exec, -1
        """)
        a.label("L_nopf")
    if b0: a("s_barrier")
    for f in range(16):
        kload(f)
        if BL and f % BL == BL - 1 and f < 15: a("s_nop 0")
    if cpf:
        a(f"""
        s_cmp_lg_u32 s{sW}, 2
        s_cbranch_scc1 L_nocpf
        s_cmp_ge_u32 s2, {8*cpf}
        s_cbranch_scc1 L_nocpf
        s_getpc_b64 s[70:71]
        v_lshlrev_b32 v64, 7, v{vL}
        s_mov_b32 exec_hi, 0xfff
        global_load_dword v65, v64, s[70:71]
        s_mov_b64 exec, -1
        """)
        a.label("L_nocpf")
    setup2()
    if early:
        a("s_mov_b32 s%d, s70" % STR[9])
        stamp(7)
        a("s_waitcnt vmcnt(15)")
        stamp(10)
    a.label("L_kdone"); a.forget()
    a(f"""
    v_lshlrev_b32 v{vVo}, 11, v{g}
    v_lshl_add_u32 v{vVo}, v{n}, 4, v{vVo}
    s_and_b32 s{sT1}, s{sKT}, 4096
    v_xor_b32 v{vVo}, s{sT1}, v{vVo}
    s_andn2_b32 s{sVG}, s{sKT}, 4096
    s_xor_b32 s{sVG+1}, s{sVG}, 8192
    """)
    for idx in range(NPRE): vload(idx)
    a(f"""
    s_mov_b32 s{sC}, {f32(1.4426950408889634/16)}
    s_movk_i32 s{s3584}, 3584
    s_lshr_b32 s{sRole}, s{sW}, 2
    s_lshl_b32 s{sT0}, s{sH}, 3
    s_add_u32 s{sT0}, s{sT0}, s{sS}
    s_mul_i32 s{sT0}, s{sT0}, {32*896}
    s_lshl_b32 s{sT1}, s{sHF}, 3
    s_add_u32 s{sT1}, s{sT1}, s{sS}
    s_mul_i32 s{sT1}, s{sT1}, {16*896}
    s_mul_i32 s{sT1}, s{sT1}, s{sFF}
    s_cmp_eq_u32 s{sRole}, 1
    s_cselect_b32 s{sT0}, s{sT0}, s{sT1}
    s_cselect_b32 s{sT2}, s24, s32
    s_cselect_b32 s{sT3}, s25, s33
    s_add_u32 s{sWB}, s{sT2}, s{sT0}
    s_addc_u32 s{sWB+1}, s{sT3}, 0
    s_mov_b32 s{sWB+2}, 28672
    s_mov_b32 s{sWB+3}, 0x00020000
    s_lshl_b32 s{sT0}, s{sFF}, 1
    s_cmp_eq_u32 s{sRole}, 2
    s_cselect_b32 s{sRole}, s{sT0}, s{sRole}
    v_and_b32 v{vT}, 8, v{vL}
    v_lshlrev_b32 v{vT}, 3, v{vT}
    v_lshl_add_u32 v{vT}, v{g}, 4, v{vT}
    v_mul_u32_u24 v{vKo}, 7168, v{g}
    v_lshl_add_u32 v{vKo}, v{n}, 4, v{vKo}
    s_and_b32 s{sT0}, s{sW}, 3
    s_lshl_b32 s{sT1}, s{sT0}, 8
    v_add_u32 v{vKo}, s{sT1}, v{vKo}
    s_cmp_eq_u32 s{sT0}, 3
    s_cselect_b32 s{sT0}, 8, 0
    v_and_b32 v{vS}, s{sT0}, v{vL}
    v_lshl_or_b32 v{vKo}, v{vS}, 27, v{vKo}
    """)
    a(f"""
    """)
    if rsp == 0: a(f"""
    s_lshl_b32 s{sRed}, s{sH}, 2
    s_lshr_b32 s{sT0}, s{sS}, 1
    s_add_u32 s{sRed}, s{sRed}, s{sT0}
    s_bitcmp1_b32 s{sS}, 0
    s_cselect_b32 s{sRed}, s{sRed}, 99
    """)
    if rsp == 1: a(f"""
    s_lshl_b32 s{sRed}, s{sH}, 1
    s_lshr_b32 s{sT0}, s{sS}, 1
    s_add_u32 s{sRed}, s{sRed}, s{sT0}
    s_and_b32 s{sT0}, s{sS}, 5
    s_cmp_eq_u32 s{sT0}, 1
    s_cselect_b32 s{sRed}, s{sRed}, 99
    """)
    if rsp == 2: a(f"""
    s_lshl_b32 s{sRed}, s{sH}, 1
    s_add_u32 s{sRed}, s{sRed}, s{sS}
    s_cmp_lt_u32 s{sS}, 2
    s_cselect_b32 s{sRed}, s{sRed}, 99
    """)
    a(f"""
    s_cmp_lg_u32 s{sW}, 2
    s_cbranch_scc1 L_noz
    v_mov_b32 v{vS}, 0
    v_mov_b32 v{vS+1}, 0
    v_mov_b32 v{vS+2}, 0
    v_mov_b32 v{vS+3}, 0
    v_lshlrev_b32 v{vS+4}, 4, v{vL}
    ds_write_b128 v{vS+4}, {R(vS)} offset:{L_YP}
    ds_write_b32 v{vS}, v{vS} offset:{L_CNT}
    """)
    a.label("L_noz")
    if stamps:
        a(f"""
        s_lshl_b32 s{sTSo}, s2, 4
        s_add_u32 s{sTSo}, s{sTSo}, s{sW}
        s_lshl_b32 s{sTSo}, s{sTSo}, 6
        s_add_u32 s{sTSo}, s{sTSo}, {TS_OFF}
        """)
    if amp >= 200:
        a(f"""
        s_lshl_b32 s11, s2, 4
        s_add_u32 s11, s11, s{sW}
        s_cmp_lg_u32 s11, 1
        s_cbranch_scc1 L_nts
        v_mov_b32 v{vQ}, s15
        s_mov_b32 s12, {TS_OFF}
        buffer_store_dword v{vQ}, off, {S(sWS)}, s12 sc1
        """)
        a.label("L_nts")
    stamp(0)
    a("s_waitcnt lgkmcnt(0)")
    a("s_barrier")
    assert NPRE <= 4
    qb = [80, 84, 88, 92]
    for i in range(4): a(f"ds_read_b128 {R(qb[i])}, v{vT} offset:{L_Q+128*i}")
    a(f"s_sub_u32 s{sT0}, s{sRole}, 1")
    a(f"s_waitcnt vmcnt({NPRE})")
    stamp(1)
    acc = [vS, vS + 4, vQ, vQ + 4]
    for i in range(4):
        a(f"s_waitcnt lgkmcnt({3-i})")
        for u in range(4):
            c = "0" if i == 0 else R(acc[u])
            a(f"v_mfma_f32_16x16x32_bf16 {R(acc[u])}, {R(4*(4*u+i))}, {R(qb[i])}, {c}")
    a(f"""
    {f"s_cmp_lg_u32 s{sT0}, 1" if wl else f"s_cmp_gt_u32 s{sT0}, 1"}
    s_cbranch_scc1 L_now
    """)
    for t in range(8):
        so_ = "0" if t < 4 else f"s{s3584}"
        a(f"buffer_load_dwordx4 {R(32+4*t)}, v{vKo}, {S(sWB)}, {so_} offen offset:{896*(t%4)}{WP}")
    a.label("L_now")
    NB2 = NPRE + NMID
    for idx in range(NPRE, NB2): vload(idx)
    a(f"""
    s_cmp_eq_u32 s{sW}, 3
    s_cbranch_scc1 L_ldgate
    """)
    a.label("L_sm")
    a("s_nop 1")
    for r in range(4): a(f"v_permlane32_swap_b32 v{acc[0]+r}, v{acc[1]+r}")
    for r in range(4): a(f"v_permlane32_swap_b32 v{acc[2]+r}, v{acc[3]+r}")
    for r in range(4): a(f"v_add_f32_dpp v{vS+r}, v{acc[1]+r}, v{acc[0]+r} row_ror:8 {DPPF}")
    for r in range(4): a(f"v_add_f32_dpp v{vS+4+r}, v{acc[3]+r}, v{acc[2]+r} row_ror:8 {DPPF}")
    for k in range(0, 8, 2): a(f"v_cvt_pk_bf16_f32 v{vA+k//2}, v{vS+k}, v{vS+k+1}")
    for k in range(4): a(f"v_mov_b32_dpp v{vA+k}, v{vA+k} row_ror:8 row_mask:0xf bank_mask:0xc")
    for k in range(0, 8, 2):
        a(f"v_lshlrev_b32 v{vS+k}, 16, v{vA+k//2}")
        a(f"v_and_b32 v{vS+k+1}, s{sHI}, v{vA+k//2}")
    m, t1, l, mc = vA, vA + 1, vA + 2, vA + 3
    a(f"""
    v_max3_f32 v{m}, v{vS}, v{vS+1}, v{vS+2}
    v_max3_f32 v{t1}, v{vS+3}, v{vS+4}, v{vS+5}
    v_max3_f32 v{m}, v{m}, v{vS+6}, v{vS+7}
    v_max_f32 v{m}, v{m}, v{t1}
    v_mov_b32 v{t1}, v{m}
    v_permlane16_swap_b32 v{m}, v{t1}
    v_max_f32 v{m}, v{m}, v{t1}
    v_mov_b32 v{t1}, v{m}
    v_permlane32_swap_b32 v{m}, v{t1}
    v_max_f32 v{m}, v{m}, v{t1}
    v_mul_f32 v{mc}, s{sC}, v{m}
    """)
    for k in range(8): a(f"v_fma_f32 v{vS+k}, v{vS+k}, s{sC}, -v{mc}")
    for k in range(8): a(f"v_exp_f32 v{vS+k}, v{vS+k}")
    a(f"""
    v_add_f32 v{l}, v{vS}, v{vS+1}
    v_add_f32 v{t1}, v{vS+2}, v{vS+3}
    v_add_f32 v{l}, v{l}, v{vS+4}
    v_add_f32 v{t1}, v{t1}, v{vS+5}
    v_add_f32 v{l}, v{l}, v{vS+6}
    v_add_f32 v{t1}, v{t1}, v{vS+7}
    v_add_f32 v{l}, v{l}, v{t1}
    v_mov_b32 v{t1}, v{l}
    v_permlane16_swap_b32 v{l}, v{t1}
    v_add_f32 v{l}, v{l}, v{t1}
    v_mov_b32 v{t1}, v{l}
    v_permlane32_swap_b32 v{l}, v{t1}
    v_add_f32 v{t1}, v{l}, v{t1}
    s_lshl_b32 s{sT0}, s{sW}, 3
    v_mov_b32 v{vT}, s{sT0}
    ds_write_b64 v{vT}, {R(m,2)} offset:{L_ML}
    v_and_b32 v{vT}, 15, v{vL}
    v_lshlrev_b32 v{vT}, 3, v{vT}
    v_mov_b32 v{l}, 0
    s_waitcnt lgkmcnt(0)
    s_barrier
    ds_read_b64 {R(vO+4,2)}, v{vT} offset:{L_ML}
    ds_read_b32 v{vKo}, v{l} offset:{L_TAG}
    """)
    if wl: a("s_setprio 1")
    for idx in range(NB2, 16 - NL): vload(idx)
    a("s_waitcnt lgkmcnt(0)")
    a(f"v_readfirstlane_b32 s{sTag}, v{vKo}")
    stamp(2)
    mi, li, M, L = vO + 4, vO + 5, vO, vO + 2
    a(f"v_mov_b32 v{M}, v{mi}")
    for k in (8, 4, 2, 1): a(f"v_max_f32_dpp v{M}, v{M}, v{M} row_ror:{k} {DPPF}")
    a(f"""
    v_sub_f32 v{m}, v{m}, v{M}
    v_mul_f32 v{m}, s{sC}, v{m}
    v_exp_f32 v{m}, v{m}
    s_cmp_eq_u32 s{sW}, 2
    s_cbranch_scc1 L_stat
    """)
    a.label("L_nostat")
    a(f"""
    v_and_b32 v{t1}, 8, v{vL}
    v_cmp_ne_u32 vcc, 0, v{t1}
    v_mov_b32 v{t1}, s{sHI}
    v_cndmask_b32 v{t1}, 0, v{t1}, vcc
    """)
    for k in range(8): a(f"v_mul_f32 v{vS+k}, v{vS+k}, v{m}")
    for k in range(8):
        tt = vA + 4 + (k & 3)
        a(f"v_cvt_pk_bf16_f32 v{tt}, v{vS+k}, v{vS+k}")
        a(f"v_and_b32 v{tt}, v{t1}, v{tt}")
        a(f"v_sub_f32 v{vS+k}, v{vS+k}, v{tt}")
        a(f"v_cvt_pk_bf16_f32 v{vS+k}, v{vS+k}, v{vS+k}")
    if NL:
        a(f"""
        s_cmp_eq_u32 s{sW}, 2
        s_cbranch_scc1 L_gsync
        """)
        a.label("L_gsync_ret")
        a("s_barrier")
        for idx in range(16 - NL, 16): vload(idx)
    for t in range(4):
        ab = vA + 4 * (t & 1)
        for r in range(4): a(f"v_and_b32 v{ab+r}, v{vS+t}, v{vMask+r}")
        a(f"s_waitcnt vmcnt({14-2*t})")
        for hf in range(2):
            c = "0" if t == 0 else R(vO + 4 * hf)
            a(f"v_mfma_f32_16x16x32_bf16 {R(vO+4*hf)}, {R(ab)}, {R(64+4*(2*t+hf))}, {c}")
    stamp(3)
    for t in range(4):
        for r in range(4): a(f"v_and_b32 v{64+4*t+r}, v{vS+4+t}, v{vMask+r}")
    g, n = vA, vA + 1
    vTag = vKo; vSel = vVo
    a(f"""
    v_lshrrev_b32 v{g}, 4, v{vL}
    v_and_b32 v{n}, 15, v{vL}
    s_lshl_b32 s{sT0}, s{sW}, 10
    v_lshrrev_b32 v83, 5, v{vL}
    v_lshlrev_b32 v83, 9, v83
    v_lshl_add_u32 v83, v{n}, 5, v83
    v_and_b32 v{vT}, 16, v{vL}
    v_add3_u32 v83, v83, v{vT}, s{sT0}
    v_and_b32 v82, 31, v{vL}
    v_lshlrev_b32 v82, 2, v82
    v_lshrrev_b32 v81, 5, v{vL}
    v_lshl_add_u32 v81, v81, 13, v82
    s_and_b32 s{sT1}, s{sW}, 7
    s_lshl_b32 s{sT0}, s{sT1}, 7
    v_add_u32 v81, s{sT0}, v81
    v_and_b32 v{vSel}, 3, v{vL}
    v_add_u32 v{vSel}, 0x07060500, v{vSel}
    v_mov_b32 v80, 0
    s_lshl_b32 s{sP0}, s{sBH}, 3
    s_add_u32 s{sP0}, s{sP0}, s{sT1}
    s_lshl_b32 s{sP0}, s{sP0}, 3
    s_add_u32 s{sP0}, s{sP0}, s{sS}
    s_lshl_b32 s{sP0}, s{sP0}, 7
    s_add_u32 s{sP0}, s{sP0}, {OB_OFF}
    s_cmp_eq_u32 s{sRole}, 1
    s_cbranch_scc1 L_mid1
    s_cmp_eq_u32 s{sRole}, 2
    s_cbranch_scc1 L_mid2
    s_cmp_ge_u32 s{sW}, 8
    s_cbranch_scc1 L_mid3
    s_cmp_eq_u32 s{sW}, 3
    s_cbranch_scc1 L_gate
    """)
    if ywarm == 2: a(f"""
    s_cmp_eq_u32 s{sW}, 1
    s_cbranch_scc1 L_ywarm
    """)
    a.label("L_pv2"); a.forget()
    for t in range(4):
        a(f"s_waitcnt vmcnt({6-2*t})")
        for hf in range(2):
            a(f"v_mfma_f32_16x16x32_bf16 {R(vO+4*hf)}, {R(64+4*t)}, {R(4*(2*t+hf))}, {R(vO+4*hf)}")
    if ack: stamp(0)
    a(f"s_cmp_lt_u32 s{sW}, 8")
    for r in range(4): a(f"v_permlane32_swap_b32 v{vO+r}, v{vO+4+r}")
    for r in range(4): a(f"v_add_f32 v{vO+r}, v{vO+r}, v{vO+4+r}")
    a(f"""
    ds_write_b128 v83, {R(vO)} offset:{L_OW}
    s_cbranch_scc1 L_low
    {"s_setprio 3" if tp else "s_nop 0"}
    s_waitcnt lgkmcnt(0)
    s_barrier
    """)
    for i in range(4): a(f"ds_read2st64_b32 {R(2*i,2)}, v81 offset0:{L_OW//256+8*i} offset1:{L_OW//256+8*i+4}")
    a(f"""
    s_waitcnt lgkmcnt(2)
    v_add_f32 v0, v0, v1
    v_add_f32 v2, v2, v3
    s_waitcnt lgkmcnt(0)
    v_add_f32 v4, v4, v5
    v_add_f32 v6, v6, v7
    v_add_f32 v0, v0, v2
    v_add_f32 v4, v4, v6
    v_add_f32 v0, v0, v4
    v_mov_b32 v1, v0
    v_permlane32_swap_b32 v0, v1
    v_add_f32 v0, v0, v1
    v_perm_b32 v0, v0, v{vTag}, v{vSel}
    s_mov_b32 exec_hi, 0
    buffer_store_dword v0, v82, {S(sWS)}, s{sP0} offen sc1
    """)
    stamp(4)
    a(f"""
    s_cmp_lt_u32 s{sRed}, 28
    s_cbranch_scc1 L_reduce
    """)
    endpgm()
    a.label("L_low"); a.forget()
    a(f"""
    s_cmp_eq_u32 s{sRole}, 1
    s_cbranch_scc1 L_gemv1
    s_waitcnt lgkmcnt(0)
    s_barrier
    """)
    if xs: endpgm()
    a(f"""
    s_add_u32 s{sT0}, s{sRed}, s{sB}
    s_add_u32 s{sT0}, s{sT0}, s{sW}
    s_max_u32 s{sT1}, s{sRed}, 28
    s_cmp_lg_u32 s{sT1}, s{sRed}
    s_cselect_b32 s{sT0}, 99, s{sT0}
    s_cmp_eq_u32 s{sT0}, 28
    s_cbranch_scc1 L_epoch
    """)
    endpgm()

    a.label("L_gemv1"); a.forget()
    cf = 123
    def oload(): a(f"buffer_load_dwordx4 {R(0)}, v122, {S(sWS)}, s{sP1} offen sc1")
    a(f"s_mov_b32 s{sCnt}, 0")
    a.label("L_stchk")
    a(f"""
    v_cmp_ne_u32 vcc, s{sTag}, v85
    v_cmp_ne_u32 {S(sM,2)}, s{sTag}, v87
    s_or_b64 vcc, vcc, {S(sM,2)}
    s_cbranch_vccz L_stok
    s_add_u32 s{sCnt}, s{sCnt}, 1
    s_cmp_gt_u32 s{sCnt}, {LIM}
    s_cbranch_scc1 L_stok
    buffer_load_dwordx4 {R(84)}, v89, {S(sWS)}, s{sT3} offen sc1
    s_waitcnt vmcnt(0)
    s_branch L_stchk
    """)
    a.label("L_stok"); a.forget()
    M = vA
    a(f"v_mov_b32 v{M}, v84")
    for d in Q8: a(f"v_max_f32_dpp v{M}, v{M}, v{M} {d} {DPPF}")
    a(f"""
    v_sub_f32 v{cf}, v84, v{M}
    v_mul_f32 v{cf}, s{sC}, v{cf}
    v_exp_f32 v{cf}, v{cf}
    v_mul_f32 v{M}, v{cf}, v86
    """)
    for d in Q8: a(f"v_add_f32_dpp v{M}, v{M}, v{M} {d} {DPPF}")
    a(f"""
    v_rcp_f32 v{M}, v{M}
    v_mul_f32 v{cf}, v{cf}, v{M}
    s_mov_b32 s{sCnt}, 0
    s_cmp_eq_u32 s{sFF}, 0
    """)
    def wol(t):
        so_ = "0" if t < 4 else f"s{s3584}"
        a(f"buffer_load_dwordx4 {R(32+4*t)}, v121, {S(sWB)}, {so_} offen offset:{896*(t%4)}{WP}")
    if wl:
        a("s_setprio 0")
        for t in range(wpre): wol(t)
        a("s_setprio 2")
    a(f"""
    s_waitcnt lgkmcnt(0)
    s_barrier
    """)
    if xs: endpgm()
    if wl:
        for t in range(wpre, 8): wol(t)
    oload()
    a(f"""
    ds_read_b64 {R(90,2)}, v80 offset:{L_GG}
    s_cbranch_scc1 L_nof
    ds_read_b128 {R(92)}, v120 offset:{L_F}
    """)
    a.label("L_nof")
    a("s_waitcnt lgkmcnt(0)")
    for r in range(4): a(f"v_mul_f32 v{92+r}, v{92+r}, v91")
    a("s_waitcnt vmcnt(0)")
    a.label("L_ochk"); a.forget()
    tag_chk(0, 4, 5)
    a(f"""
    s_cbranch_vccz L_ook
    s_mov_b64 exec, vcc
    """)
    if osl: a(f"s_sleep {osl}")
    oload()
    a(f"""
    s_mov_b64 exec, -1
    s_add_u32 s{sCnt}, s{sCnt}, 1
    s_waitcnt vmcnt({pipe})
    s_cmp_gt_u32 s{sCnt}, {LIM}
    s_cbranch_scc0 L_ochk
    """)
    a.label("L_ook"); a.forget()
    stamp(5)
    tag_clr(0, 24)
    for r in range(4): a(f"v_mul_f32 v{24+r}, v{24+r}, v{cf}")
    for d in Q8:
        for r in range(4): a(f"v_add_f32_dpp v{24+r}, v{24+r}, v{24+r} {d} {DPPF}")
    for r in range(4): a(f"v_cvt_pk_bf16_f32 v{24+r}, v{24+r}, v{24+r}")
    for r in range(4): a(f"v_mov_b32_dpp v{28+r}, v{24+r} row_ror:8 {DPPF}")
    for t in range(8):
        ab = 8 + 4 * (t % 4)
        for r in range(4): a(f"v_and_b32 v{ab+r}, v{24+t}, v{vMask+r}")
        c = "0" if t == 0 else R(vO)
        a(f"v_mfma_f32_16x16x32_bf16 {R(vO)}, {R(ab)}, {R(32+4*t)}, {c}")
    a("s_mov_b32 exec_hi, 0")
    for r in range(4): a(f"v_fma_f32 v{vO+r}, v{vO+r}, v90, v{92+r}")
    tag_put(vO, vTag)
    a(f"buffer_store_dwordx4 {R(vO)}, v88, {S(sWS)}, s{sP2} offen sc1")
    stamp(6)
    if rb:
        a(f"s_cmp_ge_u32 s{sRed}, 28")
        a("s_cbranch_scc1 %s" % ("L_stampout" if stamps else "L_end"))
        a("s_barrier")
    if ack:
        a("s_waitcnt vmcnt(0)")
        stamp(9)
    endpgm()

    a.label("L_reduce"); a.forget()
    def yload(base=8): a(f"buffer_load_dwordx4 {R(base)}, v84, {S(sWS)}, s{sP1} offen sc1")
    a("s_mov_b64 exec, -1")
    if tp: a("s_setprio 0")
    if rb: a("s_barrier")
    yload()
    a(f"s_mov_b32 s{sCnt}, 0")
    a("s_waitcnt vmcnt(0)")
    a.label("L_ypoll"); a.forget()
    tag_chk(8, 4, 5)
    a(f"""
    s_cbranch_vccz L_yok
    s_mov_b64 exec, vcc
    """)
    if psl: a(f"s_sleep {psl}")
    yload()
    a(f"""
    s_mov_b64 exec, -1
    s_add_u32 s{sCnt}, s{sCnt}, 1
    s_waitcnt vmcnt({ypipe})
    s_cmp_gt_u32 s{sCnt}, {LIM}
    s_cbranch_scc0 L_ypoll
    """)
    a.label("L_yok"); a.forget()
    stamp(7)
    tag_clr(8, 16)
    allred4(16, 0, ROW16)
    a(f"""
    s_mov_b64 exec, {S(sM,2)}
    ds_write_b128 v85, {R(16)} offset:{L_YP}
    s_mov_b64 exec, 1
    ds_add_rtn_u32 v4, v80, v86 offset:{L_CNT}
    s_mov_b64 exec, -1
    ds_read_b128 {R(12)}, v84 offset:{L_YP}
    s_waitcnt lgkmcnt(1)
    v_readfirstlane_b32 s{sT0}, v4
    s_cmp_lg_u32 s{sT0}, 7
    s_cbranch_scc1 L_yend
    s_waitcnt lgkmcnt(0)
    """)
    allred4(12, 0, ROW16)
    a(f"""
    v_cvt_pk_bf16_f32 v12, v12, v13
    v_cvt_pk_bf16_f32 v13, v14, v15
    s_mov_b64 exec, {S(sM,2)}
    global_store_dwordx2 v90, {R(12,2)}, s[38:39] {opol}
    """)
    stamp(8)
    a.label("L_yend")
    endpgm()
    a.label("L_epoch"); a.forget()
    a(f"""
    s_mov_b32 s{sCnt}, 0
    v_lshlrev_b32 v84, 4, v{vL}
    s_movk_i32 s{sT3}, {ST_OFF}
    """)
    a.label("L_fchk")
    for i in range(4):
        a(f"buffer_load_dwordx4 {R(32+4*i)}, v84, {S(sWS)}, s{sT3} offen offset:{1024*i} sc1")
    a("s_waitcnt vmcnt(0)")
    for i in range(4): a(f"v_xor_b32 v{33+4*i}, s{sTag}, v{33+4*i}")
    a(f"""
    v_or3_b32 v33, v33, v37, v41
    v_or_b32 v33, v33, v45
    v_cmp_ne_u32 vcc, 0, v33
    s_cbranch_vccz L_fok
    s_add_u32 s{sCnt}, s{sCnt}, 1
    s_cmp_gt_u32 s{sCnt}, {LIM}
    s_cbranch_scc0 L_fchk
    """)
    a.label("L_fok"); a.forget()
    a(f"""
    s_mov_b64 exec, 1
    buffer_store_dword v{vTag}, off, {S(sWS)}, 0 offset:{EP_OFF} sc1
    """)
    endpgm()

    a.label("L_stat"); a.forget()
    mi, li, M, L = vO + 4, vO + 5, vO, vO + 2
    a(f"""
    v_sub_f32 v{mi}, v{mi}, v{M}
    v_mul_f32 v{mi}, s{sC}, v{mi}
    v_exp_f32 v{mi}, v{mi}
    v_mul_f32 v{L}, v{li}, v{mi}
    """)
    for k in (8, 4, 2, 1): a(f"v_add_f32_dpp v{L}, v{L}, v{L} row_ror:{k} {DPPF}")
    a(f"""
    v_mov_b32 v{M+1}, s{sTag}
    v_mov_b32 v{L+1}, s{sTag}
    s_lshl_b32 s{sT0}, s{sBH}, 3
    s_add_u32 s{sT0}, s{sT0}, s{sS}
    s_lshl_b32 s{sT0}, s{sT0}, 4
    s_add_u32 s{sT0}, s{sT0}, {ST_OFF}
    s_mov_b64 exec, 1
    buffer_store_dwordx4 {R(M)}, off, {S(sWS)}, s{sT0} sc1
    s_mov_b64 exec, -1
    s_branch L_nostat
    """)
    if NL:
        X = 32
        a.label("L_gsync"); a.forget()
        a(f"""
        v_lshlrev_b32 v{X+4}, 4, v{vL}
        s_lshl_b32 s{sT3}, s{sBH}, 7
        s_andn2_b32 s{sT3}, s{sT3}, {GS*16-1}
        s_add_u32 s{sT3}, s{sT3}, {ST_OFF}
        s_mov_b32 s{sCnt}, 0
        s_mov_b32 exec_lo, {hex(min((1 << GS) - 1, 0xffffffff))}
        s_mov_b32 exec_hi, {"-1" if GS == 64 else "0"}
        """)
        a.label("L_gs")
        a(f"""
        buffer_load_dword v{X+5}, v{X+4}, {S(sWS)}, s{sT3} offen offset:4 sc1
        s_waitcnt vmcnt(0)
        v_cmp_ne_u32 vcc, s{sTag}, v{X+5}
        s_cbranch_vccz L_gs_ok
        s_add_u32 s{sCnt}, s{sCnt}, 1
        s_cmp_gt_u32 s{sCnt}, {LIM}
        s_cbranch_scc0 L_gs
        """)
        a.label("L_gs_ok")
        a(f"""
        s_mov_b64 exec, -1
        s_branch L_gsync_ret
        """)
    a.label("L_mid1"); a.forget()
    a(f"""
    v_and_b32 v{vT}, 7, v{vL}
    v_lshlrev_b32 v89, 4, v{vT}
    s_lshl_b32 s{sT3}, s{sBH}, 7
    s_add_u32 s{sT3}, s{sT3}, {ST_OFF}
    v_lshlrev_b32 v122, 7, v{vT}
    v_lshl_add_u32 v122, v{g}, 5, v122
    v_bfe_u32 v{vT}, v{vL}, 3, 1
    v_lshl_add_u32 v122, v{vT}, 4, v122
    s_lshl_b32 s{sP1}, s{sBH}, 3
    s_add_u32 s{sP1}, s{sP1}, s{sS}
    s_lshl_b32 s{sP1}, s{sP1}, 10
    s_add_u32 s{sP1}, s{sP1}, {OB_OFF}
    buffer_load_dwordx4 {R(84)}, v89, {S(sWS)}, s{sT3} offen sc1
    s_and_b32 s{sT0}, s{sW}, 3
    s_cmp_lg_u32 s{sT0}, 0
    s_cbranch_scc1 L_mid1b
    buffer_load_dwordx4 {R(vS)}, v122, {S(sWS)}, s{sP1} offen sc1
    """)
    a.label("L_mid1b")
    a(f"""
    s_lshl_b32 s{sT1}, s{sT0}, 10
    v_lshlrev_b32 v120, 4, v{vL}
    v_add_u32 v120, s{sT1}, v120
    v_lshrrev_b32 v88, 1, v{n}
    v_mul_u32_u24 v88, {YST}, v88
    v_and_b32 v{vT}, 1, v{n}
    v_lshl_add_u32 v88, v{vT}, 5, v88
    v_and_b32 v{vT}, 16, v{vL}
    v_add_u32 v88, v88, v{vT}
    s_mul_i32 s{sP2}, s{sB}, 28
    s_lshl_b32 s{sT1}, s{sT0}, 3
    s_add_u32 s{sP2}, s{sP2}, s{sT1}
    s_mul_i32 s{sP2}, s{sP2}, {YST}
    s_lshl_b32 s{sT1}, s{sH}, 3
    s_add_u32 s{sT1}, s{sT1}, s{sS}
    s_lshl_b32 s{sT1}, s{sT1}, {YSH}
    s_add_u32 s{sP2}, s{sP2}, s{sT1}
    s_add_u32 s{sP2}, s{sP2}, {YB_OFF}
    s_cmp_eq_u32 s{sT0}, 3
    s_cselect_b32 s{sT0}, 8, 0
    v_and_b32 v{vT}, s{sT0}, v{vL}
    v_lshl_or_b32 v88, v{vT}, 27, v88
    v_mul_u32_u24 v121, 7168, v{g}
    v_lshl_add_u32 v121, v{n}, 4, v121
    v_lshl_or_b32 v121, v{vT}, 27, v121
    s_and_b32 s{sT0}, s{sW}, 3
    s_lshl_b32 s{sT0}, s{sT0}, 8
    v_add_u32 v121, s{sT0}, v121
    v_mov_b32 v92, 0
    v_mov_b32 v93, 0
    v_mov_b32 v94, 0
    v_mov_b32 v95, 0
    s_branch L_pv2
    """)
    a.label("L_mid2"); a.forget()
    a(f"""
    v_lshlrev_b32 v{vT}, 5, v{g}
    ds_read_b128 {R(84)}, v{vT} offset:{L_R2}
    ds_read_b128 {R(88)}, v{vT} offset:{L_R2+16}
    s_waitcnt lgkmcnt(0)
    """)
    for t in range(8): a(f"v_cvt_pk_bf16_f32 v{84+t}, v{84+t}, v{84+t}")
    for t in range(8):
        ab = vA + 4 * (t & 1)
        for r in range(4): a(f"v_and_b32 v{ab+r}, v{84+t}, v{vMask+r}")
        c = "0" if t == 0 else R(92)
        a(f"v_mfma_f32_16x16x32_bf16 {R(92)}, {R(ab)}, {R(32+4*t)}, {c}")
    a(f"""
    s_and_b32 s{sT0}, s{sW}, 3
    s_lshl_b32 s{sT1}, s{sT0}, 10
    v_lshlrev_b32 v{vT}, 4, v{vL}
    v_add_u32 v{vT}, s{sT1}, v{vT}
    ds_write_b128 v{vT}, {R(92)} offset:{L_F}
    v_lshrrev_b32 v{g}, 4, v{vL}
    v_and_b32 v{n}, 15, v{vL}
    """)
    a.label("L_mid3"); a.forget()
    assert YS == 64
    a(f"""
    s_cmp_ge_u32 s{sRed}, 28
    s_cbranch_scc1 L_pv2
    v_lshlrev_b32 v84, 6, v{n}
    v_lshl_add_u32 v84, v{g}, 4, v84
    s_mov_b32 s{sM}, 0x00010001
    s_mov_b32 s{sM+1}, 0x00010001
    s_and_b32 s{sT1}, s{sW}, 7
    s_lshl_b32 s{sT0}, s{sT1}, 6
    v_lshlrev_b32 v85, 4, v{g}
    v_add_u32 v85, s{sT0}, v85
    v_mov_b32 v86, 1
    s_lshl_b32 s{sT0}, s{sRed}, 5
    s_mul_i32 s{sT2}, s{sB}, 896
    s_add_u32 s{sT0}, s{sT0}, s{sT2}
    v_lshlrev_b32 v90, 3, v{g}
    v_add_u32 v90, s{sT0}, v90
    s_mul_i32 s{sP1}, s{sB}, 28
    s_add_u32 s{sP1}, s{sP1}, s{sRed}
    s_mul_i32 s{sP1}, s{sP1}, {YST}
    s_lshl_b32 s{sT1}, s{sT1}, 10
    s_add_u32 s{sP1}, s{sP1}, s{sT1}
    s_add_u32 s{sP1}, s{sP1}, {YB_OFF}
    """)
    if ywarm == 1: yload(32)
    a("s_branch L_pv2")
    if ywarm == 2:
        a.label("L_ywarm"); a.forget()
        a(f"""
        s_cmp_ge_u32 s{sRed}, 28
        s_cbranch_scc1 L_pv2
        s_mul_i32 s{sP1}, s{sB}, 28
        s_add_u32 s{sP1}, s{sP1}, s{sRed}
        s_mul_i32 s{sP1}, s{sP1}, {YST}
        s_add_u32 s{sP1}, s{sP1}, {YB_OFF}
        v_lshlrev_b32 v84, 7, v{vL}
        buffer_load_dword v32, v84, {S(sWS)}, s{sP1} offen sc1
        s_branch L_pv2
        """)
    a.label("L_gate"); a.forget()
    xa, ga = 32, 36
    a("v_mov_b32 v44, 0")
    for r in range(4):
        a(f"""
        v_lshlrev_b32 v40, 16, v{xa+r}
        v_and_b32 v41, s{sHI}, v{xa+r}
        v_lshlrev_b32 v42, 16, v{ga+r}
        v_and_b32 v43, s{sHI}, v{ga+r}
        v_mul_f32 v40, v40, v42
        v_mul_f32 v41, v41, v43
        v_cvt_pk_bf16_f32 v40, v40, v41
        v_lshlrev_b32 v41, 16, v40
        v_and_b32 v40, s{sHI}, v40
        v_add_f32 v44, v44, v41
        v_add_f32 v44, v44, v40
        """)
    for k in (8, 4, 2, 1): a(f"v_add_f32_dpp v44, v44, v44 row_ror:{k} {DPPF}")
    a(f"""
    v_mov_b32 v45, v44
    v_permlane16_swap_b32 v44, v45
    v_add_f32 v44, v44, v45
    v_mov_b32 v45, v44
    v_permlane32_swap_b32 v44, v45
    v_add_f32 v44, v44, v45
    v_cvt_pk_bf16_f32 v44, v44, v44
    v_and_b32 v44, s{sHI}, v44
    v_mul_f32 v44, {f32(-1.4426950408889634)}, v44
    v_exp_f32 v44, v44
    v_add_f32 v44, 1.0, v44
    v_rcp_f32 v44, v44
    v_cvt_pk_bf16_f32 v44, v44, v44
    v_and_b32 v44, s{sHI}, v44
    v_sub_f32 v45, 1.0, v44
    v_cvt_pk_bf16_f32 v45, v45, v45
    v_and_b32 v45, s{sHI}, v45
    ds_write_b64 v80, {R(44,2)} offset:{L_GG}
    s_cmp_ge_u32 s{sRed}, 28
    s_cbranch_scc1 L_pv2
    v_lshlrev_b32 v40, 16, v46
    v_and_b32 v41, s{sHI}, v46
    v_lshlrev_b32 v42, 16, v47
    v_and_b32 v43, s{sHI}, v47
    v_mul_f32 v40, v40, v45
    v_mul_f32 v41, v41, v45
    v_mul_f32 v42, v42, v45
    v_mul_f32 v43, v43, v45
    v_lshlrev_b32 v{vT}, 4, v{g}
    ds_write_b128 v{vT}, {R(40)} offset:{L_YP+512}
    s_branch L_pv2
    """)
    a.label("L_ldgate"); a.forget()
    for r in range(8): a(f"v_mov_b32 v{32+r}, 0")
    a(f"""
    v_lshlrev_b32 v{vA+1}, 4, v{vL}
    s_mul_i32 s{sT0}, s{sB}, 896
    v_add_u32 v{vA}, s{sT0}, v{vA+1}
    s_min_u32 s{sT0}, s{sRed}, 27
    s_lshl_b32 s{sT0}, s{sT0}, 5
    v_lshrrev_b32 v{vA+2}, 4, v{vL}
    v_lshlrev_b32 v{vA+2}, 3, v{vA+2}
    v_add_u32 v{vA+2}, s{sT0}, v{vA+2}
    s_mov_b32 exec_hi, 0x00ffffff
    global_load_dwordx4 {R(32)}, v{vA}, s[16:17]
    global_load_dwordx4 {R(36)}, v{vA+1}, s[36:37]
    s_mov_b64 exec, -1
    global_load_dwordx2 {R(46,2)}, v{vA+2}, s[34:35]
    s_branch L_sm
    """)

    n, g = 120, 121
    a.label("L_stage1"); a.forget()
    SO = [None, 60, 61, 62, 64, 65, 66, 67, 69, 70, 71, 76, 77, 78]
    sStr = sP1
    a(f"""
    s_movk_i32 s{sStr}, 3584
    s_mov_b32 s{sP0}, {SH_OFF}
    s_cmp_eq_u32 s{sW}, 0
    s_cselect_b32 s{sStr}, 8192, s{sStr}
    s_cselect_b32 s{sP2}, 9, 8
    s_cselect_b32 s{sT3}, s{sH}, s{sHF}
    s_cselect_b32 s{sP0}, {SQ_OFF}, s{sP0}
    s_mul_i32 s{sCnt}, s{sStr}, 448
    s_lshr_b32 s{sT1}, s{sJJ}, 1
    s_mul_i32 s{sT2}, s{sT1}, 56
    s_mul_i32 s{sT2}, s{sT2}, s{sStr}
    s_lshl_b32 s{sT3}, s{sT3}, s{sP2}
    s_add_u32 s{sT2}, s{sT2}, s{sT3}
    s_and_b32 s{sT3}, s{sJJ}, 1
    s_lshl_b32 s{sT0}, s{sT3}, 8
    s_add_u32 s{sT2}, s{sT2}, s{sT0}
    s_sub_u32 s{sWA+2}, s{sCnt}, s{sT2}
    s_mul_i32 s{sT0}, s{sStr}, 14
    v_mul_u32_u24 v{vT}, s{sT0}, v{g}
    v_lshl_add_u32 v{vT}, v{n}, 4, v{vT}
    s_mov_b32 s{SO[1]}, s{sStr}
    """)
    for t in range(2, 14): a(f"s_add_u32 s{SO[t]}, s{SO[t-1]}, s{sStr}")
    a(f"""
    v_lshrrev_b32 v{vS}, 3, v{n}
    v_mul_u32_u24 v{vS}, 896, v{vS}
    v_mad_u32_u24 v{vS}, v{g}, 28, v{vS}
    s_mul_i32 s{sT0}, s{sT1}, 112
    v_add_u32 v{vS}, s{sT0}, v{vS}
    v_mov_b32 v{vS+1}, 0
    v_lshrrev_b32 v{vS+2}, 1, v{g}
    v_lshlrev_b32 v{vS+2}, 13, v{vS+2}
    v_lshl_add_u32 v{vS+2}, v{n}, 5, v{vS+2}
    s_lshl_b32 s{sT0}, s{sH}, 14
    s_add_u32 s{sT0}, s{sT0}, s{sP0}
    s_lshl_b32 s{sCnt}, s{sJJ}, 9
    s_add_u32 s{sT0}, s{sT0}, s{sCnt}
    v_add_u32 v{vS+2}, s{sT0}, v{vS+2}
    s_cmp_eq_u32 s{sW}, 0
    s_waitcnt lgkmcnt(0)
    s_cselect_b32 s{sWA}, s22, s28
    s_cselect_b32 s{sWA+1}, s23, s29
    s_add_u32 s{sWA}, s{sWA}, s{sT2}
    s_addc_u32 s{sWA+1}, s{sWA+1}, 0
    """)
    if s1w: a(f"global_load_dword v64, v{vS+2}, s[42:43]{' sc1' if s1w == 1 else ''}")
    for t in range(14):
        a(f"buffer_load_dwordx4 {R(4*t)}, v{vT}, {S(sWA)}, {('s%d' % SO[t]) if t else '0'} offen{WQP}")
    a(f"""
    global_load_dwordx4 {R(56)}, v{vS}, s[16:17]
    global_load_dwordx3 {R(60,3)}, v{vS}, s[16:17] offset:16
    global_load_dword v63, v{vS+1}, s[42:43] offset:{EP_OFF} sc1
    {"s_barrier" if b0 else "s_nop 0"}
    s_add_u32 s{sK}, s18, s{sKV}
    s_addc_u32 s{sK+1}, s19, 0
    """)
    setup2()
    a(f"""
    v_lshrrev_b32 v{vT}, 1, v{g}
    v_lshlrev_b32 v{vT}, 13, v{vT}
    v_lshl_add_u32 v{vT}, v{n}, 5, v{vT}
    v_and_b32 v{vS}, 16, v{vL}
    v_add_u32 v{vT}, v{vT}, v{vS}
    s_lshl_b32 s{sT0}, s{sH}, 14
    s_add_u32 s{sP0}, s{sP0}, s{sT0}
    s_lshl_b32 s{sT0}, s{sB}, 13
    s_add_u32 s{sP1}, s{sP0}, s{sT0}
    s_lshl_b32 s{sT2}, s{sT1}, 10
    s_add_u32 s{sP0}, s{sP0}, s{sT2}
    s_lshl_b32 s{sT2}, s{sT3}, 9
    s_add_u32 s{sP0}, s{sP0}, s{sT2}
    s_mov_b32 s{sT2}, 0x01000100
    s_mov_b32 s{sT3}, 0x03020302
    v_lshlrev_b32 v{vQ+1}, 4, v{vL}
    s_add_u32 s{sP2}, s{sP1}, 4096
    s_waitcnt vmcnt(0)
    v_and_b32 v{vQ}, 0x7f7f7f7f, v63
    v_add_u32 v{vQ}, 0x671b3501, v{vQ}
    v_xor_b32 v63, 0xe79b3501, v63
    v_and_b32 v63, 0x80808080, v63
    v_xor_b32 v{vQ}, v{vQ}, v63
    v_mov_b32 v63, 0
    v_readfirstlane_b32 s{sTag}, v{vQ}
    ds_write_b32 v63, v{vQ} offset:{L_TAG}
    """)
    stamp(5)
    for t in range(14):
        ab = 112 if t & 1 else vA
        a(f"v_perm_b32 v{vS+4}, v{56+t//2}, v{56+t//2}, s{sT3 if t & 1 else sT2}")
        for r in range(4): a(f"v_and_b32 v{ab+r}, v{vS+4}, v{vMask+r}")
        c = "0" if t == 0 else R(vS)
        a(f"v_mfma_f32_16x16x32_bf16 {R(vS)}, {R(ab)}, {R(4*t)}, {c}")
    a(f"s_cmp_eq_u32 s{sW}, 1")
    for r in range(4): a(f"v_add_u32 v{vS+r}, 0x80, v{vS+r}")
    tag_put(vS, vQ)
    a(f"buffer_store_dwordx4 {R(vS)}, v{vT}, {S(sWS)}, s{sP0} offen sc1")
    stamp(6)
    a("s_cbranch_scc1 L_hgather")
    def qload(i): a(f"buffer_load_dwordx4 {R(64+4*i)}, v{vQ+1}, {S(sWS)}, s{sP1 if i < 4 else sP2} offen offset:{1024*(i%4)} sc1")
    for f in range(KS): kload(f)
    for i in range(8): qload(i)
    poll_many("L_qp", [(64+4*i, (lambda i=i: qload(i))) for i in range(8)], vQ + 4, vQ + 5)
    for f in range(KS, 16): kload(f)
    for i in range(8): tag_clr(64 + 4 * i)
    for i in range(1, 8):
        for r in range(4): a(f"v_add_f32 v{64+r}, v{64+r}, v{64+4*i+r}")
    a(f"""
    v_cvt_pk_bf16_f32 v{vQ}, v64, v65
    v_cvt_pk_bf16_f32 v{vQ+1}, v66, v67
    v_lshlrev_b32 v{vT}, 3, v{vL}
    ds_write_b64 v{vT}, {R(vQ,2)} offset:{L_Q}
    """)
    stamp(10)
    a("s_branch L_kdone")
    a.label("L_hgather"); a.forget()
    for f in range(16): kload(f)
    h = vS
    a(f"""
    v_and_b32 v{vA}, 7, v{vL}
    v_lshrrev_b32 v{vQ}, 3, v{vL}
    v_lshlrev_b32 v{vQ}, 10, v{vQ}
    v_lshl_add_u32 v{vQ}, v{vA}, 4, v{vQ}
    s_lshl_b32 s{sT0}, s{sS}, 6
    s_add_u32 s{sP1}, s{sP1}, s{sT0}
    s_lshl_b32 s{sT1}, s{sHF}, 8
    s_lshl_b32 s{sT0}, s{sS}, 5
    s_add_u32 s{sT1}, s{sT1}, s{sT0}
    v_lshlrev_b32 v{vT}, 3, v{vA}
    v_add_u32 v{vT}, s{sT1}, v{vT}
    global_load_dwordx2 {R(118,2)}, v{vT}, s[30:31]
    """)
    def hload(): a(f"buffer_load_dwordx4 {R(h)}, v{vQ}, {S(sWS)}, s{sP1} offen sc1")
    hload()
    poll_many("L_hp", [(h, hload)], vQ + 4, vQ + 5)
    tag_clr(h)
    allred4(h, h + 4, ['ror:8', 'p16', 'p32'])
    rnd2(h, h + 1, vQ + 4); rnd2(h + 2, h + 3, vQ + 5)
    a(f"""
    v_lshlrev_b32 v{h+4}, 16, v118
    v_and_b32 v{h+5}, s{sHI}, v118
    v_lshlrev_b32 v{h+6}, 16, v119
    v_and_b32 v{h+7}, s{sHI}, v119
    """)
    for r in range(4): a(f"v_add_f32 v{h+r}, v{h+r}, v{h+4+r}")
    rnd2(h, h + 1, vQ + 4); rnd2(h + 2, h + 3, vQ + 5)
    for r in range(4): a(f"v_max_f32 v{h+r}, 0, v{h+r}")
    for r in range(4): a(f"v_mul_f32 v{h+r}, v{h+r}, v{h+r}")
    a(f"""
    v_lshlrev_b32 v{vT}, 4, v{vA}
    ds_write_b128 v{vT}, {R(h)} offset:{L_R2}
    s_nop 1
    s_branch L_kdone
    """)
    if stamps:
        a.label("L_stampout"); a.forget()
        if amp >= 0:
            if amp == 99: a("s_movk_i32 s11, 10000")
            elif amp >= 200:
                a(f"""
                s_cmp_lg_u32 s2, {amp-200}
                s_cbranch_scc1 L_end
                s_cmp_lg_u32 s{sW}, 1
                s_cbranch_scc1 L_end
                s_mov_b64 exec, -1
                s_mov_b32 s12, {TS_OFF}
                buffer_load_dword v0, off, {S(sWS)}, s12 sc1
                s_waitcnt vmcnt(0)
                v_readfirstlane_b32 s11, v0
                s_sub_u32 s11, s15, s11
                s_add_u32 s11, s11, 100
                s_min_u32 s11, s11, 1000
                s_mul_i32 s11, s11, 50
                """)
            else:
                a("s_cmp_eq_u32 s%d, 0" % STR[amp])
                a("s_cbranch_scc1 L_end")
                a("s_sub_u32 s11, s%d, s15" % STR[amp])
                a("s_min_u32 s11, s11, 20000")
                a("s_lshl_b32 s11, s11, 3")
            a.label("L_amp")
            a("s_sleep 8")
            a("s_memrealtime s[%d:%d]" % (sTS, sTS + 1))
            a("s_waitcnt lgkmcnt(0)")
            a("s_sub_u32 s12, s%d, s15" % sTS)
            a("s_cmp_lt_u32 s12, s11")
            a("s_cbranch_scc1 L_amp")
        else:
            a("s_mov_b64 exec, -1")
            a("s_waitcnt vmcnt(0)")
            for i, r in enumerate(STR): a("v_writelane_b32 v0, s%d, %d" % (r, i))
            a(f"v_lshlrev_b32 v1, 2, v{vL}")
            a("s_mov_b64 exec, 0xfff")
            a("buffer_store_dword v0, v1, %s, s%d offen" % (S(sWS), sTSo))
    a.label("L_end")
    a("s_endpgm")
    if 2 <= lst <= 6:
        a.raw(".globl tiny_kernel\n.p2align 8\n.type tiny_kernel,@function\ntiny_kernel:\n    s_endpgm")
    a.raw('.section .rodata,"a"')
    if 2 <= lst <= 6:
        a.raw(".p2align 6\n.amdhsa_kernel tiny_kernel\n  .amdhsa_next_free_vgpr NV\n  .amdhsa_next_free_sgpr 16\n  .amdhsa_accum_offset NV\n  .amdhsa_group_segment_fixed_size 0\n  .amdhsa_kernarg_size 112\n  .amdhsa_user_sgpr_count 2\n  .amdhsa_user_sgpr_kernarg_segment_ptr 1\n  .amdhsa_system_sgpr_workgroup_id_x 1\n.end_amdhsa_kernel".replace("NV", {4: "128", 5: "256"}.get(lst, "8")))
    a.raw(".p2align 6")
    a.raw(".amdhsa_kernel %s_kernel" % NAME)
    a.raw("  .amdhsa_next_free_vgpr 128")
    a.raw("  .amdhsa_next_free_sgpr 102")
    a.raw("  .amdhsa_accum_offset 128")
    a.raw("  .amdhsa_group_segment_fixed_size 0")
    a.raw("  .amdhsa_kernarg_size 112")
    a.raw("  .amdhsa_user_sgpr_count 2")
    a.raw("  .amdhsa_user_sgpr_kernarg_segment_ptr 1")
    a.raw("  .amdhsa_system_sgpr_workgroup_id_x 1")
    a.raw("  .amdhsa_float_denorm_mode_32 3")
    a.raw(".end_amdhsa_kernel")
    return a.text()

if __name__ == "__main__":
    import argparse, inspect
    ap = argparse.ArgumentParser()
    ap.add_argument("-o", default="cdna_kernels/%s.s" % NAME)
    sig = inspect.signature(gen)
    for k, p in sig.parameters.items():
        if isinstance(p.default, bool): ap.add_argument("--" + k, action="store_true")
        elif isinstance(p.default, int): ap.add_argument("--" + k, type=int, default=p.default)
        else: ap.add_argument("--" + k, default=p.default)
    x = vars(ap.parse_args()); o = x.pop("o")
    x = {k: ("" if v == "none" else v) for k, v in x.items()}
    open(o, "w").write(gen(**x))
```

```python
import sys, struct
from asmlib import Asm

NAME = "gated_mix__mha_block_cached__dense_activation_squared_relu__decode"
def f32(x): return "0x%08x" % struct.unpack('<I', struct.pack('<f', x))[0]

def gen(kv="nt", wq="", w2="", stamps=False, NPRE=2, NMID=2, swz=5, amp=-1, xs=0, wmap=0, pipe=0, fpar=0, red=2, ypad=0, yskew=256, KS=16, early=0, pf=0, cpf=0, lst=0, BL=0, b0=0, ack=0, psl=0, ywarm=2, hx=0, tp=1, osl=0, opol="", hsw=5, wl=1, wpre=8, s1w=0, rsp=0, NL=8, GS=8, ypipe=0, rb=1):
    stamps = stamps or amp >= 0
    a = Asm()
    KV = (" " + kv) if kv else ""
    WQP = (" " + wq) if wq else ""
    WP = (" " + w2) if w2 else ""
    YS = 128 if ypad else 64
    YSH = 7 if ypad else 6
    YST = 128 * YS + yskew
    EP_OFF = 0; ST_OFF = 4096; OB_OFF = 8192; SQ_OFF = OB_OFF + 262144; SH_OFF = SQ_OFF + 262144
    YB_OFF = SH_OFF + 262144; TS_OFF = 1835008; WS_USED = 2097152
    assert YB_OFF + 56 * YST <= TS_OFF
    L_Q = 0; L_ML = 512; L_R2 = 640; L_GG = 768; L_TAG = 776; L_CNT = 780; L_YP = 21504; L_F = 1024; L_OW = 5120; OWS = 1024; LDS = L_OW + 16 * OWS + 1024
    sCk0, sCk1, sH, sB, sS, sJJ, sBH, sW = 3, 4, 5, 6, 7, 8, 9, 10
    sT0, sT1, sT2, sT3 = 11, 12, 13, 14
    sK, sV, sWS, sWA, sWB = 44, 48, 52, 56, 64
    sSel = [40, 41, 60, 61]; sE = 62; sFF = 63; sHF = 1 if stamps else 93; sMK = 0 if stamps else 94
    sKV = 68
    sKT = 72; sVG = 76; sC = 78; sHI = 79; sM = 80
    sP0, sP1, sP2 = 82, 83, 84
    sRole = 85; sRed = 86; sCnt = 87
    sTS = 88; sTSo = 90; s3584 = 91; sTag = 92
    vMask = 96; vS = 100; vQ = 108; vO = 108; vA = 116; vKo = 124; vVo = 125; vL = 126; vT = 127
    LIM = 1 << 23
    def R(b, n=4): return "v[%d:%d]" % (b, b + n - 1)
    def S(b, n=4): return "s[%d:%d]" % (b, b + n - 1)
    STR = [26, 27, 93, 94, 95, 96, 97, 98, 99, 100, 101, 15]
    def stamp(idx):
        if not stamps: return
        a("s_memrealtime s[%d:%d]" % (sTS, sTS + 1))
        a("s_waitcnt lgkmcnt(0)")
        a("s_mov_b32 s%d, s%d" % (STR[idx], sTS))
    def endpgm():
        if stamps: a("s_branch L_stampout")
        else: a("s_endpgm")
    DPPF = "row_mask:0xf bank_mask:0xf"
    ROW16 = ['ror:8', 'ror:4', 'ror:2', 'ror:1']
    Q8 = ("quad_perm:[1,0,3,2]", "quad_perm:[2,3,0,1]", "row_half_mirror")
    def kload(f):
        u, i = f >> 2, f & 3
        a(f"buffer_load_dwordx4 {R(4*f)}, v{vKo}, {S(sK)}, s{sKT+u} offen offset:{128*i}{KV}")
    def vload(idx):
        G, t, hf = idx >> 3, (idx >> 1) & 3, idx & 1
        base = 64 if G == 0 else 0
        a(f"buffer_load_dwordx4 {R(base+4*(2*t+hf))}, v{vVo}, {S(sV)}, s{sVG+G} offen offset:{512*t+256*hf}{KV}")
    def allred4(base, tmp, steps, op="add"):
        for st in steps:
            if st.startswith('ror'):
                for r in range(4): a(f"v_{op}_f32_dpp v{base+r}, v{base+r}, v{base+r} row_{st} {DPPF}")
            else:
                sw = "v_permlane16_swap_b32" if st == 'p16' else "v_permlane32_swap_b32"
                for r in range(4): a(f"v_mov_b32 v{tmp+r}, v{base+r}")
                for r in range(4): a(f"{sw} v{base+r}, v{tmp+r}")
                for r in range(4): a(f"v_{op}_f32 v{base+r}, v{base+r}, v{tmp+r}")
    def rnd2(x, y, tmp):
        a(f"v_cvt_pk_bf16_f32 v{tmp}, v{x}, v{y}")
        a(f"v_lshlrev_b32 v{x}, 16, v{tmp}")
        a(f"v_and_b32 v{y}, s{sHI}, v{tmp}")
    def tag_put(base, vtag):
        for r in range(4): a(f"v_perm_b32 v{base+r}, v{base+r}, v{vtag}, s{sSel[r]}")
    def tag_chk(base, t0, t1):
        a(f"v_perm_b32 v{t0}, v{base+1}, v{base}, s{sCk0}")
        a(f"v_perm_b32 v{t1}, v{base+3}, v{base+2}, s{sCk1}")
        a(f"v_or_b32 v{t0}, v{t0}, v{t1}")
        a(f"v_cmp_ne_u32 vcc, s{sTag}, v{t0}")
    def poll_many(lbl, loads, t0, t1):
        a(f"s_mov_b32 s{sCnt}, 0")
        a.label(lbl); a.forget()
        a("s_waitcnt vmcnt(0)")
        a(f"s_mov_b32 s{sE}, 0")
        for i, (base, fn) in enumerate(loads):
            tag_chk(base, t0, t1)
            a(f"s_cbranch_vccz {lbl}_s{i}")
            a("s_mov_b64 exec, vcc")
            fn()
            a("s_mov_b64 exec, -1")
            a(f"s_mov_b32 s{sE}, 1")
            a.label(f"{lbl}_s{i}")
        a(f"""
        s_cmp_eq_u32 s{sE}, 0
        s_cbranch_scc1 {lbl}_ok
        s_add_u32 s{sCnt}, s{sCnt}, 1
        s_cmp_gt_u32 s{sCnt}, {LIM}
        s_cbranch_scc0 {lbl}
        s_waitcnt vmcnt(0)
        """)
        a.label(lbl + "_ok"); a.forget()
    def setup2():
        a(f"""
        s_add_u32 s{sV}, s20, s{sKV}
        s_addc_u32 s{sV+1}, s21, 0
        s_mov_b32 s{sWS}, s42
        s_mov_b32 s{sWS+1}, s43
        """)
        if stamps:
            for r in STR[:11]: a("s_mov_b32 s%d, 0" % r)
        tmp = vS
        a(f"""
        v_and_b32 v{tmp}, 1, v{vL}
        v_lshlrev_b32 v{tmp}, 4, v{tmp}
        v_mov_b32 v{tmp+1}, 0xffff
        v_lshlrev_b32 v{tmp+1}, v{tmp}, v{tmp+1}
        v_bfe_u32 v{tmp+2}, v{vL}, 1, 2
        """)
        for r in range(4):
            a(f"v_cmp_eq_u32 vcc, {r}, v{tmp+2}")
            a(f"s_mov_b32 s{sSel[r]}, {0x07060500 + r}")
            a(f"v_cndmask_b32 v{vMask+r}, 0, v{tmp+1}, vcc")
        a(f"""
        s_mov_b32 s{sCk0}, 0x0c0c0400
        s_mov_b32 s{sCk1}, 0x04000c0c
        s_movk_i32 s{sMK}, 0xff00
        """)
    def tag_clr(base, dst=None):
        for r in range(4): a(f"v_and_b32 v{(base if dst is None else dst)+r}, s{sMK}, v{base+r}")

    for ln in (
        "; Fused decode attention + squared-ReLU FFN + sigmoid gate in one launch (generated by gen/gen19.py).",
        "; 256 workgroups x 16 waves; workgroup = (batch, head, 512-key split), wave = 32 keys held in registers.",
        ";  - q / FFN hidden: each workgroup computes a 64x112 block of x@wq (and x@w1), partials exchanged through d_ws",
        ";  - QK^T, P.V and the small GEMVs run on v_mfma_f32_16x16x32_bf16 (diagonal-operand form for n-contiguous data)",
        ";  - softmax: true max per wave -> workgroup -> head (exact rescale), o slices exchanged, wo GEMV, final sum",
        ";  - hand-offs: sc1 stores / sc1 loads, every 16-byte granule carries a per-launch tag derived from an epoch word",
        ):
        a.raw(ln)
    if lst == 2: a.raw("; @launch kernel=tiny_kernel grid=(1,1,1) block=(64,1,1) lds=0")
    if lst: a.raw("; @launch kernel=%s_kernel grid=(256,1,1) block=(1024,1,1) lds=%d" % (NAME, LDS))
    else: a.raw("; @launch grid=(256,1,1) block=(1024,1,1) lds=%d" % LDS)
    if lst == 3: a.raw("; @launch kernel=tiny_kernel grid=(1,1,1) block=(64,1,1) lds=0")
    if lst == 4: a.raw("; @launch kernel=tiny_kernel grid=(256,1,1) block=(1024,1,1) lds=21504")
    if lst == 5: a.raw("; @launch kernel=tiny_kernel grid=(256,1,1) block=(512,1,1) lds=21504")
    if lst == 6: a.raw("; @launch kernel=tiny_kernel grid=(256,1,1) block=(64,1,1) lds=0")
    if lst == 7: a.raw("; @launch kernel=%s_kernel grid=(256,1,1) block=(1024,1,1) lds=%d" % (NAME, LDS))
    a.raw('.amdgcn_target "amdgcn-amd-amdhsa--gfx950"')
    a.raw(".text")
    a.raw(".globl %s_kernel" % NAME)
    a.raw(".p2align 8")
    a.raw(".type %s_kernel,@function" % NAME)
    a.raw("%s_kernel:" % NAME)
    a("s_cmp_ge_u32 s2, 256")
    a("s_cbranch_scc1 L_end")
    stamp(11)
    a("s_load_dwordx16 s[16:31], s[0:1], 0")
    a("s_load_dwordx8 s[32:39], s[0:1], 64")
    a("s_load_dwordx2 s[42:43], s[0:1], 104")
    n, g = 120, 121
    SWZ = {0: f"s_mov_b32 s{sT3}, 0", 1: f"s_mov_b32 s{sT3}, s{sW}", 2: f"s_lshr_b32 s{sT3}, s{sW}, 2",
           3: f"s_lshr_b32 s{sT3}, s{sW}, 2\n s_xor_b32 s{sT3}, s{sT3}, s{sW}", 4: f"s_add_u32 s{sT3}, s{sW}, s{sS}",
           5: f"s_xor_b32 s{sT3}, s{sW}, s{sH}", 6: f"s_lshr_b32 s{sT3}, s{sW}, 1", 7: f"s_lshr_b32 s{sT3}, s{sS}, 1\n s_add_u32 s{sT3}, s{sT3}, s{sW}",
           8: f"s_mov_b32 s{sT3}, s{sH}", 9: f"s_lshr_b32 s{sT3}, s{sH}, 2\n s_xor_b32 s{sT3}, s{sT3}, s{sW}", 10: f"s_xor_b32 s{sT3}, s{sW}, s{sH}\n s_xor_b32 s{sT3}, s{sT3}, s{sS}",
           11: f"s_mul_i32 s{sT3}, s2, 0x9e3779b1\n s_lshr_b32 s{sT3}, s{sT3}, 27\n s_xor_b32 s{sT3}, s{sT3}, s{sW}", 12: f"s_add_u32 s{sT3}, s{sW}, s{sH}",
           13: f"s_lshr_b32 s{sT3}, s{sH}, 2\n s_xor_b32 s{sT3}, s{sT3}, s{sH}\n s_xor_b32 s{sT3}, s{sT3}, s{sW}",
           14: f"s_lshr_b32 s{sT3}, s{sH}, 1\n s_xor_b32 s{sT3}, s{sT3}, s{sW}", 15: f"s_lshr_b32 s{sT3}, s{sBH}, 3\n s_xor_b32 s{sT3}, s{sT3}, s{sW}",
           16: f"s_lshr_b32 s{sT3}, s{sH}, 2"}[swz]
    sX, sJ = sCk0, sCk1
    HSW = {0: f"s_mov_b32 s{sT2}, 0", 1: f"s_mov_b32 s{sT2}, s{sH}", 2: f"s_mov_b32 s{sT2}, s{sJJ}", 3: f"s_mov_b32 s{sT2}, s{sJ}",
           4: f"s_mul_i32 s{sT2}, s2, 0x9e3779b1\n s_lshr_b32 s{sT2}, s{sT2}, 20", 5: f"s_lshr_b32 s{sT2}, s{sH}, 2", 6: f"s_and_b32 s{sT2}, s{sH}, 12",
           7: f"s_lshl_b32 s{sT2}, s{sS}, 1", 8: f"s_mov_b32 s{sT2}, s{sS}",
           9: f"s_lshr_b32 s{sT2}, s{sBH}, 2", 10: f"s_lshr_b32 s{sT2}, s{sBH}, 1", 11: f"s_mov_b32 s{sT2}, s{sB}",
           12: f"s_lshr_b32 s{sT2}, s{sH}, 3", 13: f"s_lshl_b32 s{sT2}, s{sH}, 2\n s_lshr_b32 s{sT1}, s{sH}, 2\n s_or_b32 s{sT2}, s{sT2}, s{sT1}",
           14: f"s_lshl_b32 s{sT2}, s{sH}, 1\n s_or_b32 s{sT2}, s{sT2}, s{sB}"}[hsw]
    a(f"""
    v_lshrrev_b32 v{vT}, 6, v0
    v_and_b32 v{vL}, 63, v0
    s_and_b32 s{sX}, s2, 7
    v_readfirstlane_b32 s{sW}, v{vT}
    s_lshr_b32 s{sJ}, s2, 3
    """)
    if wmap == 1: a(f"""
    s_lshr_b32 s{sT0}, s{sJ}, 4
    s_lshl_b32 s{sH}, s{sX}, 1
    s_add_u32 s{sH}, s{sH}, s{sT0}
    s_lshr_b32 s{sB}, s{sJ}, 3
    s_and_b32 s{sB}, s{sB}, 1
    s_and_b32 s{sS}, s{sJ}, 7
    """)
    elif wmap == 0: a(f"""
    s_and_b32 s{sH}, s{sJ}, 15
    s_lshr_b32 s{sB}, s{sJ}, 4
    s_xor_b32 s{sS}, s{sX}, {fpar}
    """)
    elif wmap == 4: a(f"""
    s_and_b32 s{sT0}, s{sJ}, 3
    s_lshr_b32 s{sH}, s{sX}, 1
    s_lshl_b32 s{sH}, s{sH}, 2
    s_add_u32 s{sH}, s{sH}, s{sT0}
    s_lshr_b32 s{sB}, s{sJ}, 4
    s_lshr_b32 s{sS}, s{sJ}, 1
    s_and_b32 s{sS}, s{sS}, 6
    s_and_b32 s{sT0}, s{sX}, 1
    s_xor_b32 s{sT0}, s{sT0}, {fpar}
    s_or_b32 s{sS}, s{sS}, s{sT0}
    """)
    a(f"""
    s_lshl_b32 s{sJJ}, s{sB}, 3
    s_add_u32 s{sJJ}, s{sJJ}, s{sS}
    s_lshl_b32 s{sBH}, s{sB}, 4
    s_add_u32 s{sBH}, s{sBH}, s{sH}
    s_and_b32 s{sT0}, s{sS}, 1
    s_lshl_b32 s{sT0}, s{sT0}, 4
    s_xor_b32 s{sHF}, s{sH}, {hx}
    s_or_b32 s{sT0}, s{sT0}, s{sHF}
    s_cmp_lt_u32 s{sT0}, 14
    s_cselect_b32 s{sFF}, 1, 0
    v_and_b32 v{n}, 15, v{vL}
    v_lshrrev_b32 v{g}, 4, v{vL}
    v_and_b32 v{vT}, 7, v{vL}
    v_lshlrev_b32 v{vKo}, 9, v{vT}
    v_lshl_add_u32 v{vKo}, v{g}, 4, v{vKo}
    v_and_b32 v{vT}, 8, v{vL}
    v_lshl_add_u32 v{vKo}, v{vT}, 3, v{vKo}
    {HSW}
    s_xor_b32 s{sT2}, s{sT2}, s{sW}
    s_and_b32 s{sT2}, s{sT2}, 15
    s_lshl_b32 s{sT2}, s{sT2}, 14
    {SWZ}
    s_and_b32 s{sT3}, s{sT3}, 3
    s_lshl_b32 s{sT1}, s{sT3}, 12
    s_or_b32 s{sKT}, s{sT2}, s{sT1}
    s_xor_b32 s{sKT+1}, s{sKT}, 4096
    s_xor_b32 s{sKT+2}, s{sKT}, 8192
    s_xor_b32 s{sKT+3}, s{sKT}, 12288
    s_lshl_b32 s{sKV}, s{sBH}, 21
    s_lshl_b32 s{sT1}, s{sS}, 18
    s_add_u32 s{sKV}, s{sKV}, s{sT1}
    s_mov_b32 s{sK+2}, 262144
    s_mov_b32 s{sK+3}, 0x00020000
    s_mov_b32 s{sV+2}, 262144
    s_mov_b32 s{sV+3}, 0x00020000
    s_mov_b32 s{sWS+2}, {WS_USED}
    s_mov_b32 s{sWS+3}, 0x00020000
    s_mov_b32 s{sWA+3}, 0x00020000
    s_mov_b32 s{sHI}, 0xffff0000
    s_cmp_le_u32 s{sW}, s{sFF}
    s_cbranch_scc1 L_stage1
    s_waitcnt lgkmcnt(0)
    s_add_u32 s{sK}, s18, s{sKV}
    s_addc_u32 s{sK+1}, s19, 0
    """)
    if early: a("s_memrealtime s[70:71]")
    if pf:
        a(f"""
        s_cmp_lg_u32 s{sW}, 3
        s_cbranch_scc1 L_nopf
        s_lshl_b32 s{sT0}, s{sH}, 3
        s_add_u32 s{sT0}, s{sT0}, s{sS}
        s_mul_i32 s{sT0}, s{sT0}, {16*896}
        s_mul_i32 s{sT1}, s{sT0}, s{sFF}
        s_lshl_b32 s{sT0}, s{sT0}, 1
        v_mov_b32 v64, s{sKV}
        v_mov_b32 v65, s{sT0}
        v_mov_b32 v66, s{sT1}
        v_mov_b32 v67, {OB_OFF}
        s_mov_b64 exec, 1
        global_load_dword v68, v64, s[20:21] nt
        global_load_dword v69, v65, s[24:25] nt
        global_load_dword v70, v66, s[32:33] nt
        global_load_dword v71, v67, s[42:43] nt
        s_mov_b64 exec, -1
        """)
        a.label("L_nopf")
    if b0: a("s_barrier")
    for f in range(16):
        kload(f)
        if BL and f % BL == BL - 1 and f < 15: a("s_nop 0")
    if cpf:
        a(f"""
        s_cmp_lg_u32 s{sW}, 2
        s_cbranch_scc1 L_nocpf
        s_cmp_ge_u32 s2, {8*cpf}
        s_cbranch_scc1 L_nocpf
        s_getpc_b64 s[70:71]
        v_lshlrev_b32 v64, 7, v{vL}
        s_mov_b32 exec_hi, 0xfff
        global_load_dword v65, v64, s[70:71]
        s_mov_b64 exec, -1
        """)
        a.label("L_nocpf")
    setup2()
    if early:
        a("s_mov_b32 s%d, s70" % STR[9])
        stamp(7)
        a("s_waitcnt vmcnt(15)")
        stamp(10)
    a.label("L_kdone"); a.forget()
    a(f"""
    v_lshlrev_b32 v{vVo}, 11, v{g}
    v_lshl_add_u32 v{vVo}, v{n}, 4, v{vVo}
    s_and_b32 s{sT1}, s{sKT}, 4096
    v_xor_b32 v{vVo}, s{sT1}, v{vVo}
    s_andn2_b32 s{sVG}, s{sKT}, 4096
    s_xor_b32 s{sVG+1}, s{sVG}, 8192
    """)
    for idx in range(NPRE): vload(idx)
    a(f"""
    s_mov_b32 s{sC}, {f32(1.4426950408889634/16)}
    s_movk_i32 s{s3584}, 3584
    s_lshr_b32 s{sRole}, s{sW}, 2
    s_lshl_b32 s{sT0}, s{sH}, 3
    s_add_u32 s{sT0}, s{sT0}, s{sS}
    s_mul_i32 s{sT0}, s{sT0}, {32*896}
    s_lshl_b32 s{sT1}, s{sHF}, 3
    s_add_u32 s{sT1}, s{sT1}, s{sS}
    s_mul_i32 s{sT1}, s{sT1}, {16*896}
    s_mul_i32 s{sT1}, s{sT1}, s{sFF}
    s_cmp_eq_u32 s{sRole}, 1
    s_cselect_b32 s{sT0}, s{sT0}, s{sT1}
    s_cselect_b32 s{sT2}, s24, s32
    s_cselect_b32 s{sT3}, s25, s33
    s_add_u32 s{sWB}, s{sT2}, s{sT0}
    s_addc_u32 s{sWB+1}, s{sT3}, 0
    s_mov_b32 s{sWB+2}, 28672
    s_mov_b32 s{sWB+3}, 0x00020000
    s_lshl_b32 s{sT0}, s{sFF}, 1
    s_cmp_eq_u32 s{sRole}, 2
    s_cselect_b32 s{sRole}, s{sT0}, s{sRole}
    v_and_b32 v{vT}, 8, v{vL}
    v_lshlrev_b32 v{vT}, 3, v{vT}
    v_lshl_add_u32 v{vT}, v{g}, 4, v{vT}
    v_mul_u32_u24 v{vKo}, 7168, v{g}
    v_lshl_add_u32 v{vKo}, v{n}, 4, v{vKo}
    s_and_b32 s{sT0}, s{sW}, 3
    s_lshl_b32 s{sT1}, s{sT0}, 8
    v_add_u32 v{vKo}, s{sT1}, v{vKo}
    s_cmp_eq_u32 s{sT0}, 3
    s_cselect_b32 s{sT0}, 8, 0
    v_and_b32 v{vS}, s{sT0}, v{vL}
    v_lshl_or_b32 v{vKo}, v{vS}, 27, v{vKo}
    """)
    a(f"""
    """)
    if rsp == 0: a(f"""
    s_lshl_b32 s{sRed}, s{sH}, 2
    s_lshr_b32 s{sT0}, s{sS}, 1
    s_add_u32 s{sRed}, s{sRed}, s{sT0}
    s_bitcmp1_b32 s{sS}, 0
    s_cselect_b32 s{sRed}, s{sRed}, 99
    """)
    if rsp == 1: a(f"""
    s_lshl_b32 s{sRed}, s{sH}, 1
    s_lshr_b32 s{sT0}, s{sS}, 1
    s_add_u32 s{sRed}, s{sRed}, s{sT0}
    s_and_b32 s{sT0}, s{sS}, 5
    s_cmp_eq_u32 s{sT0}, 1
    s_cselect_b32 s{sRed}, s{sRed}, 99
    """)
    if rsp == 2: a(f"""
    s_lshl_b32 s{sRed}, s{sH}, 1
    s_add_u32 s{sRed}, s{sRed}, s{sS}
    s_cmp_lt_u32 s{sS}, 2
    s_cselect_b32 s{sRed}, s{sRed}, 99
    """)
    a(f"""
    s_cmp_lg_u32 s{sW}, 2
    s_cbranch_scc1 L_noz
    v_mov_b32 v{vS}, 0
    v_mov_b32 v{vS+1}, 0
    v_mov_b32 v{vS+2}, 0
    v_mov_b32 v{vS+3}, 0
    v_lshlrev_b32 v{vS+4}, 4, v{vL}
    ds_write_b128 v{vS+4}, {R(vS)} offset:{L_YP}
    ds_write_b32 v{vS}, v{vS} offset:{L_CNT}
    """)
    a.label("L_noz")
    if stamps:
        a(f"""
        s_lshl_b32 s{sTSo}, s2, 4
        s_add_u32 s{sTSo}, s{sTSo}, s{sW}
        s_lshl_b32 s{sTSo}, s{sTSo}, 6
        s_add_u32 s{sTSo}, s{sTSo}, {TS_OFF}
        """)
    if amp >= 200:
        a(f"""
        s_lshl_b32 s11, s2, 4
        s_add_u32 s11, s11, s{sW}
        s_cmp_lg_u32 s11, 1
        s_cbranch_scc1 L_nts
        v_mov_b32 v{vQ}, s15
        s_mov_b32 s12, {TS_OFF}
        buffer_store_dword v{vQ}, off, {S(sWS)}, s12 sc1
        """)
        a.label("L_nts")
    stamp(0)
    a("s_waitcnt lgkmcnt(0)")
    a("s_barrier")
    assert NPRE <= 4
    qb = [80, 84, 88, 92]
    for i in range(4): a(f"ds_read_b128 {R(qb[i])}, v{vT} offset:{L_Q+128*i}")
    a(f"s_sub_u32 s{sT0}, s{sRole}, 1")
    a(f"s_waitcnt vmcnt({NPRE})")
    stamp(1)
    acc = [vS, vS + 4, vQ, vQ + 4]
    for i in range(4):
        a(f"s_waitcnt lgkmcnt({3-i})")
        for u in range(4):
            c = "0" if i == 0 else R(acc[u])
            a(f"v_mfma_f32_16x16x32_bf16 {R(acc[u])}, {R(4*(4*u+i))}, {R(qb[i])}, {c}")
    a(f"""
    {f"s_cmp_lg_u32 s{sT0}, 1" if wl else f"s_cmp_gt_u32 s{sT0}, 1"}
    s_cbranch_scc1 L_now
    """)
    for t in range(8):
        so_ = "0" if t < 4 else f"s{s3584}"
        a(f"buffer_load_dwordx4 {R(32+4*t)}, v{vKo}, {S(sWB)}, {so_} offen offset:{896*(t%4)}{WP}")
    a.label("L_now")
    NB2 = NPRE + NMID
    for idx in range(NPRE, NB2): vload(idx)
    a(f"""
    s_cmp_eq_u32 s{sW}, 3
    s_cbranch_scc1 L_ldgate
    """)
    a.label("L_sm")
    a("s_nop 1")
    for r in range(4): a(f"v_permlane32_swap_b32 v{acc[0]+r}, v{acc[1]+r}")
    for r in range(4): a(f"v_permlane32_swap_b32 v{acc[2]+r}, v{acc[3]+r}")
    for r in range(4): a(f"v_add_f32_dpp v{vS+r}, v{acc[1]+r}, v{acc[0]+r} row_ror:8 {DPPF}")
    for r in range(4): a(f"v_add_f32_dpp v{vS+4+r}, v{acc[3]+r}, v{acc[2]+r} row_ror:8 {DPPF}")
    for k in range(0, 8, 2): a(f"v_cvt_pk_bf16_f32 v{vA+k//2}, v{vS+k}, v{vS+k+1}")
    for k in range(4): a(f"v_mov_b32_dpp v{vA+k}, v{vA+k} row_ror:8 row_mask:0xf bank_mask:0xc")
    for k in range(0, 8, 2):
        a(f"v_lshlrev_b32 v{vS+k}, 16, v{vA+k//2}")
        a(f"v_and_b32 v{vS+k+1}, s{sHI}, v{vA+k//2}")
    m, t1, l, mc = vA, vA + 1, vA + 2, vA + 3
    a(f"""
    v_max3_f32 v{m}, v{vS}, v{vS+1}, v{vS+2}
    v_max3_f32 v{t1}, v{vS+3}, v{vS+4}, v{vS+5}
    v_max3_f32 v{m}, v{m}, v{vS+6}, v{vS+7}
    v_max_f32 v{m}, v{m}, v{t1}
    v_mov_b32 v{t1}, v{m}
    v_permlane16_swap_b32 v{m}, v{t1}
    v_max_f32 v{m}, v{m}, v{t1}
    v_mov_b32 v{t1}, v{m}
    v_permlane32_swap_b32 v{m}, v{t1}
    v_max_f32 v{m}, v{m}, v{t1}
    v_mul_f32 v{mc}, s{sC}, v{m}
    """)
    for k in range(8): a(f"v_fma_f32 v{vS+k}, v{vS+k}, s{sC}, -v{mc}")
    for k in range(8): a(f"v_exp_f32 v{vS+k}, v{vS+k}")
    a(f"""
    v_add_f32 v{l}, v{vS}, v{vS+1}
    v_add_f32 v{t1}, v{vS+2}, v{vS+3}
    v_add_f32 v{l}, v{l}, v{vS+4}
    v_add_f32 v{t1}, v{t1}, v{vS+5}
    v_add_f32 v{l}, v{l}, v{vS+6}
    v_add_f32 v{t1}, v{t1}, v{vS+7}
    v_add_f32 v{l}, v{l}, v{t1}
    v_mov_b32 v{t1}, v{l}
    v_permlane16_swap_b32 v{l}, v{t1}
    v_add_f32 v{l}, v{l}, v{t1}
    v_mov_b32 v{t1}, v{l}
    v_permlane32_swap_b32 v{l}, v{t1}
    v_add_f32 v{t1}, v{l}, v{t1}
    s_lshl_b32 s{sT0}, s{sW}, 3
    v_mov_b32 v{vT}, s{sT0}
    ds_write_b64 v{vT}, {R(m,2)} offset:{L_ML}
    v_and_b32 v{vT}, 15, v{vL}
    v_lshlrev_b32 v{vT}, 3, v{vT}
    v_mov_b32 v{l}, 0
    s_waitcnt lgkmcnt(0)
    s_barrier
    ds_read_b64 {R(vO+4,2)}, v{vT} offset:{L_ML}
    ds_read_b32 v{vKo}, v{l} offset:{L_TAG}
    """)
    if wl: a("s_setprio 1")
    for idx in range(NB2, 16 - NL): vload(idx)
    a("s_waitcnt lgkmcnt(0)")
    a(f"v_readfirstlane_b32 s{sTag}, v{vKo}")
    stamp(2)
    mi, li, M, L = vO + 4, vO + 5, vO, vO + 2
    a(f"v_mov_b32 v{M}, v{mi}")
    for k in (8, 4, 2, 1): a(f"v_max_f32_dpp v{M}, v{M}, v{M} row_ror:{k} {DPPF}")
    a(f"""
    v_sub_f32 v{m}, v{m}, v{M}
    v_mul_f32 v{m}, s{sC}, v{m}
    v_exp_f32 v{m}, v{m}
    s_cmp_eq_u32 s{sW}, 2
    s_cbranch_scc1 L_stat
    """)
    a.label("L_nostat")
    a(f"""
    v_and_b32 v{t1}, 8, v{vL}
    v_cmp_ne_u32 vcc, 0, v{t1}
    v_mov_b32 v{t1}, s{sHI}
    v_cndmask_b32 v{t1}, 0, v{t1}, vcc
    """)
    for k in range(8): a(f"v_mul_f32 v{vS+k}, v{vS+k}, v{m}")
    for k in range(8):
        tt = vA + 4 + (k & 3)
        a(f"v_cvt_pk_bf16_f32 v{tt}, v{vS+k}, v{vS+k}")
        a(f"v_and_b32 v{tt}, v{t1}, v{tt}")
        a(f"v_sub_f32 v{vS+k}, v{vS+k}, v{tt}")
        a(f"v_cvt_pk_bf16_f32 v{vS+k}, v{vS+k}, v{vS+k}")
    if NL:
        a(f"""
        s_cmp_eq_u32 s{sW}, 2
        s_cbranch_scc1 L_gsync
        """)
        a.label("L_gsync_ret")
        a("s_barrier")
        for idx in range(16 - NL, 16): vload(idx)
    for t in range(4):
        ab = vA + 4 * (t & 1)
        for r in range(4): a(f"v_and_b32 v{ab+r}, v{vS+t}, v{vMask+r}")
        a(f"s_waitcnt vmcnt({14-2*t})")
        for hf in range(2):
            c = "0" if t == 0 else R(vO + 4 * hf)
            a(f"v_mfma_f32_16x16x32_bf16 {R(vO+4*hf)}, {R(ab)}, {R(64+4*(2*t+hf))}, {c}")
    stamp(3)
    for t in range(4):
        for r in range(4): a(f"v_and_b32 v{64+4*t+r}, v{vS+4+t}, v{vMask+r}")
    g, n = vA, vA + 1
    vTag = vKo; vSel = vVo
    a(f"""
    v_lshrrev_b32 v{g}, 4, v{vL}
    v_and_b32 v{n}, 15, v{vL}
    s_lshl_b32 s{sT0}, s{sW}, 10
    v_lshrrev_b32 v83, 5, v{vL}
    v_lshlrev_b32 v83, 9, v83
    v_lshl_add_u32 v83, v{n}, 5, v83
    v_and_b32 v{vT}, 16, v{vL}
    v_add3_u32 v83, v83, v{vT}, s{sT0}
    v_and_b32 v82, 31, v{vL}
    v_lshlrev_b32 v82, 2, v82
    v_lshrrev_b32 v81, 5, v{vL}
    v_lshl_add_u32 v81, v81, 13, v82
    s_and_b32 s{sT1}, s{sW}, 7
    s_lshl_b32 s{sT0}, s{sT1}, 7
    v_add_u32 v81, s{sT0}, v81
    v_and_b32 v{vSel}, 3, v{vL}
    v_add_u32 v{vSel}, 0x07060500, v{vSel}
    v_mov_b32 v80, 0
    s_lshl_b32 s{sP0}, s{sBH}, 3
    s_add_u32 s{sP0}, s{sP0}, s{sT1}
    s_lshl_b32 s{sP0}, s{sP0}, 3
    s_add_u32 s{sP0}, s{sP0}, s{sS}
    s_lshl_b32 s{sP0}, s{sP0}, 7
    s_add_u32 s{sP0}, s{sP0}, {OB_OFF}
    s_cmp_eq_u32 s{sRole}, 1
    s_cbranch_scc1 L_mid1
    s_cmp_eq_u32 s{sRole}, 2
    s_cbranch_scc1 L_mid2
    s_cmp_ge_u32 s{sW}, 8
    s_cbranch_scc1 L_mid3
    s_cmp_eq_u32 s{sW}, 3
    s_cbranch_scc1 L_gate
    """)
    if ywarm == 2: a(f"""
    s_cmp_eq_u32 s{sW}, 1
    s_cbranch_scc1 L_ywarm
    """)
    a.label("L_pv2"); a.forget()
    for t in range(4):
        a(f"s_waitcnt vmcnt({6-2*t})")
        for hf in range(2):
            a(f"v_mfma_f32_16x16x32_bf16 {R(vO+4*hf)}, {R(64+4*t)}, {R(4*(2*t+hf))}, {R(vO+4*hf)}")
    if ack: stamp(0)
    a(f"s_cmp_lt_u32 s{sW}, 8")
    for r in range(4): a(f"v_permlane32_swap_b32 v{vO+r}, v{vO+4+r}")
    for r in range(4): a(f"v_add_f32 v{vO+r}, v{vO+r}, v{vO+4+r}")
    a(f"""
    ds_write_b128 v83, {R(vO)} offset:{L_OW}
    s_cbranch_scc1 L_low
    {"s_setprio 3" if tp else "s_nop 0"}
    s_waitcnt lgkmcnt(0)
    s_barrier
    """)
    for i in range(4): a(f"ds_read2st64_b32 {R(2*i,2)}, v81 offset0:{L_OW//256+8*i} offset1:{L_OW//256+8*i+4}")
    a(f"""
    s_waitcnt lgkmcnt(2)
    v_add_f32 v0, v0, v1
    v_add_f32 v2, v2, v3
    s_waitcnt lgkmcnt(0)
    v_add_f32 v4, v4, v5
    v_add_f32 v6, v6, v7
    v_add_f32 v0, v0, v2
    v_add_f32 v4, v4, v6
    v_add_f32 v0, v0, v4
    v_mov_b32 v1, v0
    v_permlane32_swap_b32 v0, v1
    v_add_f32 v0, v0, v1
    v_perm_b32 v0, v0, v{vTag}, v{vSel}
    s_mov_b32 exec_hi, 0
    buffer_store_dword v0, v82, {S(sWS)}, s{sP0} offen sc1
    """)
    stamp(4)
    a(f"""
    s_cmp_lt_u32 s{sRed}, 28
    s_cbranch_scc1 L_reduce
    """)
    endpgm()
    a.label("L_low"); a.forget()
    a(f"""
    s_cmp_eq_u32 s{sRole}, 1
    s_cbranch_scc1 L_gemv1
    s_waitcnt lgkmcnt(0)
    s_barrier
    """)
    if xs: endpgm()
    a(f"""
    s_add_u32 s{sT0}, s{sRed}, s{sB}
    s_add_u32 s{sT0}, s{sT0}, s{sW}
    s_max_u32 s{sT1}, s{sRed}, 28
    s_cmp_lg_u32 s{sT1}, s{sRed}
    s_cselect_b32 s{sT0}, 99, s{sT0}
    s_cmp_eq_u32 s{sT0}, 28
    s_cbranch_scc1 L_epoch
    """)
    endpgm()

    a.label("L_gemv1"); a.forget()
    cf = 123
    def oload(): a(f"buffer_load_dwordx4 {R(0)}, v122, {S(sWS)}, s{sP1} offen sc1")
    a(f"s_mov_b32 s{sCnt}, 0")
    a.label("L_stchk")
    a(f"""
    v_cmp_ne_u32 vcc, s{sTag}, v85
    v_cmp_ne_u32 {S(sM,2)}, s{sTag}, v87
    s_or_b64 vcc, vcc, {S(sM,2)}
    s_cbranch_vccz L_stok
    s_add_u32 s{sCnt}, s{sCnt}, 1
    s_cmp_gt_u32 s{sCnt}, {LIM}
    s_cbranch_scc1 L_stok
    buffer_load_dwordx4 {R(84)}, v89, {S(sWS)}, s{sT3} offen sc1
    s_waitcnt vmcnt(0)
    s_branch L_stchk
    """)
    a.label("L_stok"); a.forget()
    M = vA
    a(f"v_mov_b32 v{M}, v84")
    for d in Q8: a(f"v_max_f32_dpp v{M}, v{M}, v{M} {d} {DPPF}")
    a(f"""
    v_sub_f32 v{cf}, v84, v{M}
    v_mul_f32 v{cf}, s{sC}, v{cf}
    v_exp_f32 v{cf}, v{cf}
    v_mul_f32 v{M}, v{cf}, v86
    """)
    for d in Q8: a(f"v_add_f32_dpp v{M}, v{M}, v{M} {d} {DPPF}")
    a(f"""
    v_rcp_f32 v{M}, v{M}
    v_mul_f32 v{cf}, v{cf}, v{M}
    s_mov_b32 s{sCnt}, 0
    s_cmp_eq_u32 s{sFF}, 0
    """)
    def wol(t):
        so_ = "0" if t < 4 else f"s{s3584}"
        a(f"buffer_load_dwordx4 {R(32+4*t)}, v121, {S(sWB)}, {so_} offen offset:{896*(t%4)}{WP}")
    if wl:
        a("s_setprio 0")
        for t in range(wpre): wol(t)
        a("s_setprio 2")
    a(f"""
    s_waitcnt lgkmcnt(0)
    s_barrier
    """)
    if xs: endpgm()
    if wl:
        for t in range(wpre, 8): wol(t)
    oload()
    a(f"""
    ds_read_b64 {R(90,2)}, v80 offset:{L_GG}
    s_cbranch_scc1 L_nof
    ds_read_b128 {R(92)}, v120 offset:{L_F}
    """)
    a.label("L_nof")
    a("s_waitcnt lgkmcnt(0)")
    for r in range(4): a(f"v_mul_f32 v{92+r}, v{92+r}, v91")
    a("s_waitcnt vmcnt(0)")
    a.label("L_ochk"); a.forget()
    tag_chk(0, 4, 5)
    a(f"""
    s_cbranch_vccz L_ook
    s_mov_b64 exec, vcc
    """)
    if osl: a(f"s_sleep {osl}")
    oload()
    a(f"""
    s_mov_b64 exec, -1
    s_add_u32 s{sCnt}, s{sCnt}, 1
    s_waitcnt vmcnt({pipe})
    s_cmp_gt_u32 s{sCnt}, {LIM}
    s_cbranch_scc0 L_ochk
    """)
    a.label("L_ook"); a.forget()
    stamp(5)
    tag_clr(0, 24)
    for r in range(4): a(f"v_mul_f32 v{24+r}, v{24+r}, v{cf}")
    for d in Q8:
        for r in range(4): a(f"v_add_f32_dpp v{24+r}, v{24+r}, v{24+r} {d} {DPPF}")
    for r in range(4): a(f"v_cvt_pk_bf16_f32 v{24+r}, v{24+r}, v{24+r}")
    for r in range(4): a(f"v_mov_b32_dpp v{28+r}, v{24+r} row_ror:8 {DPPF}")
    for t in range(8):
        ab = 8 + 4 * (t % 4)
        for r in range(4): a(f"v_and_b32 v{ab+r}, v{24+t}, v{vMask+r}")
        c = "0" if t == 0 else R(vO)
        a(f"v_mfma_f32_16x16x32_bf16 {R(vO)}, {R(ab)}, {R(32+4*t)}, {c}")
    a("s_mov_b32 exec_hi, 0")
    for r in range(4): a(f"v_fma_f32 v{vO+r}, v{vO+r}, v90, v{92+r}")
    tag_put(vO, vTag)
    a(f"buffer_store_dwordx4 {R(vO)}, v88, {S(sWS)}, s{sP2} offen sc1")
    stamp(6)
    if rb:
        a(f"s_cmp_ge_u32 s{sRed}, 28")
        a("s_cbranch_scc1 %s" % ("L_stampout" if stamps else "L_end"))
        a("s_barrier")
    if ack:
        a("s_waitcnt vmcnt(0)")
        stamp(9)
    endpgm()

    a.label("L_reduce"); a.forget()
    def yload(base=8): a(f"buffer_load_dwordx4 {R(base)}, v84, {S(sWS)}, s{sP1} offen sc1")
    a("s_mov_b64 exec, -1")
    if tp: a("s_setprio 0")
    if rb: a("s_barrier")
    yload()
    a(f"s_mov_b32 s{sCnt}, 0")
    a("s_waitcnt vmcnt(0)")
    a.label("L_ypoll"); a.forget()
    tag_chk(8, 4, 5)
    a(f"""
    s_cbranch_vccz L_yok
    s_mov_b64 exec, vcc
    """)
    if psl: a(f"s_sleep {psl}")
    yload()
    a(f"""
    s_mov_b64 exec, -1
    s_add_u32 s{sCnt}, s{sCnt}, 1
    s_waitcnt vmcnt({ypipe})
    s_cmp_gt_u32 s{sCnt}, {LIM}
    s_cbranch_scc0 L_ypoll
    """)
    a.label("L_yok"); a.forget()
    stamp(7)
    tag_clr(8, 16)
    allred4(16, 0, ROW16)
    a(f"""
    s_mov_b64 exec, {S(sM,2)}
    ds_write_b128 v85, {R(16)} offset:{L_YP}
    s_mov_b64 exec, 1
    ds_add_rtn_u32 v4, v80, v86 offset:{L_CNT}
    s_mov_b64 exec, -1
    ds_read_b128 {R(12)}, v84 offset:{L_YP}
    s_waitcnt lgkmcnt(1)
    v_readfirstlane_b32 s{sT0}, v4
    s_cmp_lg_u32 s{sT0}, 7
    s_cbranch_scc1 L_yend
    s_waitcnt lgkmcnt(0)
    """)
    allred4(12, 0, ROW16)
    a(f"""
    v_cvt_pk_bf16_f32 v12, v12, v13
    v_cvt_pk_bf16_f32 v13, v14, v15
    s_mov_b64 exec, {S(sM,2)}
    global_store_dwordx2 v90, {R(12,2)}, s[38:39] {opol}
    """)
    stamp(8)
    a.label("L_yend")
    endpgm()
    a.label("L_epoch"); a.forget()
    a(f"""
    s_mov_b32 s{sCnt}, 0
    v_lshlrev_b32 v84, 4, v{vL}
    s_movk_i32 s{sT3}, {ST_OFF}
    """)
    a.label("L_fchk")
    for i in range(4):
        a(f"buffer_load_dwordx4 {R(32+4*i)}, v84, {S(sWS)}, s{sT3} offen offset:{1024*i} sc1")
    a("s_waitcnt vmcnt(0)")
    for i in range(4): a(f"v_xor_b32 v{33+4*i}, s{sTag}, v{33+4*i}")
    a(f"""
    v_or3_b32 v33, v33, v37, v41
    v_or_b32 v33, v33, v45
    v_cmp_ne_u32 vcc, 0, v33
    s_cbranch_vccz L_fok
    s_add_u32 s{sCnt}, s{sCnt}, 1
    s_cmp_gt_u32 s{sCnt}, {LIM}
    s_cbranch_scc0 L_fchk
    """)
    a.label("L_fok"); a.forget()
    a(f"""
    s_mov_b64 exec, 1
    buffer_store_dword v{vTag}, off, {S(sWS)}, 0 offset:{EP_OFF} sc1
    """)
    endpgm()

    a.label("L_stat"); a.forget()
    mi, li, M, L = vO + 4, vO + 5, vO, vO + 2
    a(f"""
    v_sub_f32 v{mi}, v{mi}, v{M}
    v_mul_f32 v{mi}, s{sC}, v{mi}
    v_exp_f32 v{mi}, v{mi}
    v_mul_f32 v{L}, v{li}, v{mi}
    """)
    for k in (8, 4, 2, 1): a(f"v_add_f32_dpp v{L}, v{L}, v{L} row_ror:{k} {DPPF}")
    a(f"""
    v_mov_b32 v{M+1}, s{sTag}
    v_mov_b32 v{L+1}, s{sTag}
    s_lshl_b32 s{sT0}, s{sBH}, 3
    s_add_u32 s{sT0}, s{sT0}, s{sS}
    s_lshl_b32 s{sT0}, s{sT0}, 4
    s_add_u32 s{sT0}, s{sT0}, {ST_OFF}
    s_mov_b64 exec, 1
    buffer_store_dwordx4 {R(M)}, off, {S(sWS)}, s{sT0} sc1
    s_mov_b64 exec, -1
    s_branch L_nostat
    """)
    if NL:
        X = 32
        a.label("L_gsync"); a.forget()
        a(f"""
        v_lshlrev_b32 v{X+4}, 4, v{vL}
        s_lshl_b32 s{sT3}, s{sBH}, 7
        s_andn2_b32 s{sT3}, s{sT3}, {GS*16-1}
        s_add_u32 s{sT3}, s{sT3}, {ST_OFF}
        s_mov_b32 s{sCnt}, 0
        s_mov_b32 exec_lo, {hex(min((1 << GS) - 1, 0xffffffff))}
        s_mov_b32 exec_hi, {"-1" if GS == 64 else "0"}
        """)
        a.label("L_gs")
        a(f"""
        buffer_load_dword v{X+5}, v{X+4}, {S(sWS)}, s{sT3} offen offset:4 sc1
        s_waitcnt vmcnt(0)
        v_cmp_ne_u32 vcc, s{sTag}, v{X+5}
        s_cbranch_vccz L_gs_ok
        s_add_u32 s{sCnt}, s{sCnt}, 1
        s_cmp_gt_u32 s{sCnt}, {LIM}
        s_cbranch_scc0 L_gs
        """)
        a.label("L_gs_ok")
        a(f"""
        s_mov_b64 exec, -1
        s_branch L_gsync_ret
        """)
    a.label("L_mid1"); a.forget()
    a(f"""
    v_and_b32 v{vT}, 7, v{vL}
    v_lshlrev_b32 v89, 4, v{vT}
    s_lshl_b32 s{sT3}, s{sBH}, 7
    s_add_u32 s{sT3}, s{sT3}, {ST_OFF}
    v_lshlrev_b32 v122, 7, v{vT}
    v_lshl_add_u32 v122, v{g}, 5, v122
    v_bfe_u32 v{vT}, v{vL}, 3, 1
    v_lshl_add_u32 v122, v{vT}, 4, v122
    s_lshl_b32 s{sP1}, s{sBH}, 3
    s_add_u32 s{sP1}, s{sP1}, s{sS}
    s_lshl_b32 s{sP1}, s{sP1}, 10
    s_add_u32 s{sP1}, s{sP1}, {OB_OFF}
    buffer_load_dwordx4 {R(84)}, v89, {S(sWS)}, s{sT3} offen sc1
    s_and_b32 s{sT0}, s{sW}, 3
    s_cmp_lg_u32 s{sT0}, 0
    s_cbranch_scc1 L_mid1b
    buffer_load_dwordx4 {R(vS)}, v122, {S(sWS)}, s{sP1} offen sc1
    """)
    a.label("L_mid1b")
    a(f"""
    s_lshl_b32 s{sT1}, s{sT0}, 10
    v_lshlrev_b32 v120, 4, v{vL}
    v_add_u32 v120, s{sT1}, v120
    v_lshrrev_b32 v88, 1, v{n}
    v_mul_u32_u24 v88, {YST}, v88
    v_and_b32 v{vT}, 1, v{n}
    v_lshl_add_u32 v88, v{vT}, 5, v88
    v_and_b32 v{vT}, 16, v{vL}
    v_add_u32 v88, v88, v{vT}
    s_mul_i32 s{sP2}, s{sB}, 28
    s_lshl_b32 s{sT1}, s{sT0}, 3
    s_add_u32 s{sP2}, s{sP2}, s{sT1}
    s_mul_i32 s{sP2}, s{sP2}, {YST}
    s_lshl_b32 s{sT1}, s{sH}, 3
    s_add_u32 s{sT1}, s{sT1}, s{sS}
    s_lshl_b32 s{sT1}, s{sT1}, {YSH}
    s_add_u32 s{sP2}, s{sP2}, s{sT1}
    s_add_u32 s{sP2}, s{sP2}, {YB_OFF}
    s_cmp_eq_u32 s{sT0}, 3
    s_cselect_b32 s{sT0}, 8, 0
    v_and_b32 v{vT}, s{sT0}, v{vL}
    v_lshl_or_b32 v88, v{vT}, 27, v88
    v_mul_u32_u24 v121, 7168, v{g}
    v_lshl_add_u32 v121, v{n}, 4, v121
    v_lshl_or_b32 v121, v{vT}, 27, v121
    s_and_b32 s{sT0}, s{sW}, 3
    s_lshl_b32 s{sT0}, s{sT0}, 8
    v_add_u32 v121, s{sT0}, v121
    v_mov_b32 v92, 0
    v_mov_b32 v93, 0
    v_mov_b32 v94, 0
    v_mov_b32 v95, 0
    s_branch L_pv2
    """)
    a.label("L_mid2"); a.forget()
    a(f"""
    v_lshlrev_b32 v{vT}, 5, v{g}
    ds_read_b128 {R(84)}, v{vT} offset:{L_R2}
    ds_read_b128 {R(88)}, v{vT} offset:{L_R2+16}
    s_waitcnt lgkmcnt(0)
    """)
    for t in range(8): a(f"v_cvt_pk_bf16_f32 v{84+t}, v{84+t}, v{84+t}")
    for t in range(8):
        ab = vA + 4 * (t & 1)
        for r in range(4): a(f"v_and_b32 v{ab+r}, v{84+t}, v{vMask+r}")
        c = "0" if t == 0 else R(92)
        a(f"v_mfma_f32_16x16x32_bf16 {R(92)}, {R(ab)}, {R(32+4*t)}, {c}")
    a(f"""
    s_and_b32 s{sT0}, s{sW}, 3
    s_lshl_b32 s{sT1}, s{sT0}, 10
    v_lshlrev_b32 v{vT}, 4, v{vL}
    v_add_u32 v{vT}, s{sT1}, v{vT}
    ds_write_b128 v{vT}, {R(92)} offset:{L_F}
    v_lshrrev_b32 v{g}, 4, v{vL}
    v_and_b32 v{n}, 15, v{vL}
    """)
    a.label("L_mid3"); a.forget()
    assert YS == 64
    a(f"""
    s_cmp_ge_u32 s{sRed}, 28
    s_cbranch_scc1 L_pv2
    v_lshlrev_b32 v84, 6, v{n}
    v_lshl_add_u32 v84, v{g}, 4, v84
    s_mov_b32 s{sM}, 0x00010001
    s_mov_b32 s{sM+1}, 0x00010001
    s_and_b32 s{sT1}, s{sW}, 7
    s_lshl_b32 s{sT0}, s{sT1}, 6
    v_lshlrev_b32 v85, 4, v{g}
    v_add_u32 v85, s{sT0}, v85
    v_mov_b32 v86, 1
    s_lshl_b32 s{sT0}, s{sRed}, 5
    s_mul_i32 s{sT2}, s{sB}, 896
    s_add_u32 s{sT0}, s{sT0}, s{sT2}
    v_lshlrev_b32 v90, 3, v{g}
    v_add_u32 v90, s{sT0}, v90
    s_mul_i32 s{sP1}, s{sB}, 28
    s_add_u32 s{sP1}, s{sP1}, s{sRed}
    s_mul_i32 s{sP1}, s{sP1}, {YST}
    s_lshl_b32 s{sT1}, s{sT1}, 10
    s_add_u32 s{sP1}, s{sP1}, s{sT1}
    s_add_u32 s{sP1}, s{sP1}, {YB_OFF}
    """)
    if ywarm == 1: yload(32)
    a("s_branch L_pv2")
    if ywarm == 2:
        a.label("L_ywarm"); a.forget()
        a(f"""
        s_cmp_ge_u32 s{sRed}, 28
        s_cbranch_scc1 L_pv2
        s_mul_i32 s{sP1}, s{sB}, 28
        s_add_u32 s{sP1}, s{sP1}, s{sRed}
        s_mul_i32 s{sP1}, s{sP1}, {YST}
        s_add_u32 s{sP1}, s{sP1}, {YB_OFF}
        v_lshlrev_b32 v84, 7, v{vL}
        buffer_load_dword v32, v84, {S(sWS)}, s{sP1} offen sc1
        s_branch L_pv2
        """)
    a.label("L_gate"); a.forget()
    xa, ga = 32, 36
    a("v_mov_b32 v44, 0")
    for r in range(4):
        a(f"""
        v_lshlrev_b32 v40, 16, v{xa+r}
        v_and_b32 v41, s{sHI}, v{xa+r}
        v_lshlrev_b32 v42, 16, v{ga+r}
        v_and_b32 v43, s{sHI}, v{ga+r}
        v_mul_f32 v40, v40, v42
        v_mul_f32 v41, v41, v43
        v_cvt_pk_bf16_f32 v40, v40, v41
        v_lshlrev_b32 v41, 16, v40
        v_and_b32 v40, s{sHI}, v40
        v_add_f32 v44, v44, v41
        v_add_f32 v44, v44, v40
        """)
    for k in (8, 4, 2, 1): a(f"v_add_f32_dpp v44, v44, v44 row_ror:{k} {DPPF}")
    a(f"""
    v_mov_b32 v45, v44
    v_permlane16_swap_b32 v44, v45
    v_add_f32 v44, v44, v45
    v_mov_b32 v45, v44
    v_permlane32_swap_b32 v44, v45
    v_add_f32 v44, v44, v45
    v_cvt_pk_bf16_f32 v44, v44, v44
    v_and_b32 v44, s{sHI}, v44
    v_mul_f32 v44, {f32(-1.4426950408889634)}, v44
    v_exp_f32 v44, v44
    v_add_f32 v44, 1.0, v44
    v_rcp_f32 v44, v44
    v_cvt_pk_bf16_f32 v44, v44, v44
    v_and_b32 v44, s{sHI}, v44
    v_sub_f32 v45, 1.0, v44
    v_cvt_pk_bf16_f32 v45, v45, v45
    v_and_b32 v45, s{sHI}, v45
    ds_write_b64 v80, {R(44,2)} offset:{L_GG}
    s_cmp_ge_u32 s{sRed}, 28
    s_cbranch_scc1 L_pv2
    v_lshlrev_b32 v40, 16, v46
    v_and_b32 v41, s{sHI}, v46
    v_lshlrev_b32 v42, 16, v47
    v_and_b32 v43, s{sHI}, v47
    v_mul_f32 v40, v40, v45
    v_mul_f32 v41, v41, v45
    v_mul_f32 v42, v42, v45
    v_mul_f32 v43, v43, v45
    v_lshlrev_b32 v{vT}, 4, v{g}
    ds_write_b128 v{vT}, {R(40)} offset:{L_YP+512}
    s_branch L_pv2
    """)
    a.label("L_ldgate"); a.forget()
    for r in range(8): a(f"v_mov_b32 v{32+r}, 0")
    a(f"""
    v_lshlrev_b32 v{vA+1}, 4, v{vL}
    s_mul_i32 s{sT0}, s{sB}, 896
    v_add_u32 v{vA}, s{sT0}, v{vA+1}
    s_min_u32 s{sT0}, s{sRed}, 27
    s_lshl_b32 s{sT0}, s{sT0}, 5
    v_lshrrev_b32 v{vA+2}, 4, v{vL}
    v_lshlrev_b32 v{vA+2}, 3, v{vA+2}
    v_add_u32 v{vA+2}, s{sT0}, v{vA+2}
    s_mov_b32 exec_hi, 0x00ffffff
    global_load_dwordx4 {R(32)}, v{vA}, s[16:17]
    global_load_dwordx4 {R(36)}, v{vA+1}, s[36:37]
    s_mov_b64 exec, -1
    global_load_dwordx2 {R(46,2)}, v{vA+2}, s[34:35]
    s_branch L_sm
    """)

    n, g = 120, 121
    a.label("L_stage1"); a.forget()
    SO = [None, 60, 61, 62, 64, 65, 66, 67, 69, 70, 71, 76, 77, 78]
    sStr = sP1
    a(f"""
    s_movk_i32 s{sStr}, 3584
    s_mov_b32 s{sP0}, {SH_OFF}
    s_lshr_b32 s{sT0}, s{sJJ}, 1
    s_and_b32 s{sT0}, s{sT0}, 1
    s_and_b32 s{sT1}, s{sJJ}, 3
    s_cmp_eq_u32 s{sW}, 0
    s_cselect_b32 s{sStr}, 8192, s{sStr}
    s_cselect_b32 s{sP2}, 9, 8
    s_cselect_b32 s{sT2}, s{sH}, s{sHF}
    s_cselect_b32 s{sP0}, {SQ_OFF}, s{sP0}
    s_cselect_b32 s{sT3}, s{sT1}, s{sT0}
    s_mul_i32 s{sCnt}, s{sStr}, 448
    s_lshl_b32 s{sT2}, s{sT2}, s{sP2}
    s_lshr_b32 s{sT1}, s{sJJ}, 2
    s_mul_i32 s{sT0}, s{sT1}, 112
    s_mul_i32 s{sT0}, s{sT0}, s{sStr}
    s_add_u32 s{sT2}, s{sT2}, s{sT0}
    s_lshl_b32 s{sT0}, s{sT3}, 7
    s_add_u32 s{sT2}, s{sT2}, s{sT0}
    s_sub_u32 s{sWA+2}, s{sCnt}, s{sT2}
    s_mul_i32 s{sT0}, s{sStr}, 14
    v_lshrrev_b32 v{vS+2}, 3, v{vL}
    v_mul_u32_u24 v{vT}, s{sT0}, v{vS+2}
    v_and_b32 v{vS+3}, 7, v{vL}
    v_lshl_add_u32 v{vT}, v{vS+3}, 4, v{vT}
    s_mov_b32 s{SO[1]}, s{sStr}
    """)
    for t in range(2, 14): a(f"s_add_u32 s{SO[t]}, s{SO[t-1]}, s{sStr}")
    a(f"""
    v_mul_u32_u24 v{vS}, 28, v{vS+2}
    s_mul_i32 s{sT0}, s{sT1}, 224
    v_add_u32 v{vS}, s{sT0}, v{vS}
    v_mov_b32 v{vS+1}, 0
    s_cmp_eq_u32 s{sW}, 0
    s_waitcnt lgkmcnt(0)
    s_cselect_b32 s{sWA}, s22, s28
    s_cselect_b32 s{sWA+1}, s23, s29
    s_add_u32 s{sWA}, s{sWA}, s{sT2}
    s_addc_u32 s{sWA+1}, s{sWA+1}, 0
    """)
    for t in range(14):
        a(f"buffer_load_dwordx4 {R(4*t)}, v{vT}, {S(sWA)}, {('s%d' % SO[t]) if t else '0'} offen{WQP}")
    a(f"""
    global_load_dwordx4 {R(56)}, v{vS}, s[16:17]
    global_load_dwordx3 {R(60,3)}, v{vS}, s[16:17] offset:16
    global_load_dwordx4 {R(64)}, v{vS}, s[16:17] offset:896
    global_load_dwordx3 {R(68,3)}, v{vS}, s[16:17] offset:912
    global_load_dword v63, v{vS+1}, s[42:43] offset:{EP_OFF} sc1
    s_add_u32 s{sK}, s18, s{sKV}
    s_addc_u32 s{sK+1}, s19, 0
    """)
    setup2()
    a(f"""
    v_lshrrev_b32 v{vT}, 1, v{g}
    v_lshlrev_b32 v{vT}, 12, v{vT}
    v_lshl_add_u32 v{vT}, v{n}, 5, v{vT}
    v_and_b32 v{vS}, 16, v{vL}
    v_add_u32 v{vT}, v{vT}, v{vS}
    s_lshl_b32 s{sT0}, s{sH}, 13
    s_add_u32 s{sP0}, s{sP0}, s{sT0}
    s_lshl_b32 s{sT0}, s{sB}, 12
    s_add_u32 s{sP1}, s{sP0}, s{sT0}
    s_lshl_b32 s{sT2}, s{sT1}, 10
    s_add_u32 s{sP0}, s{sP0}, s{sT2}
    s_lshl_b32 s{sT2}, s{sT3}, 8
    s_add_u32 s{sP0}, s{sP0}, s{sT2}
    s_mov_b32 s{sT2}, 0x01000100
    s_mov_b32 s{sT3}, 0x03020302
    v_lshlrev_b32 v{vQ+1}, 4, v{vL}
    s_waitcnt vmcnt(0)
    v_and_b32 v{vQ}, 0x7f7f7f7f, v63
    v_add_u32 v{vQ}, 0x671b3501, v{vQ}
    v_xor_b32 v63, 0xe79b3501, v63
    v_and_b32 v63, 0x80808080, v63
    v_xor_b32 v{vQ}, v{vQ}, v63
    v_mov_b32 v63, 0
    v_readfirstlane_b32 s{sTag}, v{vQ}
    ds_write_b32 v63, v{vQ} offset:{L_TAG}
    """)
    stamp(5)
    for t in range(14):
        for bb in range(2):
            ab = 112 if bb else vA
            xb = 64 if bb else 56
            a(f"v_perm_b32 v{vQ+2+bb}, v{xb+t//2}, v{xb+t//2}, s{sT3 if t & 1 else sT2}")
            for r in range(4): a(f"v_and_b32 v{ab+r}, v{vQ+2+bb}, v{vMask+r}")
            c = "0" if t == 0 else R(vS + 4 * bb)
            a(f"v_mfma_f32_16x16x32_bf16 {R(vS+4*bb)}, {R(ab)}, {R(4*t)}, {c}")
    a(f"s_cmp_eq_u32 s{sW}, 1")
    for r in range(4): a(f"v_permlane32_swap_b32 v{vS+r}, v{vS+4+r}")
    for r in range(4): a(f"v_add_f32_dpp v{vS+r}, v{vS+4+r}, v{vS+r} row_ror:8 {DPPF}")
    for r in range(4): a(f"v_add_u32 v{vS+r}, 0x80, v{vS+r}")
    tag_put(vS, vQ)
    a(f"""
    s_mov_b32 exec_lo, 0x00ff00ff
    s_mov_b32 exec_hi, 0x00ff00ff
    buffer_store_dwordx4 {R(vS)}, v{vT}, {S(sWS)}, s{sP0} offen sc1
    s_mov_b64 exec, -1
    """)
    stamp(6)
    a("s_cbranch_scc1 L_hgather")
    def qload(i): a(f"buffer_load_dwordx4 {R(64+4*i)}, v{vQ+1}, {S(sWS)}, s{sP1} offen offset:{1024*i} sc1")
    for f in range(16): kload(f)
    for i in range(4): qload(i)
    poll_many("L_qp", [(64+4*i, (lambda i=i: qload(i))) for i in range(4)], vQ + 4, vQ + 5)
    for i in range(4): tag_clr(64 + 4 * i)
    for i in range(1, 4):
        for r in range(4): a(f"v_add_f32 v{64+r}, v{64+r}, v{64+4*i+r}")
    a(f"""
    v_cvt_pk_bf16_f32 v{vQ}, v64, v65
    v_cvt_pk_bf16_f32 v{vQ+1}, v66, v67
    v_lshlrev_b32 v{vT}, 3, v{vL}
    ds_write_b64 v{vT}, {R(vQ,2)} offset:{L_Q}
    """)
    stamp(10)
    a("s_branch L_kdone")
    a.label("L_hgather"); a.forget()
    for f in range(16): kload(f)
    h = vS
    a(f"""
    v_and_b32 v{vA}, 7, v{vL}
    v_bfe_u32 v{vQ}, v{vL}, 3, 2
    v_lshlrev_b32 v{vQ}, 10, v{vQ}
    v_lshl_add_u32 v{vQ}, v{vA}, 4, v{vQ}
    s_lshl_b32 s{sT0}, s{sS}, 6
    s_add_u32 s{sP1}, s{sP1}, s{sT0}
    s_lshl_b32 s{sT1}, s{sHF}, 8
    s_lshl_b32 s{sT0}, s{sS}, 5
    s_add_u32 s{sT1}, s{sT1}, s{sT0}
    v_lshlrev_b32 v{vT}, 3, v{vA}
    v_add_u32 v{vT}, s{sT1}, v{vT}
    global_load_dwordx2 {R(118,2)}, v{vT}, s[30:31]
    """)
    def hload(): a(f"buffer_load_dwordx4 {R(h)}, v{vQ}, {S(sWS)}, s{sP1} offen sc1")
    hload()
    poll_many("L_hp", [(h, hload)], vQ + 4, vQ + 5)
    tag_clr(h)
    allred4(h, h + 4, ['ror:8', 'p16'])
    rnd2(h, h + 1, vQ + 4); rnd2(h + 2, h + 3, vQ + 5)
    a(f"""
    v_lshlrev_b32 v{h+4}, 16, v118
    v_and_b32 v{h+5}, s{sHI}, v118
    v_lshlrev_b32 v{h+6}, 16, v119
    v_and_b32 v{h+7}, s{sHI}, v119
    """)
    for r in range(4): a(f"v_add_f32 v{h+r}, v{h+r}, v{h+4+r}")
    rnd2(h, h + 1, vQ + 4); rnd2(h + 2, h + 3, vQ + 5)
    for r in range(4): a(f"v_max_f32 v{h+r}, 0, v{h+r}")
    for r in range(4): a(f"v_mul_f32 v{h+r}, v{h+r}, v{h+r}")
    a(f"""
    v_lshlrev_b32 v{vT}, 4, v{vA}
    ds_write_b128 v{vT}, {R(h)} offset:{L_R2}
    s_nop 1
    s_branch L_kdone
    """)
    if stamps:
        a.label("L_stampout"); a.forget()
        if amp >= 0:
            if amp == 99: a("s_movk_i32 s11, 10000")
            elif amp >= 200:
                a(f"""
                s_cmp_lg_u32 s2, {amp-200}
                s_cbranch_scc1 L_end
                s_cmp_lg_u32 s{sW}, 1
                s_cbranch_scc1 L_end
                s_mov_b64 exec, -1
                s_mov_b32 s12, {TS_OFF}
                buffer_load_dword v0, off, {S(sWS)}, s12 sc1
                s_waitcnt vmcnt(0)
                v_readfirstlane_b32 s11, v0
                s_sub_u32 s11, s15, s11
                s_add_u32 s11, s11, 100
                s_min_u32 s11, s11, 1000
                s_mul_i32 s11, s11, 50
                """)
            else:
                a("s_cmp_eq_u32 s%d, 0" % STR[amp])
                a("s_cbranch_scc1 L_end")
                a("s_sub_u32 s11, s%d, s15" % STR[amp])
                a("s_min_u32 s11, s11, 20000")
                a("s_lshl_b32 s11, s11, 3")
            a.label("L_amp")
            a("s_sleep 8")
            a("s_memrealtime s[%d:%d]" % (sTS, sTS + 1))
            a("s_waitcnt lgkmcnt(0)")
            a("s_sub_u32 s12, s%d, s15" % sTS)
            a("s_cmp_lt_u32 s12, s11")
            a("s_cbranch_scc1 L_amp")
        else:
            a("s_mov_b64 exec, -1")
            a("s_waitcnt vmcnt(0)")
            for i, r in enumerate(STR): a("v_writelane_b32 v0, s%d, %d" % (r, i))
            a(f"v_lshlrev_b32 v1, 2, v{vL}")
            a("s_mov_b64 exec, 0xfff")
            a("buffer_store_dword v0, v1, %s, s%d offen" % (S(sWS), sTSo))
    a.label("L_end")
    a("s_endpgm")
    if 2 <= lst <= 6:
        a.raw(".globl tiny_kernel\n.p2align 8\n.type tiny_kernel,@function\ntiny_kernel:\n    s_endpgm")
    a.raw('.section .rodata,"a"')
    if 2 <= lst <= 6:
        a.raw(".p2align 6\n.amdhsa_kernel tiny_kernel\n  .amdhsa_next_free_vgpr NV\n  .amdhsa_next_free_sgpr 16\n  .amdhsa_accum_offset NV\n  .amdhsa_group_segment_fixed_size 0\n  .amdhsa_kernarg_size 112\n  .amdhsa_user_sgpr_count 2\n  .amdhsa_user_sgpr_kernarg_segment_ptr 1\n  .amdhsa_system_sgpr_workgroup_id_x 1\n.end_amdhsa_kernel".replace("NV", {4: "128", 5: "256"}.get(lst, "8")))
    a.raw(".p2align 6")
    a.raw(".amdhsa_kernel %s_kernel" % NAME)
    a.raw("  .amdhsa_next_free_vgpr 128")
    a.raw("  .amdhsa_next_free_sgpr 102")
    a.raw("  .amdhsa_accum_offset 128")
    a.raw("  .amdhsa_group_segment_fixed_size 0")
    a.raw("  .amdhsa_kernarg_size 112")
    a.raw("  .amdhsa_user_sgpr_count 2")
    a.raw("  .amdhsa_user_sgpr_kernarg_segment_ptr 1")
    a.raw("  .amdhsa_system_sgpr_workgroup_id_x 1")
    a.raw("  .amdhsa_float_denorm_mode_32 3")
    a.raw(".end_amdhsa_kernel")
    return a.text()

if __name__ == "__main__":
    import argparse, inspect
    ap = argparse.ArgumentParser()
    ap.add_argument("-o", default="cdna_kernels/%s.s" % NAME)
    sig = inspect.signature(gen)
    for k, p in sig.parameters.items():
        if isinstance(p.default, bool): ap.add_argument("--" + k, action="store_true")
        elif isinstance(p.default, int): ap.add_argument("--" + k, type=int, default=p.default)
        else: ap.add_argument("--" + k, default=p.default)
    x = vars(ap.parse_args()); o = x.pop("o")
    x = {k: ("" if v == "none" else v) for k, v in x.items()}
    open(o, "w").write(gen(**x))
```
